```python
import torch

def _softmax(x, axis=-1):
    return torch.softmax(x, dim=axis)
def _gelu(x):
    return torch.nn.functional.gelu(x, approximate="tanh")
def _silu(x):
    return torch.nn.functional.silu(x)
def _sigmoid(x):
    return torch.sigmoid(x)
def _layernorm(x, axis=-1, eps=1e-5):
    m = x.mean(dim=axis, keepdim=True)
    v = x.var(dim=axis, keepdim=True, unbiased=False)
    return (x - m) / torch.sqrt(v + eps)
def _scatter_add(tgt, idx, src, axis=0):
    return tgt.clone().index_add_(axis, idx, src)
def _segment_sum(src, seg, n):
    out = torch.zeros((n,) + src.shape[1:], dtype=src.dtype)
    return out.index_add_(0, seg, src)
def _pad(x, pw):
    flat = tuple(v for pair in reversed(pw) for v in pair)
    return torch.nn.functional.pad(x, flat)

kernel_name = 'parallel_sum__grouped_kv_mqa__glu_gated_geglu__prompt'

def setup_inputs():

    _w = (lambda a: (lambda t: t.to(torch.bfloat16) if t.is_floating_point() else t)(torch.as_tensor(a)))
    def _A_setup():
        B, S, D, H = 1, 2048, 512, 32
        Dh = D // H
        return {
            "x": _w((lambda *s: torch.randn(*s, dtype=torch.bfloat16) * 0.05)(B, S, D)),
            "wq": _w((lambda *s: torch.randn(*s, dtype=torch.bfloat16) * 0.05)(D, H * Dh)),
            "wk": _w((lambda *s: torch.randn(*s, dtype=torch.bfloat16) * 0.05)(D, Dh)),
            "wv": _w((lambda *s: torch.randn(*s, dtype=torch.bfloat16) * 0.05)(D, Dh)),
            "wo": _w((lambda *s: torch.randn(*s, dtype=torch.bfloat16) * 0.05)(H * Dh, D)),
        }
    _A_in = _A_setup()

    def _B_setup():
        B, S, Dm, Df = 1, 2048, 512, 1792
        return {
            "x": _w((lambda *s: torch.randn(*s, dtype=torch.bfloat16) * 0.05)(B, S, Dm)),
            "w_gate": _w((lambda *s: torch.randn(*s, dtype=torch.bfloat16) * 0.4)(Dm, Df) * (Dm ** -0.5)),
            "w_up": _w((lambda *s: torch.randn(*s, dtype=torch.bfloat16) * 0.4)(Dm, Df) * (Dm ** -0.5)),
            "w_down": _w((lambda *s: torch.randn(*s, dtype=torch.bfloat16) * 0.4)(Df, Dm) * (Df ** -0.5)),
        }
    _B_in = _B_setup()

    return {
        "A_x": _A_in["x"],
        "A_wq": _A_in["wq"],
        "A_wk": _A_in["wk"],
        "A_wv": _A_in["wv"],
        "A_wo": _A_in["wo"],
        "B_x": _B_in["x"],
        "B_w_gate": _B_in["w_gate"],
        "B_w_up": _B_in["w_up"],
        "B_w_down": _B_in["w_down"],
    }

def reference(A_x, A_wq, A_wk, A_wv, A_wo, B_x, B_w_gate, B_w_up, B_w_down):
    def _A_ref(x, wq, wk, wv, wo):
        B, S, D = x.shape
        H = 32
        Dh = D // H
        q = (lambda x, *d: x.permute(*d))((x @ wq).reshape(B, S, H, Dh), 0, 2, 1, 3)
        k = x @ wk
        v = x @ wv
        scores = torch.einsum("bhqd,bkd->bhqk", q, k) * (Dh ** -0.5)
        p = _softmax(scores, axis=-1)
        o = torch.einsum("bhqk,bkd->bhqd", p, v)
        return (lambda x, *d: x.permute(*d))(o, 0, 2, 1, 3).reshape(B, S, H * Dh) @ wo

    def _B_ref(x, w_gate, w_up, w_down):
        g = torch.einsum("bsd,df->bsf", x, w_gate)
        u = torch.einsum("bsd,df->bsf", x, w_up)
        h = _gelu(g) * u
        return torch.einsum("bsf,fd->bsd", h, w_down)

    x = A_x
    xn = _layernorm(x, axis=-1)
    return x + _A_ref(xn, A_wq, A_wk, A_wv, A_wo) + _B_ref(xn, B_w_gate, B_w_up, B_w_down)
```

```python
class Asm:
    def __init__(self):
        self.lines = []
        self._lbl = 0
    def __call__(self, s):
        for ln in s.strip("\n").split("\n"):
            ln = ln.strip()
            if ln:
                self.lines.append("    " + ln if not ln.endswith(":") else ln)
    def c(self, s):
        self.lines.append("    ; " + s)
    def label(self, name):
        self.lines.append(name + ":")
    def newlabel(self, base="L"):
        self._lbl += 1
        return f"{base}_{self._lbl}"
    def text(self):
        return "\n".join(self.lines) + "\n"

def vr(base, n=1):
    return f"v{base}" if n == 1 else f"v[{base}:{base+n-1}]"
def sr(base, n=1):
    return f"s{base}" if n == 1 else f"s[{base}:{base+n-1}]"
```

```python
import sys, math
from asmlib import Asm, vr, sr

NAME = "parallel_sum__grouped_kv_mqa__glu_gated_geglu__prompt"

WS_KF = 0x0
WS_VF = 0x10000
WS_ST = 0x20000
WS_KM = 0x24000
WS_CS = 0x25000
WS_SMALL_END = 0x30000
WS_HF = 0x100000
WS_OF = 0x800000
HF_BYTES = 64*112*1024
OF_BYTES = 64*32*1024

S_X, S_WQ, S_WK, S_WV, S_WO, S_BX, S_WG, S_WU, S_WD, S_OUT, S_DBG, S_WS = 16,18,20,22,24,26,28,30,32,34,36,38
S_W = 3

def prologue(a):
    a("""
    s_load_dwordx16 s[16:31], s[0:1], 0
    s_load_dwordx8 s[32:39], s[0:1], 64
    v_and_b32 v1, 63, v0
    v_lshrrev_b32 v2, 6, v0
    s_nop 0
    v_readfirstlane_b32 s3, v2
    s_waitcnt lgkmcnt(0)
    """)

def srd(a, d, ptr, nbytes, off=0):
    if off:
        a(f"s_add_u32 s{d}, s{ptr}, {off}")
        a(f"s_addc_u32 s{d+1}, s{ptr+1}, 0")
        a(f"s_and_b32 s{d+1}, s{d+1}, 0xffff")
    else:
        a(f"s_mov_b32 s{d}, s{ptr}")
        a(f"s_and_b32 s{d+1}, s{ptr+1}, 0xffff")
    a(f"s_mov_b32 s{d+2}, {nbytes}")
    a(f"s_mov_b32 s{d+3}, 0x00020000")

ONES_BF16 = 0x3F803F80

def dpp_wave_max(a, v):
    for mod in ("quad_perm:[1,0,3,2] row_mask:0xf bank_mask:0xf", "quad_perm:[2,3,0,1] row_mask:0xf bank_mask:0xf",
                "row_half_mirror row_mask:0xf bank_mask:0xf", "row_mirror row_mask:0xf bank_mask:0xf",
                "row_bcast:15 row_mask:0xa bank_mask:0xf", "row_bcast:31 row_mask:0xc bank_mask:0xf"):
        a("s_nop 1")
        a(f"v_max_f32_dpp v{v}, v{v}, v{v} {mod}")

def half_sum(a, v, t):
    a(f"v_mov_b32 v{t}, v{v}")
    a("s_nop 1")
    a(f"v_permlane32_swap_b32 v{v}, v{t}")
    a("s_nop 1")
    a(f"v_add_f32 v{v}, v{v}, v{t}")

def role_kv(a, SC1=""):
    a.c("==== KV role ====")
    SCR, L_X, L_WK, L_WV = 0, 12288, 45056, 61568
    ACCX, SX, SXX, SW, FIN, CSF = SCR, SCR+8192, SCR+8704, SCR+9216, SCR+9728, SCR+10240
    srd(a, 40, S_X, 2048*1024)
    srd(a, 44, S_WK, 16384)
    srd(a, 48, S_WV, 16384)
    srd(a, 52, S_WS, WS_SMALL_END)
    a("v_lshlrev_b32 v3, 4, v1")
    a("s_and_b32 s5, s3, 1")
    a("s_lshl_b32 s5, s5, 7")
    a("v_xor_b32 v4, s5, v3")
    a("s_lshl_b32 s6, s4, 5")
    a("s_lshl_b32 s7, s3, 3")
    a("s_add_u32 s6, s6, s7")
    a("s_lshl_b32 s6, s6, 10")
    a("s_lshl_b32 s7, s7, 10")
    for i in range(8):
        a(f"s_add_u32 m0, s7, {L_X + i*1024}")
        a(f"v_xor_b32 v5, {i<<4}, v4")
        a(f"s_add_u32 s8, s6, {i*1024}")
        a("buffer_load_dwordx4 v5, s[40:43], s8 offen lds")
    a("s_lshl_b32 s9, s3, 12")
    for i in range(4):
        a(f"s_add_u32 m0, s9, {L_WK + i*1024}")
        a(f"s_add_u32 s8, s9, {i*1024}")
        a("buffer_load_dwordx4 v3, s[44:47], s8 offen lds")
    for i in range(4):
        a(f"s_add_u32 m0, s9, {L_WV + i*1024}")
        a(f"s_add_u32 s8, s9, {i*1024}")
        a("buffer_load_dwordx4 v3, s[48:51], s8 offen lds")
    a("v_and_b32 v6, 31, v1")
    a("v_lshrrev_b32 v7, 5, v1")
    a("s_lshr_b32 s10, s3, 1")
    a("s_and_b32 s11, s3, 1")
    a("v_and_b32 v8, 15, v1")
    a("v_xor_b32 v8, v8, v7")
    a("v_lshlrev_b32 v8, 4, v8")
    a("v_lshl_add_u32 v8, v6, 10, v8")
    a("s_lshl_b32 s12, s10, 9")
    a(f"s_add_u32 s12, s12, {L_X}")
    a("v_add_u32 v8, s12, v8")
    a("v_bfe_u32 v9, v1, 4, 1")
    a(f"v_mul_u32_u24 v9, {L_WV - L_WK}, v9")
    a("v_bfe_u32 v10, v1, 2, 2")
    a("v_lshl_add_u32 v10, v7, 3, v10")
    a("v_lshlrev_b32 v10, 5, v10")
    a("v_add_u32 v9, v9, v10")
    a("v_and_b32 v10, 3, v1")
    a("v_lshl_add_u32 v9, v10, 3, v9")
    a("s_lshl_b32 s12, s10, 13")
    a(f"s_add_u32 s12, s12, {L_WK}")
    a("v_add_u32 v9, s12, v9")
    ACC = 16
    for i in range(16): a(f"v_mov_b32 v{ACC+i}, 0")
    a("v_mov_b32 v11, 0")
    a("v_mov_b32 v12, 0")
    a(f"v_mov_b32 v13, {ONES_BF16:#x}")
    a("s_waitcnt vmcnt(0)")
    a("s_barrier")
    XF, WF = 32, 40
    def reads(s, buf):
        a(f"v_xor_b32 v14, {(s&7)<<5}, v8")
        a(f"ds_read_b128 {vr(XF+4*buf,4)}, v14 offset:{(s>>3)*256}")
        a(f"ds_read_b64_tr_b16 {vr(WF+4*buf,2)}, v9 offset:{(16*s)*32}")
        a(f"ds_read_b64_tr_b16 {vr(WF+4*buf+2,2)}, v9 offset:{(16*s+4)*32}")
    Lo1, Ljoin = a.newlabel("KV_o1"), a.newlabel("KV_join")
    a("s_cmp_eq_u32 s11, 1")
    a(f"s_cbranch_scc1 {Lo1}")
    for o in range(2):
        if o == 1: a.label(Lo1)
        reads(0, 0)
        for s in range(16):
            b = s & 1
            if s < 15:
                reads(s+1, b^1)
                a("s_waitcnt lgkmcnt(3)")
            else:
                a("s_waitcnt lgkmcnt(0)")
            x, w = XF+4*b, WF+4*b
            if o == 0:
                a(f"v_mfma_f32_32x32x16_bf16 {vr(ACC,16)}, {vr(w,4)}, {vr(x,4)}, {vr(ACC,16)}")
                for r in range(4):
                    a(f"v_dot2_f32_bf16 v11, v{x+r}, v13, v11")
                    a(f"v_dot2_f32_bf16 v12, v{x+r}, v{x+r}, v12")
            else:
                a(f"v_mfma_f32_32x32x16_bf16 {vr(ACC,16)}, {vr(x,4)}, {vr(w,4)}, {vr(ACC,16)}")
                for r in range(4):
                    a(f"v_dot2_f32_bf16 v11, v{w+r}, v13, v11")
        if o == 0: a(f"s_branch {Ljoin}")
    a.label(Ljoin)
    a("v_lshlrev_b32 v14, 2, v1")
    a("s_lshl_b32 s12, s10, 8")
    a("v_add_u32 v15, s12, v14")
    Lw1, Lw2 = a.newlabel("KV_w1"), a.newlabel("KV_w2")
    a("s_cmp_eq_u32 s11, 1")
    a(f"s_cbranch_scc1 {Lw1}")
    a(f"ds_write_b32 v15, v11 offset:{SX}")
    a(f"ds_write_b32 v15, v12 offset:{SXX}")
    a(f"s_branch {Lw2}")
    a.label(Lw1)
    a(f"ds_write_b32 v15, v11 offset:{SW}")
    a.label(Lw2)
    a("s_nop 7")
    a("s_nop 7")
    Lna = a.newlabel("KV_na")
    a("v_lshlrev_b32 v14, 4, v1")
    a("s_lshl_b32 s12, s11, 12")
    a("v_add_u32 v14, s12, v14")
    a("s_cmp_eq_u32 s10, 0")
    a(f"s_cbranch_scc1 {Lna}")
    for q in range(4):
        a(f"ds_write_b128 v14, {vr(ACC+4*q,4)} offset:{ACCX + q*1024}")
    a.label(Lna)
    a("s_waitcnt lgkmcnt(0)")
    a("s_barrier")
    Lfin_end = a.newlabel("KV_finend")
    a("s_cmp_eq_u32 s10, 1")
    a(f"s_cbranch_scc1 {Lfin_end}")
    T = 48
    for q in range(4):
        a(f"ds_read_b128 {vr(T+4*q,4)}, v14 offset:{ACCX + q*1024}")
    a("v_lshlrev_b32 v15, 2, v6")
    a(f"v_add_u32 v64, {SX}, v15")
    a("ds_read2_b32 v[66:67], v64 offset0:0 offset1:32")
    a("ds_read2_b32 v[68:69], v64 offset0:64 offset1:96")
    a("ds_read2_b32 v[70:71], v64 offset0:128 offset1:160")
    a("ds_read2_b32 v[72:73], v64 offset0:192 offset1:224")
    a(f"v_add_u32 v65, {SW}, v15")
    a("ds_read2_b32 v[74:75], v65 offset0:0 offset1:32")
    a("ds_read2_b32 v[76:77], v65 offset0:64 offset1:96")
    a("s_waitcnt lgkmcnt(0)")
    for i in range(16): a(f"v_add_f32 v{ACC+i}, v{ACC+i}, v{T+i}")
    a("""
    v_add_f32 v66, v66, v67
    v_add_f32 v68, v68, v69
    v_add_f32 v66, v66, v68
    v_add_f32 v70, v70, v71
    v_add_f32 v72, v72, v73
    v_add_f32 v70, v70, v72
    v_add_f32 v74, v74, v75
    v_add_f32 v76, v76, v77
    v_add_f32 v74, v74, v76
    """)
    a(f"v_mul_f32 v66, {1.0/512.0!r}, v66")
    a(f"v_mul_f32 v70, {1.0/512.0!r}, v70")
    a("v_fma_f32 v70, -v66, v66, v70")
    a("v_max_f32 v70, 0, v70")
    a(f"v_add_f32 v70, 0x3727c5ac, v70")
    a("v_rsq_f32 v70, v70")
    a("s_nop 0")
    a("v_mul_f32 v66, v66, v70")
    a("v_sub_f32 v66, 0, v66")
    a(f"ds_write_b32 v15, v70 offset:{FIN}")
    a(f"ds_write_b32 v15, v66 offset:{FIN+128}")
    a(f"ds_write_b32 v15, v74 offset:{CSF}")
    LV = a.newlabel("KV_V")
    a("s_cmp_eq_u32 s11, 1")
    a(f"s_cbranch_scc1 {LV}")
    a("v_lshlrev_b32 v64, 4, v7")
    a("s_waitcnt lgkmcnt(0)")
    a(f"ds_read_b128 v[76:79], v64 offset:{CSF}")
    a(f"ds_read_b128 v[80:83], v64 offset:{CSF+32}")
    a("s_lshl_b32 s12, s4, 7")
    a("v_add_u32 v65, s12, v15")
    a("v_cmp_gt_u32 vcc, 32, v1")
    a("s_and_saveexec_b64 s[14:15], vcc")
    a(f"s_mov_b32 s13, {WS_ST}")
    a(f"buffer_store_dword v70, v65, s[52:55], s13 offen {SC1}")
    a(f"s_mov_b32 s13, {WS_ST+8192}")
    a(f"buffer_store_dword v66, v65, s[52:55], s13 offen {SC1}")
    a("s_mov_b64 exec, s[14:15]")
    a("s_waitcnt lgkmcnt(0)")
    for j in range(8):
        a(f"v_mul_f32 v{76+j}, v66, v{76+j}")
        a(f"v_fma_f32 v{ACC+j}, v{ACC+j}, v70, v{76+j}")
    a(f"v_mul_f32 v84, v{ACC}, v{ACC}")
    for j in range(1, 8): a(f"v_fmac_f32 v84, v{ACC+j}, v{ACC+j}")
    for j in range(4): a(f"v_cvt_pk_bf16_f32 v{88+j}, v{ACC+2*j}, v{ACC+2*j+1}")
    half_sum(a, 84, 85)
    dpp_wave_max(a, 84)
    a("v_and_b32 v64, 0x33, v1")
    a("v_bfe_u32 v65, v1, 2, 1")
    a("v_lshl_or_b32 v64, v65, 3, v64")
    a("v_bfe_u32 v65, v1, 3, 1")
    a("v_lshl_or_b32 v64, v65, 2, v64")
    a("v_lshlrev_b32 v64, 4, v64")
    a("s_lshl_b32 s12, s4, 10")
    a(f"s_add_u32 s12, s12, {WS_KF}")
    a(f"buffer_store_dwordx4 v[88:91], v64, s[52:55], s12 offen {SC1}")
    a("s_lshl_b32 s12, s4, 2")
    a(f"s_add_u32 s12, s12, {WS_KM}")
    a("v_mov_b32 v65, 0")
    a("v_cmp_eq_u32 vcc, 63, v1")
    a("s_and_saveexec_b64 s[14:15], vcc")
    a(f"buffer_store_dword v84, v65, s[52:55], s12 offen {SC1}")
    a("s_mov_b64 exec, s[14:15]")
    a(f"s_branch {Lfin_end}")
    a.label(LV)
    a("v_lshlrev_b32 v64, 4, v7")
    a("s_waitcnt lgkmcnt(0)")
    for g in range(4):
        a(f"ds_read_b128 {vr(76+4*g,4)}, v64 offset:{FIN + 32*g}")
        a(f"ds_read_b128 {vr(92+4*g,4)}, v64 offset:{FIN + 128 + 32*g}")
    a("s_waitcnt lgkmcnt(0)")
    for r in range(16):
        a(f"v_mul_f32 v{92+r}, v{92+r}, v74")
        a(f"v_fma_f32 v{ACC+r}, v{ACC+r}, v{76+r}, v{92+r}")
    for j in range(8): a(f"v_cvt_pk_bf16_f32 v{108+j}, v{ACC+2*j}, v{ACC+2*j+1}")
    a("v_and_b32 v64, 15, v1")
    a("v_lshl_add_u32 v64, v7, 4, v64")
    a("v_lshlrev_b32 v64, 4, v64")
    a("s_lshl_b32 s12, s4, 10")
    a(f"s_add_u32 s12, s12, {WS_VF}")
    a("v_cmp_lt_u32 vcc, 15, v6")
    a("s_and_saveexec_b64 s[14:15], vcc")
    a(f"buffer_store_dwordx4 v[108:111], v64, s[52:55], s12 offen {SC1}")
    a(f"buffer_store_dwordx4 v[112:115], v64, s[52:55], s12 offen offset:512 {SC1}")
    a("s_mov_b64 exec, s[14:15]")
    a.label(Lfin_end)

def role_colsum(a, SC1=""):
    a.c("==== colsum part ====")
    Lend = a.newlabel("CS_end")
    a("s_cmp_ge_u32 s4, 56")
    a(f"s_cbranch_scc1 {Lend}")
    a("s_barrier")
    a("s_cmp_ge_u32 s4, 28")
    a(f"s_cselect_b32 s44, s{S_WU}, s{S_WG}")
    a(f"s_cselect_b32 s45, s{S_WU+1}, s{S_WG+1}")
    a("s_and_b32 s45, s45, 0xffff")
    a(f"s_mov_b32 s46, {512*3584}")
    a("s_mov_b32 s47, 0x00020000")
    a("s_sub_u32 s5, s4, 28")
    a("s_cmp_ge_u32 s4, 28")
    a("s_cselect_b32 s5, s5, s4")
    a("s_lshl_b32 s5, s5, 7")
    a("v_lshrrev_b32 v3, 3, v1")
    a("v_mul_u32_u24 v3, 3584, v3")
    a("v_bfe_u32 v4, v1, 2, 1")
    a("v_bfe_u32 v5, v1, 4, 1")
    a("v_xor_b32 v4, v4, v5")
    a("v_lshl_add_u32 v3, v4, 6, v3")
    a("v_and_b32 v4, 3, v1")
    a("v_lshl_add_u32 v3, v4, 4, v3")
    a(f"s_mul_i32 s6, s3, {128*3584}")
    a("s_add_u32 s6, s6, s5")
    a("s_lshl_b32 s7, s3, 14")
    for i in range(16):
        a(f"s_add_u32 m0, s7, {i*1024}")
        a(f"s_add_u32 s8, s6, {i*8*3584}")
        a("buffer_load_dwordx4 v3, s[44:47], s8 offen lds")
    a("v_lshrrev_b32 v7, 5, v1")
    a("v_bfe_u32 v10, v1, 2, 2")
    a("v_lshl_add_u32 v9, v7, 3, v10")
    a("v_lshlrev_b32 v9, 7, v9")
    a("v_lshrrev_b32 v10, 1, v10")
    a("v_xor_b32 v10, s3, v10")
    a("v_and_b32 v10, 1, v10")
    a("v_lshl_add_u32 v9, v10, 6, v9")
    a("v_bfe_u32 v10, v1, 4, 1")
    a("v_lshl_add_u32 v9, v10, 5, v9")
    a("v_and_b32 v10, 3, v1")
    a("v_lshl_add_u32 v9, v10, 3, v9")
    for i in range(16): a(f"v_mov_b32 v{16+i}, 0")
    for i in range(4): a(f"v_mov_b32 v{32+i}, {ONES_BF16:#x}")
    a("s_waitcnt vmcnt(0)")
    a("s_barrier")
    a("s_cmp_ge_u32 s3, 2")
    a(f"s_cbranch_scc1 {Lend}")
    WF = 40
    def rd(s, b):
        a(f"ds_read_b64_tr_b16 {vr(WF+4*b,2)}, v9 offset:{(16*s)*128}")
        a(f"ds_read_b64_tr_b16 {vr(WF+4*b+2,2)}, v9 offset:{(16*s+4)*128}")
    rd(0, 0)
    for s in range(32):
        b = s & 1
        if s < 31:
            rd(s+1, b^1); a("s_waitcnt lgkmcnt(2)")
        else:
            a("s_waitcnt lgkmcnt(0)")
        a(f"v_mfma_f32_32x32x16_bf16 v[16:31], {vr(WF+4*b,4)}, v[32:35], v[16:31]")
    a("s_lshl_b32 s12, s4, 8")
    a("s_lshl_b32 s13, s3, 7")
    a("s_add_u32 s12, s12, s13")
    a(f"s_add_u32 s12, s12, {WS_CS}")
    a("v_lshlrev_b32 v3, 4, v7")
    a("v_and_b32 v4, 31, v1")
    a("v_cmp_eq_u32 vcc, 0, v4")
    a("s_nop 7")
    a("s_nop 7")
    a("s_and_saveexec_b64 s[14:15], vcc")
    for g in range(4):
        a(f"buffer_store_dwordx4 {vr(16+4*g,4)}, v3, s[52:55], s12 offen offset:{32*g} {SC1}")
    a("s_mov_b64 exec, s[14:15]")
    a.label(Lend)


QSCALE = 0.25 * 1.4426950408889634
M_THRESH = 48.0
def role_attn(a, SC1="", wait_kv=None, signal_o=None):
    a.c("==== ATTN role ====")
    srd(a, 40, S_X, 2048*1024)
    srd(a, 44, S_WQ, 512*1024)
    srd(a, 52, S_WS, WS_SMALL_END)
    srd(a, 56, S_WS, OF_BYTES, WS_OF)
    a("s_and_b32 s6, s3, 1")
    a("s_lshr_b32 s7, s3, 1")
    a("v_lshrrev_b32 v3, 3, v1")
    a("v_lshlrev_b32 v3, 10, v3")
    a("v_and_b32 v4, 7, v1")
    a("v_lshrrev_b32 v5, 4, v1")
    a("v_xor_b32 v6, v4, v5")
    a("v_lshl_add_u32 v8, v6, 4, v3")
    a("v_xor_b32 v9, 64, v8")
    a("v_bfe_u32 v6, v1, 2, 1")
    a("v_and_b32 v7, 1, v5")
    a("v_xor_b32 v6, v6, v7")
    a("v_lshl_add_u32 v10, v6, 6, v3")
    a("v_and_b32 v6, 3, v1")
    a("v_lshl_add_u32 v10, v6, 4, v10")
    a("s_lshl_b32 s8, s4, 6")
    a("s_lshl_b32 s9, s3, 4")
    a("s_add_u32 s8, s8, s9")
    a("s_lshl_b32 s8, s8, 10")
    a("s_lshl_b32 s9, s9, 10")
    a("s_lshl_b32 s10, s5, 7")
    a("s_add_u32 s9, s9, s10")
    a("s_lshl_b32 s10, s3, 11")
    def dma(c):
        st = c % 4
        for i in range(2):
            a(f"s_add_u32 m0, s10, {st*16384 + i*1024}")
            a(f"s_add_u32 s11, s8, {i*8*1024 + c*128}")
            a(f"buffer_load_dwordx4 v{8+i}, s[40:43], s11 offen lds")
        for i in range(2):
            a(f"s_add_u32 m0, s10, {st*16384 + 8192 + i*1024}")
            a(f"s_add_u32 s11, s9, {(c*64 + i*8)*1024}")
            a("buffer_load_dwordx4 v10, s[44:47], s11 offen lds")
    for c in range(3): dma(c)
    a("v_and_b32 v6, 31, v1")
    a("v_lshrrev_b32 v7, 5, v1")
    a("v_bfe_u32 v11, v1, 1, 3")
    a("v_xor_b32 v11, v11, v7")
    a("v_lshlrev_b32 v11, 4, v11")
    a("v_lshl_add_u32 v11, v6, 7, v11")
    a("s_lshl_b32 s11, s7, 12")
    a("v_add_u32 v12, s11, v11")
    for s in range(1, 4): a(f"v_xor_b32 v{12+s}, {s<<5}, v12")
    a("v_bfe_u32 v11, v1, 2, 2")
    a("v_lshl_add_u32 v2, v7, 3, v11")
    a("v_lshlrev_b32 v2, 7, v2")
    a("v_lshrrev_b32 v11, 1, v11")
    a("v_xor_b32 v11, s6, v11")
    a("v_lshl_add_u32 v2, v11, 6, v2")
    a("v_bfe_u32 v11, v1, 4, 1")
    a("v_lshl_add_u32 v2, v11, 5, v2")
    a("v_and_b32 v11, 3, v1")
    a("v_lshl_add_u32 v2, v11, 3, v2")
    ACC, XF, WF = 16, 32, 40
    for i in range(16): a(f"v_mov_b32 v{ACC+i}, 0")
    a("v_mov_b32 v48, 0")
    a(f"v_mov_b32 v49, {ONES_BF16:#x}")
    def reads(c, s, b):
        st = c % 4
        a(f"ds_read_b128 {vr(XF+4*b,4)}, v{12+s} offset:{st*16384}")
        a(f"ds_read_b64_tr_b16 {vr(WF+4*b,2)}, v2 offset:{st*16384 + 8192 + (16*s)*128}")
        a(f"ds_read_b64_tr_b16 {vr(WF+4*b+2,2)}, v2 offset:{st*16384 + 8192 + (16*s+4)*128}")
    for c in range(8):
        nout = min(7, c+2) - c
        a(f"s_waitcnt vmcnt({4*nout})")
        a("s_barrier")
        reads(c, 0, 0)
        if c + 3 < 8: dma(c+3)
        for s in range(4):
            b = s & 1
            if s < 3:
                reads(c, s+1, b^1); a("s_waitcnt lgkmcnt(3)")
            else:
                a("s_waitcnt lgkmcnt(0)")
            a(f"v_mfma_f32_32x32x16_bf16 {vr(ACC,16)}, {vr(WF+4*b,4)}, {vr(XF+4*b,4)}, {vr(ACC,16)}")
            for r in range(4): a(f"v_dot2_f32_bf16 v48, v{WF+4*b+r}, v49, v48")
    half_sum(a, 48, 49)
    a("s_barrier")
    a("s_lshl_b32 s11, s3, 8")
    a(f"s_add_u32 s11, s11, 65536")
    a("v_lshl_add_u32 v11, v6, 2, s11")
    a("ds_write_b32 v11, v48")
    a("v_lshl_add_u32 v11, v7, 4, s11")
    a("s_waitcnt lgkmcnt(0)")
    for g in range(4): a(f"ds_read_b128 {vr(48+4*g,4)}, v11 offset:{32*g}")
    if wait_kv: wait_kv(a)
    QA, QB, CA, CB, SA, SB, OA, OB = 32, 36, 48, 64, 80, 96, 112, 128
    KF = [144, 148]; VF = [[152, 156], [160, 164]]; STG = [[168, 172], [176, 180]]; IDX = 184
    a("v_lshlrev_b32 v3, 4, v1")
    a("s_lshl_b32 s12, s3, 10")
    srd(a, 60, S_WS, 65536, WS_KF)
    srd(a, 64, S_WS, 65536, WS_VF)
    def stage_load(c, st):
        a(f"s_add_u32 s13, s12, {c*4096}")
        a(f"buffer_load_dwordx4 {vr(STG[st][0],4)}, v3, s[60:63], s13 offen {SC1}")
        a(f"buffer_load_dwordx4 {vr(STG[st][1],4)}, v3, s[64:67], s13 offen {SC1}")
    stage_load(0, 0)
    stage_load(1, 1)
    a("s_lshl_b32 s13, s4, 6")
    a("s_lshl_b32 s14, s7, 5")
    a("s_add_u32 s13, s13, s14")
    a("v_add_u32 v11, s13, v6")
    a("v_lshlrev_b32 v11, 2, v11")
    a(f"s_mov_b32 s14, {WS_ST}")
    a(f"buffer_load_dword v186, v11, s[52:55], s14 offen {SC1}")
    a(f"s_mov_b32 s14, {WS_ST+8192}")
    a(f"buffer_load_dword v187, v11, s[52:55], s14 offen {SC1}")
    a("v_lshlrev_b32 v11, 2, v1")
    a(f"s_mov_b32 s14, {WS_KM}")
    a(f"buffer_load_dword v188, v11, s[52:55], s14 offen {SC1}")
    a(f"v_mov_b32 v{IDX}, 0xdddddddd")
    for i in range(16):
        a(f"v_mov_b32 v{OA+i}, 0"); a(f"v_mov_b32 v{OB+i}, 0"); a(f"v_mov_b32 v{SB+i}, 0")
    a("v_and_b32 v11, 27, v6")
    a("v_cmp_eq_u32 vcc, 16, v11")
    a(f"v_mov_b32 v185, {ONES_BF16:#x}")
    a("s_nop 0")
    a("v_cndmask_b32 v11, 0, v185, vcc")
    for bf in range(2):
        for c in range(2):
            for r in range(4): a(f"v_mov_b32 v{VF[bf][c]+r}, v11")
    a("s_mov_b32 s68, 0x0000ffff")
    a("s_mov_b32 s69, 0x0000ffff")
    a("v_add_u32 v4, s12, v3")
    a("v_and_b32 v5, 15, v1")
    a("v_lshl_add_u32 v5, v7, 4, v5")
    a("v_lshlrev_b32 v5, 4, v5")
    a("s_waitcnt vmcnt(0) lgkmcnt(0)")
    a(f"v_mul_f32 v186, {QSCALE!r}, v186")
    a(f"v_mul_f32 v187, {QSCALE!r}, v187")
    dpp_wave_max(a, 188)
    for r in range(16):
        a(f"v_mul_f32 v{48+r}, v187, v{48+r}")
        a(f"v_fma_f32 v{ACC+r}, v{ACC+r}, v186, v{48+r}")
    a("v_readlane_b32 s14, v188, 63")
    for hd in range(2):
        for j in range(4): a(f"v_cvt_pk_bf16_f32 v{QA+4*hd+j}, v{ACC+8*hd+2*j}, v{ACC+8*hd+2*j+1}")
    a(f"v_mul_f32 v186, v{ACC}, v{ACC}")
    for j in range(1, 8): a(f"v_fmac_f32 v186, v{ACC+j}, v{ACC+j}")
    a(f"v_mul_f32 v187, v{ACC+8}, v{ACC+8}")
    for j in range(1, 8): a(f"v_fmac_f32 v187, v{ACC+8+j}, v{ACC+8+j}")
    half_sum(a, 186, 189)
    half_sum(a, 187, 189)
    a("v_mul_f32 v186, s14, v186")
    a("v_mul_f32 v187, s14, v187")
    a("v_sqrt_f32 v186, v186")
    a("v_sqrt_f32 v187, v187")
    a("s_nop 0")
    a(f"v_mul_f32 v186, {1.015625!r}, v186")
    a(f"v_mul_f32 v187, {1.015625!r}, v187")
    a("v_max_f32 v189, v186, v187")
    a(f"v_cmp_nge_f32 vcc, {M_THRESH!r}, v189")
    Lfast = a.newlabel("A_fast")
    a(f"s_cbranch_vccz {Lfast}")
    a.c("fallback: true row max")
    a("v_mov_b32 v186, 0xff800000")
    a("v_mov_b32 v187, 0xff800000")
    a("s_mov_b32 s14, 0")
    Lmx = a.newlabel("A_mx")
    a.label(Lmx)
    a(f"buffer_load_dwordx4 {vr(KF[0],4)}, v3, s[60:63], s14 offen {SC1}")
    a("s_waitcnt vmcnt(0)")
    a(f"v_mfma_f32_32x32x16_bf16 {vr(SA,16)}, {vr(KF[0],4)}, {vr(QA,4)}, 0")
    a(f"v_mfma_f32_32x32x16_bf16 {vr(CB,16)}, {vr(KF[0],4)}, {vr(QB,4)}, 0")
    a("s_nop 15"); a("s_nop 7")
    for i in range(0, 16, 2):
        a(f"v_max3_f32 v186, v{SA+i}, v{SA+i+1}, v186")
        a(f"v_max3_f32 v187, v{CB+i}, v{CB+i+1}, v187")
    a("s_add_u32 s14, s14, 1024")
    a("s_cmp_lt_u32 s14, 65536")
    a(f"s_cbranch_scc1 {Lmx}")
    for v in (186, 187):
        a(f"v_mov_b32 v189, v{v}")
        a("s_nop 1")
        a(f"v_permlane32_swap_b32 v{v}, v189")
        a("s_nop 1")
        a(f"v_max_f32 v{v}, v{v}, v189")
    a.label(Lfast)
    for i in range(16):
        a(f"v_sub_f32 v{CA+i}, 0, v186"); a(f"v_sub_f32 v{CB+i}, 0, v187")
    a(f"ds_write_b128 v4, {vr(STG[0][0],4)}")
    a(f"ds_write_b128 v4, {vr(STG[0][1],4)} offset:4096")
    stage_load(2, 0)
    a("s_waitcnt lgkmcnt(0)")
    a("s_barrier")
    def lds_reads(t):
        slot = (t // 4) & 1; tt = t & 3; bf = t & 1
        a(f"ds_read_b128 {vr(KF[bf],4)}, v3 offset:{slot*8192 + tt*1024}")
        a("s_mov_b64 exec, s[68:69]")
        a(f"ds_read_b128 {vr(VF[bf][0],4)}, v5 offset:{slot*8192 + 4096 + tt*1024}")
        a(f"ds_read_b128 {vr(VF[bf][1],4)}, v5 offset:{slot*8192 + 4096 + tt*1024 + 512}")
        a("s_mov_b64 exec, -1")
    lds_reads(0)
    a("s_waitcnt lgkmcnt(0)")
    a(f"v_mfma_f32_32x32x16_bf16 {vr(SA,16)}, {vr(KF[0],4)}, {vr(QA,4)}, {vr(CA,16)}")
    a("s_nop 15")
    a("s_mov_b32 s70, 0")
    a("s_add_u32 s71, s12, 12288")
    Lloop = a.newlabel("A_loop")
    a.label(Lloop)
    for t in range(8):
        bf = t & 1; nb = bf ^ 1
        c = t // 4; tt = t & 3
        for i in range(32):
            if i == 1 and tt == 3:
                a("s_barrier")
            if i == 2:
                a(f"v_smfmac_f32_32x32x32_bf16 {vr(OB,16)}, {vr(VF[nb][1],4)}, {vr(SB+8,8)}, v{IDX}")
            if i == 5:
                lds_reads((t+1) % 8)
            if i == 9 and tt == 1:
                st = (c+1) & 1
                a("s_waitcnt vmcnt(2)")
                a(f"ds_write_b128 v4, {vr(STG[st][0],4)} offset:{st*8192}")
                a(f"ds_write_b128 v4, {vr(STG[st][1],4)} offset:{st*8192+4096}")
            if i == 14 and tt == 1:
                st = (c+1) & 1
                a(f"buffer_load_dwordx4 {vr(STG[st][0],4)}, v3, s[60:63], s71 offen {SC1}")
                a(f"buffer_load_dwordx4 {vr(STG[st][1],4)}, v3, s[64:67], s71 offen {SC1}")
                a("s_add_u32 s71, s71, 4096")
            if i == 7:
                a(f"v_mfma_f32_32x32x16_bf16 {vr(SB,16)}, {vr(KF[bf],4)}, {vr(QB,4)}, {vr(CB,16)}")
            if i == 12:
                a(f"v_smfmac_f32_32x32x32_bf16 {vr(OA,16)}, {vr(VF[bf][0],4)}, {vr(SA,8)}, v{IDX}")
            if i == 18:
                a(f"v_smfmac_f32_32x32x32_bf16 {vr(OA,16)}, {vr(VF[bf][1],4)}, {vr(SA+8,8)}, v{IDX}")
            if i == 22:
                a("s_waitcnt lgkmcnt(0)")
            if i == 23:
                a(f"v_mfma_f32_32x32x16_bf16 {vr(SA,16)}, {vr(KF[nb],4)}, {vr(QA,4)}, {vr(CA,16)}")
            if i == 28:
                a(f"v_smfmac_f32_32x32x32_bf16 {vr(OB,16)}, {vr(VF[bf][0],4)}, {vr(SB,8)}, v{IDX}")
            reg = SA + i if i < 16 else SB + i - 16
            a(f"v_exp_f32 v{reg}, v{reg}")
    a("s_add_u32 s70, s70, 1")
    a("s_cmp_lt_u32 s70, 8")
    a(f"s_cbranch_scc1 {Lloop}")
    a("s_nop 1")
    a(f"v_smfmac_f32_32x32x32_bf16 {vr(OB,16)}, {vr(VF[1][1],4)}, {vr(SB+8,8)}, v{IDX}")
    a("s_nop 15"); a("s_nop 7")
    a(f"v_rcp_f32 v186, v{OA+8}")
    a(f"v_rcp_f32 v187, v{OB+8}")
    a("s_nop 0")
    for j in range(8):
        a(f"v_mul_f32 v{OA+j}, v{OA+j}, v186"); a(f"v_mul_f32 v{OB+j}, v{OB+j}, v187")
    for j in range(4):
        a(f"v_cvt_pk_bf16_f32 v{SA+j}, v{OA+2*j}, v{OA+2*j+1}")
        a(f"v_cvt_pk_bf16_f32 v{SA+4+j}, v{OB+2*j}, v{OB+2*j+1}")
    a("s_lshl_b32 s13, s4, 1")
    a("s_add_u32 s13, s13, s7")
    a("s_lshl_b32 s13, s13, 5")
    a("s_lshl_b32 s14, s5, 2")
    a("s_add_u32 s13, s13, s14")
    a("s_lshl_b32 s14, s6, 1")
    a("s_add_u32 s13, s13, s14")
    a("s_lshl_b32 s13, s13, 10")
    a(f"buffer_store_dwordx4 {vr(SA,4)}, v3, s[56:59], s13 offen {SC1}")
    a(f"buffer_store_dwordx4 {vr(SA+4,4)}, v3, s[56:59], s13 offen offset:1024 {SC1}")
    if signal_o: signal_o(a)

GK1 = -2.0 * 0.7978845608028654 * 1.4426950408889634
GK2 = GK1 * 0.044715
def role_gu(a, SC1="", wait_stats=None, signal_h=None):
    a.c("==== GU role ====")
    srd(a, 40, S_X, 2048*1024)
    srd(a, 44, S_WG, 512*3584)
    srd(a, 48, S_WU, 512*3584)
    srd(a, 52, S_WS, WS_SMALL_END)
    srd(a, 56, S_WS, HF_BYTES, WS_HF)
    a("s_and_b32 s6, s3, 1")
    a("s_lshr_b32 s7, s3, 1")
    STG = 24576
    a("v_lshrrev_b32 v3, 2, v1")
    a("v_lshlrev_b32 v3, 10, v3")
    a("v_and_b32 v4, 3, v1")
    a("v_lshrrev_b32 v5, 4, v1")
    a("v_xor_b32 v5, v4, v5")
    a("v_lshl_add_u32 v8, v5, 4, v3")
    a("v_lshrrev_b32 v5, 4, v1")
    a("v_mul_u32_u24 v9, 3584, v5")
    a("v_bfe_u32 v3, v1, 2, 2")
    a("v_xor_b32 v3, v3, v5")
    a("v_lshl_add_u32 v9, v3, 6, v9")
    a("v_lshl_add_u32 v9, v4, 4, v9")
    a("s_lshl_b32 s8, s4, 7")
    a("s_lshl_b32 s9, s3, 5")
    a("s_add_u32 s8, s8, s9")
    a("s_lshl_b32 s8, s8, 10")
    a(f"s_mul_i32 s9, s3, {8*3584}")
    a("s_lshl_b32 s10, s5, 8")
    a("s_add_u32 s9, s9, s10")
    a("s_lshl_b32 s10, s3, 11")
    def dma(stage_s, xo, wo):
        for i in range(2):
            a(f"s_add_u32 m0, s{stage_s}, {i*1024}")
            a(f"s_add_u32 s14, s{xo}, {i*16*1024}")
            a("buffer_load_dwordx4 v8, s[40:43], s14 offen lds")
        for g in range(2):
            for i in range(2):
                a(f"s_add_u32 m0, s{stage_s}, {8192 + g*8192 + i*1024}")
                a(f"s_add_u32 s14, s{wo}, {i*4*3584}")
                a(f"buffer_load_dwordx4 v9, s[{44+4*g}:{47+4*g}], s14 offen lds")
    a("s_mov_b32 s11, s10"); a("s_mov_b32 s12, s8"); a("s_mov_b32 s13, s9")
    dma(11, 12, 13)
    a(f"s_add_u32 s11, s10, {STG}"); a("s_add_u32 s12, s8, 64"); a(f"s_add_u32 s13, s9, {32*3584}")
    dma(11, 12, 13)
    a("s_add_u32 s12, s8, 128"); a(f"s_add_u32 s13, s9, {64*3584}")
    a("v_and_b32 v6, 31, v1")
    a("v_lshrrev_b32 v7, 5, v1")
    a("v_bfe_u32 v10, v1, 2, 2")
    a("v_xor_b32 v10, v10, v7")
    a("v_lshlrev_b32 v10, 4, v10")
    a("v_lshl_add_u32 v10, v6, 6, v10")
    a("s_lshl_b32 s14, s6, 12")
    a("v_add_u32 v10, s14, v10")
    a("v_xor_b32 v11, 32, v10")
    a("v_bfe_u32 v2, v1, 2, 2")
    a("v_lshl_add_u32 v12, v7, 3, v2")
    a("v_lshlrev_b32 v12, 8, v12")
    a("s_lshl_b32 s14, s7, 1")
    a("v_xor_b32 v2, s14, v2")
    a("v_lshl_add_u32 v12, v2, 6, v12")
    a("v_bfe_u32 v2, v1, 4, 1")
    a("v_lshl_add_u32 v12, v2, 5, v12")
    a("v_and_b32 v2, 3, v1")
    a("v_lshl_add_u32 v12, v2, 3, v12")
    a("v_add_u32 v12, 8192, v12")
    a("v_xor_b32 v13, 64, v12")
    ACC = 128
    def acc(mt, ft, g): return ACC + ((mt*2+ft)*2+g)*16
    for i in range(128): a(f"v_mov_b32 v{ACC+i}, 0")
    XF = lambda b, mt: 64 + (b*2+mt)*4
    WF = lambda b, ft, g: 80 + ((b*2+ft)*2+g)*4
    a("s_mov_b32 s15, 0")
    a(f"s_mov_b32 s64, {2*STG}")
    def reads(s, b):
        for mt in range(2):
            a(f"ds_read_b128 {vr(XF(b,mt),4)}, v{14+s} offset:{mt*2048}")
        for ft in range(2):
            for g in range(2):
                a(f"ds_read_b64_tr_b16 {vr(WF(b,ft,g),2)}, v{16+ft} offset:{g*8192 + (16*s)*256}")
                a(f"ds_read_b64_tr_b16 {vr(WF(b,ft,g)+2,2)}, v{16+ft} offset:{g*8192 + (16*s+4)*256}")
    def mfmas(b):
        for ft in range(2):
            for g in range(2):
                for mt in range(2):
                    a(f"v_mfma_f32_32x32x16_bf16 {vr(acc(mt,ft,g),16)}, {vr(WF(b,ft,g),4)}, {vr(XF(b,mt),4)}, {vr(acc(mt,ft,g),16)}")
    def chunk(with_dma, vm):
        a(f"s_waitcnt vmcnt({vm})")
        a("s_barrier")
        for i in range(4): a(f"v_add_u32 v{14+i}, s15, v{10+i}")
        reads(0, 0)
        if with_dma:
            a("s_add_u32 s11, s64, s10")
            dma(11, 12, 13)
            a("s_add_u32 s12, s12, 64"); a(f"s_add_u32 s13, s13, {32*3584}")
            a(f"s_add_u32 s64, s64, {STG}")
            a(f"s_cmp_eq_u32 s64, {3*STG}")
            a("s_cselect_b32 s64, 0, s64")
        a("s_waitcnt lgkmcnt(0)")
        reads(1, 1)
        mfmas(0)
        a("s_waitcnt lgkmcnt(0)")
        mfmas(1)
        a(f"s_add_u32 s15, s15, {STG}")
        a(f"s_cmp_eq_u32 s15, {3*STG}")
        a("s_cselect_b32 s15, 0, s15")
    a("s_mov_b32 s65, 0")
    Lloop = a.newlabel("GU_loop")
    a.label(Lloop)
    chunk(True, 6)
    a("s_add_u32 s65, s65, 1")
    a("s_cmp_lt_u32 s65, 14")
    a(f"s_cbranch_scc1 {Lloop}")
    chunk(False, 6)
    chunk(False, 0)
    if wait_stats: wait_stats(a)
    a("s_lshl_b32 s8, s4, 7")
    a("s_lshl_b32 s9, s6, 6")
    a("s_add_u32 s8, s8, s9")
    a("v_add_u32 v2, s8, v6")
    a("v_lshlrev_b32 v2, 2, v2")
    a(f"s_mov_b32 s9, {WS_ST}")
    a(f"s_mov_b32 s10, {WS_ST+8192}")
    for mt in range(2):
        a(f"buffer_load_dword v{8+mt}, v2, s[52:55], s9 offen offset:{mt*128} {SC1}")
        a(f"buffer_load_dword v{10+mt}, v2, s[52:55], s10 offen offset:{mt*128} {SC1}")
    a("s_lshl_b32 s8, s5, 9")
    a("s_lshl_b32 s9, s7, 8")
    a("s_add_u32 s8, s8, s9")
    a(f"s_add_u32 s8, s8, {WS_CS}")
    a(f"s_add_u32 s9, s8, {1792*4}")
    a("v_lshlrev_b32 v2, 4, v7")
    CS = lambda ft, g: 64 + (ft*2+g)*16
    for ft in range(2):
        for g in range(2):
            for q in range(4):
                a(f"buffer_load_dwordx4 {vr(CS(ft,g)+4*q,4)}, v2, s[52:55], s{8+g} offen offset:{ft*128 + q*32} {SC1}")
    a("v_lshlrev_b32 v3, 4, v1")
    a("s_lshl_b32 s8, s4, 2")
    a("s_lshl_b32 s9, s6, 1")
    a("s_add_u32 s8, s8, s9")
    a("s_mul_i32 s8, s8, 112")
    a("s_lshl_b32 s9, s5, 3")
    a("s_add_u32 s8, s8, s9")
    a("s_lshl_b32 s9, s7, 2")
    a("s_add_u32 s8, s8, s9")
    a("s_lshl_b32 s8, s8, 10")
    a(f"v_mov_b32 v12, {GK1!r}")
    a(f"v_mov_b32 v13, {GK2!r}")
    a("s_waitcnt vmcnt(0)")
    T = 16
    for mt in range(2):
        for ft in range(2):
            G, U = acc(mt,ft,0), acc(mt,ft,1)
            for r in range(16):
                t = T + (r % 4) * 4
                a(f"v_mul_f32 v{t}, v{10+mt}, v{CS(ft,0)+r}")
                a(f"v_mul_f32 v{t+1}, v{10+mt}, v{CS(ft,1)+r}")
                a(f"v_fma_f32 v{G+r}, v{G+r}, v{8+mt}, v{t}")
                a(f"v_fma_f32 v{U+r}, v{U+r}, v{8+mt}, v{t+1}")
                a(f"v_mul_f32 v{t}, v{G+r}, v{G+r}")
                a(f"v_fma_f32 v{t}, v{t}, v13, v12")
                a(f"v_mul_f32 v{t}, v{t}, v{G+r}")
                a(f"v_exp_f32 v{t}, v{t}")
                a(f"v_mul_f32 v{U+r}, v{U+r}, v{G+r}")
                a(f"v_add_f32 v{t}, 1.0, v{t}")
                a(f"v_rcp_f32 v{t}, v{t}")
                a("s_nop 0")
                a(f"v_mul_f32 v{U+r}, v{U+r}, v{t}")
            for j in range(8): a(f"v_cvt_pk_bf16_f32 v{G+j}, v{U+2*j}, v{U+2*j+1}")
            a(f"s_add_u32 s9, s8, {(mt*112 + 2*ft)*1024}")
            a(f"buffer_store_dwordx4 {vr(G,4)}, v3, s[56:59], s9 offen {SC1}")
            a(f"buffer_store_dwordx4 {vr(G+4,4)}, v3, s[56:59], s9 offen offset:1024 {SC1}")
    if signal_h: signal_h(a)

def role_fin(a, SC1="", wait_h=None, wait_o=None):
    a.c("==== FIN role ====")
    srd(a, 40, S_WD, 1792*1024)
    srd(a, 44, S_WO, 512*1024)
    srd(a, 48, S_X, 2048*1024)
    srd(a, 52, S_OUT, 2048*1024)
    srd(a, 56, S_WS, HF_BYTES, WS_HF)
    srd(a, 60, S_WS, OF_BYTES, WS_OF)
    P = 6
    NS = 8
    a("v_lshrrev_b32 v3, 3, v1")
    a("v_lshlrev_b32 v3, 10, v3")
    a("v_bfe_u32 v4, v1, 2, 1")
    a("v_bfe_u32 v5, v1, 4, 1")
    a("v_xor_b32 v4, v4, v5")
    a("v_lshl_add_u32 v8, v4, 6, v3")
    a("v_and_b32 v4, 3, v1")
    a("v_lshl_add_u32 v8, v4, 4, v8")
    a("v_lshlrev_b32 v9, 4, v1")
    a("s_lshl_b32 s6, s3, 14")
    a("v_lshrrev_b32 v7, 5, v1")
    a("v_and_b32 v6, 31, v1")
    a("v_bfe_u32 v2, v1, 2, 2")
    a("v_lshl_add_u32 v10, v7, 2, v2")
    a("v_lshlrev_b32 v10, 7, v10")
    a("v_lshrrev_b32 v2, 1, v2")
    a("v_lshl_add_u32 v10, v2, 6, v10")
    a("v_and_b32 v2, 1, v1")
    a("v_lshl_add_u32 v10, v2, 5, v10")
    a("v_bfe_u32 v2, v1, 4, 1")
    a("v_lshl_add_u32 v10, v2, 4, v10")
    a("v_bfe_u32 v2, v1, 1, 1")
    a("v_lshl_add_u32 v10, v2, 3, v10")
    a("v_add_u32 v10, s6, v10")
    a("v_xor_b32 v11, 64, v10")
    ACC = 192
    acc = lambda mt, nt: ACC + (mt*2+nt)*16
    for i in range(64): a(f"v_mov_b32 v{ACC+i}, 0")
    HB = lambda p, mt: 64 + (p*2+mt)*4
    WF = lambda b, nt: 48 + (b*2+nt)*4
    a("s_and_b32 s7, s3, 1")
    a("s_lshr_b32 s8, s3, 1")
    a("s_lshl_b32 s9, s4, 6")
    a("s_lshl_b32 s10, s7, 5")
    a("s_add_u32 s9, s9, s10")
    a("v_add_u32 v12, s9, v6")
    a("v_lshlrev_b32 v12, 10, v12")
    a("v_lshl_add_u32 v12, v7, 5, v12")
    a("s_lshl_b32 s9, s5, 7")
    a("s_lshl_b32 s10, s8, 6")
    a("s_add_u32 s9, s9, s10")
    a("v_add_u32 v12, s9, v12")
    a("buffer_load_dwordx4 v[16:19], v12, s[48:51], 0 offen")
    a("buffer_load_dwordx4 v[20:23], v12, s[48:51], 0 offen offset:16")
    if wait_h: wait_h(a)
    a("s_lshl_b32 s11, s4, 1")
    a("s_mul_i32 s11, s11, 112")
    a("s_mul_i32 s12, s3, 28")
    a("s_add_u32 s11, s11, s12")
    a("s_lshl_b32 s11, s11, 10")
    a("s_lshl_b32 s12, s12, 14")
    a("s_lshl_b32 s13, s5, 7")
    a("s_add_u32 s12, s12, s13")
    def issue(i, hsrd, wsrd, hoff, woff, hstride):
        slot = i % NS
        for q in range(2):
            a(f"s_add_u32 m0, s6, {slot*2048 + q*1024}")
            a(f"s_add_u32 s14, s{woff}, {(i*16 + q*8)*1024}")
            a(f"buffer_load_dwordx4 v8, s[{wsrd}:{wsrd+3}], s14 offen lds")
    def issue_h(i, hsrd, hoff, hstride, sc):
        for mt in range(2):
            a(f"s_add_u32 s14, s{hoff}, {i*1024 + mt*hstride*1024}")
            a(f"buffer_load_dwordx4 {vr(HB(i%8,mt),4)}, v9, s[{hsrd}:{hsrd+3}], s14 offen {sc}")
    def trreads(i, b):
        slot = i % NS
        for nt in range(2):
            a(f"ds_read_b64_tr_b16 {vr(WF(b,nt),2)}, v{10+nt} offset:{slot*2048}")
            a(f"ds_read_b64_tr_b16 {vr(WF(b,nt)+2,2)}, v{10+nt} offset:{slot*2048 + 8*128}")
    def mfmas(i, b):
        for nt in range(2):
            for mt in range(2):
                a(f"v_mfma_f32_32x32x16_bf16 {vr(acc(mt,nt),16)}, {vr(WF(b,nt),4)}, {vr(HB(i%8,mt),4)}, {vr(acc(mt,nt),16)}")
    NK = 28
    for i in range(P):
        issue(i, 56, 40, 11, 12, 112); issue_h(i, 56, 11, 112, SC1)
    a(f"s_waitcnt vmcnt({4*(P-1)})")
    trreads(0, 0)
    for i in range(NK):
        b = i & 1
        if i + P < NK:
            issue(i+P, 56, 40, 11, 12, 112); issue_h(i+P, 56, 11, 112, SC1)
        if i + 1 < NK:
            last_issued = min(NK-1, i+P)
            a(f"s_waitcnt vmcnt({4*(last_issued-(i+1))})")
            trreads(i+1, b^1)
            a("s_waitcnt lgkmcnt(4)")
        else:
            a("s_waitcnt lgkmcnt(0)")
        mfmas(i, b)
    a("s_lshl_b32 s12, s3, 17")
    a("s_add_u32 s12, s12, s13")
    for i in range(8): issue(i, 60, 44, 11, 12, 32)
    if wait_o: wait_o(a)
    a("s_lshl_b32 s11, s4, 6")
    a("s_lshl_b32 s14, s3, 3")
    a("s_add_u32 s11, s11, s14")
    a("s_lshl_b32 s11, s11, 10")
    for i in range(8): issue_h(i, 60, 11, 32, SC1)
    a("s_waitcnt vmcnt(14)")
    trreads(0, 0)
    for i in range(8):
        b = i & 1
        if i + 1 < 8:
            trreads(i+1, b^1)
            a(f"s_waitcnt vmcnt({2*(7-i)}) lgkmcnt(4)")
        else:
            a("s_waitcnt vmcnt(0) lgkmcnt(0)")
        mfmas(i, b)
    a("s_barrier")
    a("s_nop 7"); a("s_nop 7")
    a("v_add_u32 v13, s6, v9")
    Ls = [a.newlabel("F_own") for _ in range(4)]
    for tl in range(4):
        a(f"s_cmp_eq_u32 s3, {tl}")
        a(f"s_cbranch_scc1 {Ls[tl]}")
        mt, nt = tl & 1, tl >> 1
        for q in range(4): a(f"ds_write_b128 v13, {vr(acc(mt,nt)+4*q,4)} offset:{tl*4096 + q*1024}")
        a.label(Ls[tl])
    a("s_waitcnt lgkmcnt(0)")
    a("s_barrier")
    Lm = [a.newlabel("F_mv") for _ in range(4)]; Ldone = a.newlabel("F_mvd")
    for tl in range(4):
        a(f"s_cmp_lg_u32 s3, {tl}")
        a(f"s_cbranch_scc1 {Lm[tl]}")
        mt, nt = tl & 1, tl >> 1
        for i in range(16): a(f"v_mov_b32 v{24+i}, v{acc(mt,nt)+i}")
        a(f"s_branch {Ldone}")
        a.label(Lm[tl])
    a.label(Ldone)
    a("s_lshl_b32 s14, s3, 12")
    a("v_add_u32 v13, s14, v9")
    for k in range(1, 4):
        a(f"s_add_u32 s15, s3, {k}")
        a("s_and_b32 s15, s15, 3")
        a("s_lshl_b32 s15, s15, 14")
        a("v_add_u32 v14, s15, v13")
        for q in range(4): a(f"ds_read_b128 {vr(64+16*(k-1)+4*q,4)}, v14 offset:{q*1024}")
    a("s_waitcnt lgkmcnt(0)")
    for k in range(3):
        for i in range(16): a(f"v_add_f32 v{24+i}, v{24+i}, v{64+16*k+i}")
    for j in range(8):
        a(f"v_lshlrev_b32 v40, 16, v{16+j}")
        a(f"v_and_b32 v41, 0xffff0000, v{16+j}")
        a(f"v_add_f32 v{24+2*j}, v{24+2*j}, v40")
        a(f"v_add_f32 v{24+2*j+1}, v{24+2*j+1}, v41")
    for j in range(8): a(f"v_cvt_pk_bf16_f32 v{64+j}, v{24+2*j}, v{24+2*j+1}")
    a("buffer_store_dwordx4 v[64:67], v12, s[52:55], 0 offen")
    a("buffer_store_dwordx4 v[68:71], v12, s[52:55], 0 offen offset:16")

def kd(name, vgpr=256, sgpr=96):
    return f"""
.section .rodata,"a"
.p2align 6
.amdhsa_kernel {name}
  .amdhsa_next_free_vgpr {vgpr}
  .amdhsa_next_free_sgpr {sgpr}
  .amdhsa_accum_offset {vgpr}
  .amdhsa_group_segment_fixed_size 0
  .amdhsa_kernarg_size 96
  .amdhsa_user_sgpr_count 2
  .amdhsa_user_sgpr_kernarg_segment_ptr 1
  .amdhsa_system_sgpr_workgroup_id_x 1
.end_amdhsa_kernel
"""
def khead(name):
    return f""".text
.globl {name}
.p2align 8
.type {name},@function
{name}:
"""

HEADER = open(f"cdna_kernels/{NAME}.s.ref").read().split("; Override")[0]

def map_attn_ids(a, idreg):
    a(f"s_and_b32 s4, s{idreg}, 7")
    a("s_lshl_b32 s4, s4, 2")
    a(f"s_lshr_b32 s5, s{idreg}, 3")
    a("s_and_b32 s6, s5, 3")
    a("s_add_u32 s4, s4, s6")
    a("s_lshr_b32 s5, s5, 2")
def map_gu_ids(a, idreg):
    a(f"s_and_b32 s6, s{idreg}, 7")
    a(f"s_lshr_b32 s7, s{idreg}, 3")
    a("s_lshr_b32 s4, s6, 1")
    a("s_lshl_b32 s4, s4, 2")
    a("s_and_b32 s8, s7, 3")
    a("s_add_u32 s4, s4, s8")
    a("s_and_b32 s5, s6, 1")
    a("s_mul_i32 s5, s5, 7")
    a("s_lshr_b32 s7, s7, 2")
    a("s_add_u32 s5, s5, s7")

def build_multi():
    out = HEADER
    out += "; @launch kernel=pre_kernel grid=(64,1,1) block=(256,1,1) lds=81920\n"
    out += "; @launch kernel=mid_kernel grid=(480,1,1) block=(256,1,1) lds=81920\n"
    out += "; @launch kernel=fin_kernel grid=(256,1,1) block=(256,1,1) lds=81920\n"
    out += '.amdgcn_target "amdgcn-amd-amdhsa--gfx950"\n'
    a = Asm()
    a("s_cmp_ge_u32 s2, 64"); a("s_cbranch_scc1 PRE_end")
    prologue(a); a("s_mov_b32 s4, s2")
    role_kv(a); role_colsum(a)
    a.label("PRE_end"); a("s_endpgm")
    out += khead("pre_kernel") + a.text() + kd("pre_kernel")
    a = Asm(); a._lbl = 1000
    a("s_cmp_ge_u32 s2, 480"); a("s_cbranch_scc1 MID_end")
    prologue(a)
    a("s_cmp_ge_u32 s2, 256"); a("s_cbranch_scc1 MID_gu")
    map_attn_ids(a, 2)
    role_attn(a)
    a("s_branch MID_end")
    a.label("MID_gu")
    a("s_sub_u32 s9, s2, 256")
    map_gu_ids(a, 9)
    role_gu(a)
    a.label("MID_end"); a("s_endpgm")
    out += khead("mid_kernel") + a.text() + kd("mid_kernel")
    a = Asm(); a._lbl = 2000
    a("s_cmp_ge_u32 s2, 256"); a("s_cbranch_scc1 FIN_end")
    prologue(a)
    map_attn_ids(a, 2)
    role_fin(a)
    a.label("FIN_end"); a("s_endpgm")
    out += khead("fin_kernel") + a.text() + kd("fin_kernel")
    return out

if __name__ == "__main__":
    mode = sys.argv[1] if len(sys.argv) > 1 else "multi"
    dst = sys.argv[2] if len(sys.argv) > 2 else f"cdna_kernels/{NAME}.s"
    txt = build_multi()
    open(dst, "w").write(txt)
    print("wrote", dst, len(txt))
```

```python
import sys, math
from asmlib import Asm, vr, sr

NAME = "parallel_sum__grouped_kv_mqa__glu_gated_geglu__prompt"
WS_KF = 0x0; WS_VF = 0x10000; WS_ST = 0x20000; WS_KM = 0x24000; WS_CS = 0x25000
WS_FKV = 0x30000
WS_FCS = 0x31000
WS_FH  = 0x32000
WS_FO  = 0x33000
WS_SMALL_END = 0x40000
WS_HF = 0x100000; WS_OF = 0x800000
HF_BYTES = 64*112*1024; OF_BYTES = 64*32*1024
WS_PROF = 0xC00000
S_X, S_WQ, S_WK, S_WV, S_WO, S_BX, S_WG, S_WU, S_WD, S_OUT, S_DBG, S_WS = 16,18,20,22,24,26,28,30,32,34,36,38
ONES_BF16 = 0x3F803F80
SC = "sc1"
PROF = 0; ATT_ITERS = 16; SKIP_GU = 0; SKIP_FIN = 0; SPIN_MAX = 200000; TOUCH = 1
PRIO_A = 1; PRIO_G = 0; PRIO_F = 0; PRIO_KV = 3
ID_A, ID_G, ID_F, ID_END = 64, 320, 544, 800

def prologue(a):
    a("""
    s_load_dwordx16 s[16:31], s[0:1], 0
    s_load_dwordx8 s[32:39], s[0:1], 64
    v_and_b32 v1, 63, v0
    v_lshrrev_b32 v2, 6, v0
    s_nop 0
    v_readfirstlane_b32 s3, v2
    s_waitcnt lgkmcnt(0)
    """)
def srd(a, d, ptr, nbytes, off=0):
    if off:
        a(f"s_add_u32 s{d}, s{ptr}, {off}")
        a(f"s_addc_u32 s{d+1}, s{ptr+1}, 0")
        a(f"s_and_b32 s{d+1}, s{d+1}, 0xffff")
    else:
        a(f"s_mov_b32 s{d}, s{ptr}")
        a(f"s_and_b32 s{d+1}, s{ptr+1}, 0xffff")
    a(f"s_mov_b32 s{d+2}, {nbytes}")
    a(f"s_mov_b32 s{d+3}, 0x00020000")

def stamp(a, idx):
    if not PROF: return
    a("s_memtime s[78:79]"); a("s_waitcnt lgkmcnt(0)"); a(f"s_mov_b32 s{80+idx}, s78")
def stamp_init(a):
    if not PROF: return
    a("s_memrealtime s[78:79]"); a("s_waitcnt lgkmcnt(0)"); a("s_mov_b32 s95, s78")
    for i in range(80, 95): a(f"s_mov_b32 s{i}, 0")
def stamp_flush(a):
    if not PROF: return
    L = a.newlabel("PF")
    a("s_cmp_lg_u32 s3, 0"); a(f"s_cbranch_scc1 {L}")
    a("s_memrealtime s[78:79]"); a("s_waitcnt lgkmcnt(0)"); a("s_mov_b32 s94, s78")
    srd(a, 72, S_WS, 0x100000, WS_PROF)
    a("s_lshl_b32 s76, s2, 6")
    a("v_mov_b32 v250, 0")
    set_exec(a, 1)
    for i in range(16):
        a(f"v_mov_b32 v251, s{80+i}")
        a(f"buffer_store_dword v251, v250, s[72:75], s76 offen offset:{4*i}")
    a("s_mov_b64 exec, -1")
    a.label(L)

def set_exec(a, m):
    if m == (1 << 64) - 1: a("s_mov_b64 exec, -1"); return
    a(f"s_mov_b32 exec_lo, {m & 0xffffffff:#x}"); a(f"s_mov_b32 exec_hi, {m >> 32:#x}")
def dpp_wave_max(a, v):
    for mod in ("quad_perm:[1,0,3,2] row_mask:0xf bank_mask:0xf", "quad_perm:[2,3,0,1] row_mask:0xf bank_mask:0xf",
                "row_half_mirror row_mask:0xf bank_mask:0xf", "row_mirror row_mask:0xf bank_mask:0xf",
                "row_bcast:15 row_mask:0xa bank_mask:0xf", "row_bcast:31 row_mask:0xc bank_mask:0xf"):
        a("s_nop 1")
        a(f"v_max_f32_dpp v{v}, v{v}, v{v} {mod}")
def half_sum(a, v, t, op="v_add_f32"):
    a(f"v_mov_b32 v{t}, v{v}"); a("s_nop 1")
    a(f"v_permlane32_swap_b32 v{v}, v{t}"); a("s_nop 1")
    a(f"{op} v{v}, v{v}, v{t}")

def write_tag(a):
    L = a.newlabel("TAGW")
    a("s_or_b32 s76, s2, s3")
    a("s_cmp_lg_u32 s76, 0"); a(f"s_cbranch_scc1 {L}")
    a("s_memrealtime s[76:77]"); a("s_waitcnt lgkmcnt(0)")
    a("s_or_b32 s76, s76, 1")
    a("v_mov_b32 v2, 0"); a("v_mov_b32 v3, s76")
    set_exec(a, 1)
    a(f"global_store_dword v2, v3, s[{S_DBG}:{S_DBG+1}] sc0 sc1")
    a("s_mov_b64 exec, -1")
    a.label(L)
def get_tag(a):
    L = a.newlabel("TAG"); Ld = a.newlabel("TAGD")
    a("v_mov_b32 v2, 0")
    a(f"global_load_dword v3, v2, s[{S_DBG}:{S_DBG+1}]")
    a("s_waitcnt vmcnt(0)")
    a("v_readfirstlane_b32 s74, v3")
    a("s_cmp_lg_u32 s74, 0"); a(f"s_cbranch_scc1 {Ld}")
    a("s_mov_b32 s75, 0")
    a.label(L)
    a("s_sleep 4")
    a(f"global_load_dword v3, v2, s[{S_DBG}:{S_DBG+1}] sc0 sc1")
    a("s_waitcnt vmcnt(0)")
    a("v_readfirstlane_b32 s74, v3")
    a("s_cmp_lg_u32 s74, 0"); a(f"s_cbranch_scc1 {Ld}")
    a("s_add_u32 s75, s75, 1"); a(f"s_cmp_lt_u32 s75, {SPIN_MAX}"); a(f"s_cbranch_scc1 {L}")
    a.label(Ld)
def signal(a, off_sreg, ncopies, stride, have_tag=False):
    a("s_waitcnt vmcnt(0)")
    a("s_barrier")
    L = a.newlabel("SIG")
    a("s_cmp_lg_u32 s3, 0"); a(f"s_cbranch_scc1 {L}")
    if not have_tag: get_tag(a)
    a(f"v_mul_u32_u24 v2, {stride}, v1")
    a("v_mov_b32 v3, s74")
    set_exec(a, (1<<ncopies)-1)
    a(f"buffer_store_dword v3, v2, s[52:55], {off_sreg} offen sc0 sc1")
    a("s_mov_b64 exec, -1")
    a.label(L)
def poll(a, off_sreg, n, sleep=2):
    L = a.newlabel("POLL"); Ld = a.newlabel("POLLD")
    a("v_lshlrev_b32 v2, 2, v1")
    a("s_mov_b32 s75, 0")
    if n < 64: set_exec(a, (1<<n)-1)
    a.label(L)
    a(f"buffer_load_dword v3, v2, s[52:55], {off_sreg} offen sc0 sc1")
    a("s_waitcnt vmcnt(0)")
    a("v_cmp_ne_u32 vcc, s74, v3")
    a(f"s_cbranch_vccz {Ld}")
    a(f"s_sleep {sleep}")
    a("s_add_u32 s75, s75, 1"); a(f"s_cmp_lt_u32 s75, {SPIN_MAX}"); a(f"s_cbranch_scc1 {L}")
    a.label(Ld)
    a("s_mov_b64 exec, -1")
def wg_wait(a, waits, have_tag=False, pre=None):
    L = a.newlabel("WGW")
    a("s_cmp_lg_u32 s3, 0"); a(f"s_cbranch_scc1 {L}")
    if not have_tag: get_tag(a)
    if pre: pre(a)
    for off, n in waits: poll(a, off, n)
    a.label(L)
    a("s_barrier")

def role_kv(a):
    a.c("==== KV role ====")
    stamp(a, 0)
    SCR, L_X, L_WK, L_WV = 0, 12288, 45056, 61568
    ACCX, SX, SXX, SW, FIN, CSF = SCR, SCR+8192, SCR+8704, SCR+9216, SCR+9728, SCR+10240
    srd(a, 40, S_X, 2048*1024)
    a("v_lshlrev_b32 v3, 4, v1")
    a("s_and_b32 s5, s3, 1"); a("s_lshl_b32 s5, s5, 7")
    a("v_xor_b32 v4, s5, v3")
    a("s_lshl_b32 s6, s4, 5"); a("s_lshl_b32 s7, s3, 3"); a("s_add_u32 s6, s6, s7")
    a("s_lshl_b32 s6, s6, 10"); a("s_lshl_b32 s7, s7, 10")
    for i in range(8):
        a(f"s_add_u32 m0, s7, {L_X + i*1024}")
        a(f"v_xor_b32 v5, {i<<4}, v4")
        a(f"s_add_u32 s8, s6, {i*1024}")
        a("buffer_load_dwordx4 v5, s[40:43], s8 offen lds")
    srd(a, 44, S_WK, 16384)
    srd(a, 48, S_WV, 16384)
    a("s_lshl_b32 s9, s3, 12")
    for i in range(4):
        a(f"s_add_u32 m0, s9, {L_WK + i*1024}")
        a(f"s_add_u32 s8, s9, {i*1024}")
        a("buffer_load_dwordx4 v3, s[44:47], s8 offen lds")
    for i in range(4):
        a(f"s_add_u32 m0, s9, {L_WV + i*1024}")
        a(f"s_add_u32 s8, s9, {i*1024}")
        a("buffer_load_dwordx4 v3, s[48:51], s8 offen lds")
    srd(a, 52, S_WS, WS_SMALL_END)
    write_tag(a)
    a("v_and_b32 v6, 31, v1"); a("v_lshrrev_b32 v7, 5, v1")
    a("s_lshr_b32 s10, s3, 1"); a("s_and_b32 s11, s3, 1")
    a("v_and_b32 v8, 15, v1"); a("v_xor_b32 v8, v8, v7"); a("v_lshlrev_b32 v8, 4, v8")
    a("v_lshl_add_u32 v8, v6, 10, v8")
    a("s_lshl_b32 s12, s10, 9"); a(f"s_add_u32 s12, s12, {L_X}")
    a("v_add_u32 v8, s12, v8")
    a("v_bfe_u32 v9, v1, 4, 1"); a(f"v_mul_u32_u24 v9, {L_WV - L_WK}, v9")
    a("v_bfe_u32 v10, v1, 2, 2"); a("v_lshl_add_u32 v10, v7, 3, v10"); a("v_lshlrev_b32 v10, 5, v10")
    a("v_add_u32 v9, v9, v10"); a("v_and_b32 v10, 3, v1"); a("v_lshl_add_u32 v9, v10, 3, v9")
    a("s_lshl_b32 s12, s10, 13"); a(f"s_add_u32 s12, s12, {L_WK}")
    a("v_add_u32 v9, s12, v9")
    ACC = 16
    for i in range(16): a(f"v_mov_b32 v{ACC+i}, 0")
    for i in (11, 12, 120, 121, 122, 123): a(f"v_mov_b32 v{i}, 0")
    a(f"v_mov_b32 v13, {ONES_BF16:#x}")
    for k in range(8): a(f"v_xor_b32 v{48+k}, {k<<5}, v8")
    a("s_waitcnt vmcnt(0)")
    a("s_barrier")
    stamp(a, 1)
    FR = 128
    XF = lambda s: FR + 8*(s & 3); WF = lambda s: FR + 8*(s & 3) + 4
    def reads(s):
        a(f"ds_read_b128 {vr(XF(s),4)}, v{48+(s&7)} offset:{(s>>3)*256}")
        a(f"ds_read_b64_tr_b16 {vr(WF(s),2)}, v9 offset:{(16*s)*32}")
        a(f"ds_read_b64_tr_b16 {vr(WF(s)+2,2)}, v9 offset:{(16*s+4)*32}")
    Lo1, Ljoin = a.newlabel("KV_o1"), a.newlabel("KV_join")
    a("s_cmp_eq_u32 s11, 1"); a(f"s_cbranch_scc1 {Lo1}")
    for o in range(2):
        if o == 1: a.label(Lo1)
        for s in range(3): reads(s)
        for s in range(16):
            if s + 3 < 16: reads(s+3)
            a(f"s_waitcnt lgkmcnt({3*min(3, 15-s)})")
            x, w = XF(s), WF(s)
            if o == 0:
                a(f"v_mfma_f32_32x32x16_bf16 {vr(ACC,16)}, {vr(w,4)}, {vr(x,4)}, {vr(ACC,16)}")
                for r in range(4):
                    s1, s2 = ((11, 12), (120, 121))[r & 1]
                    a(f"v_dot2_f32_bf16 v{s1}, v{x+r}, v13, v{s1}")
                    a(f"v_dot2_f32_bf16 v{s2}, v{x+r}, v{x+r}, v{s2}")
            else:
                a(f"v_mfma_f32_32x32x16_bf16 {vr(ACC,16)}, {vr(x,4)}, {vr(w,4)}, {vr(ACC,16)}")
                for r in range(4):
                    s1 = (11, 120, 122, 123)[r]
                    a(f"v_dot2_f32_bf16 v{s1}, v{w+r}, v13, v{s1}")
        if o == 0: a(f"s_branch {Ljoin}")
    a.label(Ljoin)
    stamp(a, 2)
    a("s_nop 3")
    a("v_add_f32 v11, v11, v120"); a("v_add_f32 v12, v12, v121"); a("v_add_f32 v122, v122, v123"); a("v_add_f32 v11, v11, v122")
    a("v_lshlrev_b32 v14, 2, v1"); a("s_lshl_b32 s12, s10, 8"); a("v_add_u32 v15, s12, v14")
    Lw1, Lw2 = a.newlabel("KV_w1"), a.newlabel("KV_w2")
    a("s_cmp_eq_u32 s11, 1"); a(f"s_cbranch_scc1 {Lw1}")
    a(f"ds_write_b32 v15, v11 offset:{SX}"); a(f"ds_write_b32 v15, v12 offset:{SXX}")
    a(f"s_branch {Lw2}")
    a.label(Lw1)
    a(f"ds_write_b32 v15, v11 offset:{SW}")
    a.label(Lw2)
    a("s_nop 7")
    Lna = a.newlabel("KV_na")
    a("v_lshlrev_b32 v14, 4, v1"); a("s_lshl_b32 s12, s11, 12"); a("v_add_u32 v14, s12, v14")
    a("s_cmp_eq_u32 s10, 0"); a(f"s_cbranch_scc1 {Lna}")
    for q in range(4): a(f"ds_write_b128 v14, {vr(ACC+4*q,4)} offset:{ACCX + q*1024}")
    a.label(Lna)
    a("s_waitcnt lgkmcnt(0)")
    a("s_barrier")
    Lfin_end = a.newlabel("KV_finend")
    a("s_cmp_eq_u32 s10, 1"); a(f"s_cbranch_scc1 {Lfin_end}")
    T = 48
    for q in range(4): a(f"ds_read_b128 {vr(T+4*q,4)}, v14 offset:{ACCX + q*1024}")
    a("v_lshlrev_b32 v15, 2, v6")
    a(f"v_add_u32 v64, {SX}, v15")
    a("ds_read2_b32 v[66:67], v64 offset0:0 offset1:32")
    a("ds_read2_b32 v[68:69], v64 offset0:64 offset1:96")
    a("ds_read2_b32 v[70:71], v64 offset0:128 offset1:160")
    a("ds_read2_b32 v[72:73], v64 offset0:192 offset1:224")
    a(f"v_add_u32 v65, {SW}, v15")
    a("ds_read2_b32 v[74:75], v65 offset0:0 offset1:32")
    a("ds_read2_b32 v[76:77], v65 offset0:64 offset1:96")
    a("s_waitcnt lgkmcnt(0)")
    a("""
    v_add_f32 v66, v66, v67
    v_add_f32 v68, v68, v69
    v_add_f32 v70, v70, v71
    v_add_f32 v72, v72, v73
    v_add_f32 v74, v74, v75
    v_add_f32 v76, v76, v77
    v_add_f32 v66, v66, v68
    v_add_f32 v70, v70, v72
    v_add_f32 v74, v74, v76
    """)
    a(f"v_mul_f32 v66, {1.0/512.0!r}, v66"); a(f"v_mul_f32 v70, {1.0/512.0!r}, v70")
    a("v_fma_f32 v70, -v66, v66, v70"); a("v_max_f32 v70, 0, v70"); a("v_add_f32 v70, 0x3727c5ac, v70")
    a("v_rsq_f32 v70, v70"); a("s_nop 0")
    a("v_mul_f32 v66, v66, v70"); a("v_sub_f32 v66, 0, v66")
    a(f"ds_write_b32 v15, v70 offset:{FIN}"); a(f"ds_write_b32 v15, v66 offset:{FIN+128}"); a(f"ds_write_b32 v15, v74 offset:{CSF}")
    for i in range(16): a(f"v_add_f32 v{ACC+i}, v{ACC+i}, v{T+i}")
    LV = a.newlabel("KV_V")
    a("v_lshlrev_b32 v64, 4, v7")
    a("s_waitcnt lgkmcnt(0)")
    a("s_cmp_eq_u32 s11, 1"); a(f"s_cbranch_scc1 {LV}")
    a(f"ds_read_b128 v[76:79], v64 offset:{CSF}"); a(f"ds_read_b128 v[80:83], v64 offset:{CSF+32}")
    a("s_lshl_b32 s12, s4, 7"); a("v_add_u32 v65, s12, v15")
    set_exec(a, 0xffffffff)
    a(f"s_mov_b32 s13, {WS_ST}"); a(f"buffer_store_dword v70, v65, s[52:55], s13 offen {SC}")
    a(f"s_mov_b32 s13, {WS_ST+8192}"); a(f"buffer_store_dword v66, v65, s[52:55], s13 offen {SC}")
    a("s_mov_b64 exec, -1")
    a("v_and_b32 v64, 0x33, v1"); a("v_bfe_u32 v65, v1, 2, 1"); a("v_lshl_or_b32 v64, v65, 3, v64")
    a("v_bfe_u32 v65, v1, 3, 1"); a("v_lshl_or_b32 v64, v65, 2, v64"); a("v_lshlrev_b32 v64, 4, v64")
    a("s_lshl_b32 s12, s4, 10"); a(f"s_add_u32 s12, s12, {WS_KF}")
    a("s_waitcnt lgkmcnt(0)")
    for j in range(8): a(f"v_mul_f32 v{76+j}, v66, v{76+j}")
    for j in range(8): a(f"v_fma_f32 v{ACC+j}, v{ACC+j}, v70, v{76+j}")
    for j in range(4): a(f"v_cvt_pk_bf16_f32 v{88+j}, v{ACC+2*j}, v{ACC+2*j+1}")
    a(f"buffer_store_dwordx4 v[88:91], v64, s[52:55], s12 offen {SC}")
    a(f"v_mul_f32 v84, v{ACC}, v{ACC}"); a(f"v_mul_f32 v85, v{ACC+1}, v{ACC+1}")
    for j in range(2, 8): a(f"v_fmac_f32 v{84+(j&1)}, v{ACC+j}, v{ACC+j}")
    a("v_add_f32 v84, v84, v85")
    half_sum(a, 84, 85)
    dpp_wave_max(a, 84)
    a("s_lshl_b32 s12, s4, 2"); a(f"s_add_u32 s12, s12, {WS_KM}")
    a("v_mov_b32 v65, 0")
    set_exec(a, 1 << 63)
    a(f"buffer_store_dword v84, v65, s[52:55], s12 offen {SC}")
    a("s_mov_b64 exec, -1")
    a(f"s_branch {Lfin_end}")
    a.label(LV)
    for g in range(4):
        a(f"ds_read_b128 {vr(76+4*g,4)}, v64 offset:{FIN + 32*g}")
        a(f"ds_read_b128 {vr(92+4*g,4)}, v64 offset:{FIN + 128 + 32*g}")
    a("v_and_b32 v64, 15, v1"); a("v_lshl_add_u32 v64, v7, 4, v64"); a("v_lshlrev_b32 v64, 4, v64")
    a("s_lshl_b32 s12, s4, 10"); a(f"s_add_u32 s12, s12, {WS_VF}")
    a("s_waitcnt lgkmcnt(0)")
    for r in range(16): a(f"v_mul_f32 v{92+r}, v{92+r}, v74")
    for r in range(16): a(f"v_fma_f32 v{ACC+r}, v{ACC+r}, v{76+r}, v{92+r}")
    for j in range(8): a(f"v_cvt_pk_bf16_f32 v{108+j}, v{ACC+2*j}, v{ACC+2*j+1}")
    set_exec(a, 0xffff0000ffff0000)
    a(f"buffer_store_dwordx4 v[108:111], v64, s[52:55], s12 offen {SC}")
    a(f"buffer_store_dwordx4 v[112:115], v64, s[52:55], s12 offen offset:512 {SC}")
    a("s_mov_b64 exec, -1")
    a.label(Lfin_end)
    stamp(a, 3)

def role_colsum(a):
    a.c("==== colsum part ==== (s4 = block 0..55, >=56 skip)")
    Lend = a.newlabel("CS_end")
    a("s_cmp_ge_u32 s4, 56"); a(f"s_cbranch_scc1 {Lend}")
    a("s_cmp_ge_u32 s4, 28")
    a(f"s_cselect_b32 s44, s{S_WU}, s{S_WG}"); a(f"s_cselect_b32 s45, s{S_WU+1}, s{S_WG+1}")
    a("s_and_b32 s45, s45, 0xffff"); a(f"s_mov_b32 s46, {512*3584}"); a("s_mov_b32 s47, 0x00020000")
    a("s_sub_u32 s5, s4, 28"); a("s_cmp_ge_u32 s4, 28"); a("s_cselect_b32 s5, s5, s4"); a("s_lshl_b32 s5, s5, 7")
    a("v_lshrrev_b32 v3, 3, v1"); a("v_mul_u32_u24 v3, 3584, v3")
    a("v_bfe_u32 v4, v1, 2, 1"); a("v_bfe_u32 v5, v1, 4, 1"); a("v_xor_b32 v4, v4, v5")
    a("v_lshl_add_u32 v3, v4, 6, v3"); a("v_and_b32 v4, 3, v1"); a("v_lshl_add_u32 v3, v4, 4, v3")
    a(f"s_mul_i32 s6, s3, {128*3584}"); a("s_add_u32 s6, s6, s5"); a("s_lshl_b32 s7, s3, 14")
    a("s_mov_b32 s9, 0")
    L = a.newlabel("CS_dma"); a.label(L)
    a("s_lshl_b32 s8, s9, 10"); a("s_add_u32 m0, s7, s8")
    a(f"s_mul_i32 s8, s9, {8*3584}"); a("s_add_u32 s8, s8, s6")
    a("buffer_load_dwordx4 v3, s[44:47], s8 offen lds")
    a("s_add_u32 s9, s9, 1"); a("s_cmp_lt_u32 s9, 16"); a(f"s_cbranch_scc1 {L}")
    a("v_lshrrev_b32 v7, 5, v1"); a("v_bfe_u32 v10, v1, 2, 2"); a("v_lshl_add_u32 v9, v7, 3, v10"); a("v_lshlrev_b32 v9, 7, v9")
    a("v_lshrrev_b32 v10, 1, v10"); a("v_xor_b32 v10, s3, v10"); a("v_and_b32 v10, 1, v10"); a("v_lshl_add_u32 v9, v10, 6, v9")
    a("v_bfe_u32 v10, v1, 4, 1"); a("v_lshl_add_u32 v9, v10, 5, v9"); a("v_and_b32 v10, 3, v1"); a("v_lshl_add_u32 v9, v10, 3, v9")
    a("s_lshr_b32 s8, s3, 1"); a("s_lshl_b32 s8, s8, 15"); a("v_add_u32 v9, s8, v9")
    for i in range(16): a(f"v_mov_b32 v{16+i}, 0")
    for i in range(4): a(f"v_mov_b32 v{32+i}, {ONES_BF16:#x}")
    a("s_waitcnt vmcnt(0)"); a("s_barrier")
    WF = lambda s: 40 + 4*(s & 3)
    def rd(s):
        a(f"ds_read_b64_tr_b16 {vr(WF(s),2)}, v9 offset:{(16*s)*128}")
        a(f"ds_read_b64_tr_b16 {vr(WF(s)+2,2)}, v9 offset:{(16*s+4)*128}")
    for s in range(3): rd(s)
    for s in range(16):
        if s + 3 < 16: rd(s+3)
        a(f"s_waitcnt lgkmcnt({2*min(3, 15-s)})")
        a(f"v_mfma_f32_32x32x16_bf16 v[16:31], {vr(WF(s),4)}, v[32:35], v[16:31]")
    a("s_barrier")
    a("v_lshlrev_b32 v3, 4, v1"); a("s_and_b32 s8, s3, 1"); a("s_lshl_b32 s8, s8, 12"); a("v_add_u32 v3, s8, v3")
    Lw = a.newlabel("CS_w"); Lsk = a.newlabel("CS_sk")
    a("s_nop 7"); a("s_nop 7")
    a("s_cmp_lt_u32 s3, 2"); a(f"s_cbranch_scc1 {Lw}")
    for q in range(4): a(f"ds_write_b128 v3, {vr(16+4*q,4)} offset:{q*1024}")
    a.label(Lw)
    a("s_waitcnt lgkmcnt(0)"); a("s_barrier")
    a("s_cmp_ge_u32 s3, 2"); a(f"s_cbranch_scc1 {Lsk}")
    for q in range(4): a(f"ds_read_b128 {vr(40+4*q,4)}, v3 offset:{q*1024}")
    a("s_lshl_b32 s12, s4, 8"); a("s_lshl_b32 s13, s3, 7"); a("s_add_u32 s12, s12, s13"); a(f"s_add_u32 s12, s12, {WS_CS}")
    a("v_lshlrev_b32 v3, 4, v7")
    a("s_waitcnt lgkmcnt(0)")
    for i in range(16): a(f"v_add_f32 v{16+i}, v{16+i}, v{40+i}")
    set_exec(a, 0x0000000100000001)
    for g in range(4): a(f"buffer_store_dwordx4 {vr(16+4*g,4)}, v3, s[52:55], s12 offen offset:{32*g} {SC}")
    a("s_mov_b64 exec, -1")
    a.label(Lsk)
    a("s_lshl_b32 s12, s4, 2"); a(f"s_add_u32 s12, s12, {WS_FCS}")
    signal(a, "s12", 8, 256, have_tag=True)
    a.label(Lend)
    stamp(a, 4)

QSCALE = 0.25 * 1.4426950408889634
M_THRESH = 48.0
def role_attn(a):
    a.c("==== ATTN role ====")
    stamp(a, 0)
    srd(a, 40, S_X, 2048*1024)
    srd(a, 44, S_WQ, 512*1024)
    a("s_and_b32 s6, s3, 1"); a("s_lshr_b32 s7, s3, 1")
    a("v_lshrrev_b32 v3, 3, v1"); a("v_lshlrev_b32 v3, 10, v3")
    a("v_and_b32 v4, 7, v1"); a("v_lshrrev_b32 v5, 4, v1"); a("v_xor_b32 v6, v4, v5")
    a("v_lshl_add_u32 v8, v6, 4, v3"); a("v_xor_b32 v9, 64, v8")
    a("v_bfe_u32 v6, v1, 2, 1"); a("v_and_b32 v7, 1, v5"); a("v_xor_b32 v6, v6, v7")
    a("v_lshl_add_u32 v10, v6, 6, v3"); a("v_and_b32 v6, 3, v1"); a("v_lshl_add_u32 v10, v6, 4, v10")
    a("s_lshl_b32 s8, s4, 6"); a("s_lshl_b32 s9, s3, 4"); a("s_add_u32 s8, s8, s9"); a("s_lshl_b32 s8, s8, 10")
    a("s_lshl_b32 s9, s9, 10"); a("s_lshl_b32 s10, s5, 7"); a("s_add_u32 s9, s9, s10"); a("s_lshl_b32 s10, s3, 11")
    a("s_and_b32 s69, s4, 3"); a("s_lshl_b32 s69, s69, 1")
    def dma(st):
        a("s_lshl_b32 s12, s69, 7"); a("s_add_u32 s12, s12, s8")
        a("s_lshl_b32 s13, s69, 16"); a("s_add_u32 s13, s13, s9")
        a("s_add_u32 s69, s69, 1"); a("s_and_b32 s69, s69, 7")
        for i in range(2):
            a(f"s_add_u32 m0, s10, {st*16384 + i*1024}")
            a(f"s_add_u32 s11, s12, {i*8*1024}")
            a(f"buffer_load_dwordx4 v{8+i}, s[40:43], s11 offen lds")
        for i in range(2):
            a(f"s_add_u32 m0, s10, {st*16384 + 8192 + i*1024}")
            a(f"s_add_u32 s11, s13, {i*8*1024}")
            a("buffer_load_dwordx4 v10, s[44:47], s11 offen lds")
    for c in range(4): dma(c)
    srd(a, 52, S_WS, WS_SMALL_END)
    srd(a, 56, S_WS, OF_BYTES, WS_OF)
    srd(a, 60, S_WS, 65536, WS_KF)
    srd(a, 64, S_WS, 65536, WS_VF)
    a("v_and_b32 v6, 31, v1"); a("v_lshrrev_b32 v7, 5, v1")
    a("v_bfe_u32 v11, v1, 1, 3"); a("v_xor_b32 v11, v11, v7"); a("v_lshlrev_b32 v11, 4, v11"); a("v_lshl_add_u32 v11, v6, 7, v11")
    a("s_lshl_b32 s11, s7, 12"); a("v_add_u32 v12, s11, v11")
    for s in range(1, 4): a(f"v_xor_b32 v{12+s}, {s<<5}, v12")
    a("v_bfe_u32 v11, v1, 2, 2"); a("v_lshl_add_u32 v2, v7, 3, v11"); a("v_lshlrev_b32 v2, 7, v2")
    a("v_lshrrev_b32 v11, 1, v11"); a("v_xor_b32 v11, s6, v11"); a("v_lshl_add_u32 v2, v11, 6, v2")
    a("v_bfe_u32 v11, v1, 4, 1"); a("v_lshl_add_u32 v2, v11, 5, v2"); a("v_and_b32 v11, 3, v1"); a("v_lshl_add_u32 v4, v11, 3, v2")
    ACC = 16
    FR = lambda b, s: 64 + (b*4+s)*8
    for i in range(16): a(f"v_mov_b32 v{ACC+i}, 0")
    a("v_mov_b32 v48, 0"); a("v_mov_b32 v50, 0"); a(f"v_mov_b32 v49, {ONES_BF16:#x}")
    def reads(c):
        st = c % 4; b = c & 1
        for s in range(4):
            a(f"ds_read_b128 {vr(FR(b,s),4)}, v{12+s} offset:{st*16384}")
            a(f"ds_read_b64_tr_b16 {vr(FR(b,s)+4,2)}, v4 offset:{st*16384 + 8192 + (16*s)*128}")
            a(f"ds_read_b64_tr_b16 {vr(FR(b,s)+6,2)}, v4 offset:{st*16384 + 8192 + (16*s+4)*128}")
    a("s_waitcnt vmcnt(12)"); a("s_barrier")
    stamp(a, 1)
    reads(0)
    for c in range(8):
        b = c & 1
        if c + 1 < 8:
            issued = min(c + 3, 7)
            a(f"s_waitcnt vmcnt({4*(issued-(c+1))}) lgkmcnt(0)")
            a("s_barrier")
            if c + 4 < 8: dma(c % 4)
            reads(c+1)
        else:
            a("s_waitcnt lgkmcnt(0)")
        for s in range(4):
            a(f"v_mfma_f32_32x32x16_bf16 {vr(ACC,16)}, {vr(FR(b,s)+4,4)}, {vr(FR(b,s),4)}, {vr(ACC,16)}")
            for r in range(4): a(f"v_dot2_f32_bf16 v{48+2*(r&1)}, v{FR(b,s)+4+r}, v49, v{48+2*(r&1)}")
    stamp(a, 2)
    a("s_nop 3"); a("v_add_f32 v48, v48, v50")
    half_sum(a, 48, 49)
    a("s_lshl_b32 s11, s3, 8"); a("s_add_u32 s11, s11, 73728")
    a("v_lshl_add_u32 v11, v6, 2, s11"); a("ds_write_b32 v11, v48"); a("v_lshl_add_u32 v11, v7, 4, s11")
    CONST = 65536
    Lc = a.newlabel("A_c")
    a("s_cmp_lg_u32 s3, 3"); a(f"s_cbranch_scc1 {Lc}")
    a("v_lshrrev_b32 v5, 3, v1"); a("v_lshlrev_b32 v5, 9, v5"); a("v_and_b32 v8, 7, v1"); a("v_lshl_add_u32 v5, v8, 2, v5")
    a(f"v_add_u32 v5, {CONST}, v5")
    a("v_cmp_gt_u32 vcc, 4, v8"); a(f"v_mov_b32 v9, {ONES_BF16:#x}"); a("s_nop 0"); a("v_cndmask_b32 v9, 0, v9, vcc")
    a("ds_write_b32 v5, v9")
    a.label(Lc)
    a("s_waitcnt lgkmcnt(0)")
    for g in range(4): a(f"ds_read_b128 {vr(48+4*g,4)}, v11 offset:{32*g}")
    def pre(a):
        a("s_and_b32 s12, s2, 15"); a("s_lshl_b32 s12, s12, 8"); a(f"s_add_u32 s12, s12, {WS_FKV}")
    a("s_waitcnt lgkmcnt(0)")
    wg_wait(a, [("s12", 64)], pre=pre)
    stamp(a, 6)
    QA, QB, CA, CB, SA, SB, OA, OB = 32, 36, 48, 64, 80, 96, 112, 128
    KF = [144, 148]; VF = [[152, 156], [160, 164]]; IDX = 184
    STG = [192, 224]
    a("v_lshlrev_b32 v3, 4, v1"); a("s_lshl_b32 s12, s3, 10")
    def stage_load(soff_expr, st):
        for q in range(4):
            a(f"s_add_u32 s13, {soff_expr}, {q*4096}")
            a(f"buffer_load_dwordx4 {vr(STG[st]+8*q,4)}, v3, s[60:63], s13 offen {SC}")
            a(f"buffer_load_dwordx4 {vr(STG[st]+8*q+4,4)}, v3, s[64:67], s13 offen {SC}")
    def stage_write(st, slot):
        for q in range(4):
            a(f"ds_write_b128 v8, {vr(STG[st]+8*q,4)} offset:{slot*32768 + q*4096}")
            a(f"ds_write_b128 v8, {vr(STG[st]+8*q+4,4)} offset:{slot*32768 + 16384 + q*4096}")
    stage_load("s12", 0)
    a("s_lshl_b32 s13, s4, 6"); a("s_lshl_b32 s14, s7, 5"); a("s_add_u32 s13, s13, s14")
    a("v_add_u32 v11, s13, v6"); a("v_lshlrev_b32 v11, 2, v11")
    a(f"s_mov_b32 s14, {WS_ST}"); a(f"buffer_load_dword v186, v11, s[52:55], s14 offen {SC}")
    a(f"s_mov_b32 s14, {WS_ST+8192}"); a(f"buffer_load_dword v187, v11, s[52:55], s14 offen {SC}")
    a("v_lshlrev_b32 v11, 2, v1"); a(f"s_mov_b32 s14, {WS_KM}"); a(f"buffer_load_dword v188, v11, s[52:55], s14 offen {SC}")
    a("s_add_u32 s15, s12, 16384")
    stage_load("s15", 1)
    a(f"v_mov_b32 v{IDX}, 0xdddddddd")
    for i in range(16):
        a(f"v_mov_b32 v{OA+i}, 0"); a(f"v_mov_b32 v{OB+i}, 0"); a(f"v_mov_b32 v{SB+i}, 0")
    for r in range(4): a(f"v_mov_b32 v{VF[1][1]+r}, 0")
    a("v_add_u32 v8, s12, v3")
    a("v_and_b32 v5, 15, v1"); a("v_lshl_add_u32 v5, v7, 4, v5"); a("v_lshlrev_b32 v5, 4, v5"); a("v_add_u32 v5, 16384, v5")
    a("v_and_b32 v11, 27, v6"); a("v_cmp_eq_u32 vcc, 16, v11")
    a(f"v_mov_b32 v9, {CONST+16}"); a(f"v_mov_b32 v10, {CONST}"); a("v_cndmask_b32 v9, v9, v10, vcc")
    a("v_cmp_gt_u32 vcc, 16, v6"); a("s_nop 1")
    a("v_cndmask_b32 v5, v9, v5, vcc")
    a("v_cndmask_b32 v9, 0, 1, vcc")
    a("s_waitcnt vmcnt(8)")
    stamp(a, 7)
    stage_write(0, 0)
    a(f"v_mul_f32 v186, {QSCALE!r}, v186"); a(f"v_mul_f32 v187, {QSCALE!r}, v187")
    dpp_wave_max(a, 188)
    for r in range(16): a(f"v_mul_f32 v{48+r}, v187, v{48+r}")
    for r in range(16): a(f"v_fma_f32 v{ACC+r}, v{ACC+r}, v186, v{48+r}")
    a("v_readlane_b32 s14, v188, 63")
    for hd in range(2):
        for j in range(4): a(f"v_cvt_pk_bf16_f32 v{QA+4*hd+j}, v{ACC+8*hd+2*j}, v{ACC+8*hd+2*j+1}")
    a(f"v_mul_f32 v186, v{ACC}, v{ACC}"); a(f"v_mul_f32 v187, v{ACC+8}, v{ACC+8}")
    for j in range(1, 8):
        a(f"v_fmac_f32 v186, v{ACC+j}, v{ACC+j}"); a(f"v_fmac_f32 v187, v{ACC+8+j}, v{ACC+8+j}")
    half_sum(a, 186, 189); half_sum(a, 187, 190)
    a("v_mul_f32 v186, s14, v186"); a("v_mul_f32 v187, s14, v187")
    a("v_sqrt_f32 v186, v186"); a("v_sqrt_f32 v187, v187"); a("s_nop 0")
    a(f"v_mul_f32 v186, {1.015625!r}, v186"); a(f"v_mul_f32 v187, {1.015625!r}, v187")
    a("v_max_f32 v189, v186, v187")
    a(f"v_cmp_nge_f32 vcc, {M_THRESH!r}, v189")
    Lfast = a.newlabel("A_fast")
    a(f"s_cbranch_vccz {Lfast}")
    a.c("fallback: true row max")
    a("v_mov_b32 v186, 0xff800000"); a("v_mov_b32 v187, 0xff800000"); a("s_mov_b32 s14, 0")
    Lmx = a.newlabel("A_mx"); a.label(Lmx)
    a(f"buffer_load_dwordx4 {vr(KF[0],4)}, v3, s[60:63], s14 offen {SC}")
    a("s_waitcnt vmcnt(0)")
    a(f"v_mfma_f32_32x32x16_bf16 {vr(SA,16)}, {vr(KF[0],4)}, {vr(QA,4)}, 0")
    a(f"v_mfma_f32_32x32x16_bf16 {vr(CB,16)}, {vr(KF[0],4)}, {vr(QB,4)}, 0")
    a("s_nop 15"); a("s_nop 7")
    for i in range(0, 16, 2):
        a(f"v_max3_f32 v186, v{SA+i}, v{SA+i+1}, v186"); a(f"v_max3_f32 v187, v{CB+i}, v{CB+i+1}, v187")
    a("s_add_u32 s14, s14, 1024"); a("s_cmp_lt_u32 s14, 65536"); a(f"s_cbranch_scc1 {Lmx}")
    half_sum(a, 186, 189, "v_max_f32"); half_sum(a, 187, 189, "v_max_f32")
    a.label(Lfast)
    for i in range(16):
        a(f"v_sub_f32 v{CA+i}, 0, v186"); a(f"v_sub_f32 v{CB+i}, 0, v187")
    a("s_waitcnt vmcnt(0)")
    stage_write(1, 1)
    a("s_add_u32 s15, s12, 32768")
    stage_load("s15", 0)
    a("s_waitcnt lgkmcnt(0)")
    a("s_barrier")
    def lds_reads(tt_next, bf):
        if tt_next < 4: ka, va, off = 10, 12, tt_next*1024
        else: ka, va, off = 11, 13, 0
        a(f"ds_read_b128 {vr(KF[bf],4)}, v{ka} offset:{off}")
        a(f"ds_read_b128 {vr(VF[bf][0],4)}, v{va} offset:{off}")
        a(f"ds_read_b128 {vr(VF[bf][1],4)}, v{va} offset:{off+512}")
    a("v_mov_b32 v11, v3"); a("v_mov_b32 v13, v5")
    lds_reads(4, 0)
    a("s_waitcnt lgkmcnt(0)")
    a(f"v_mfma_f32_32x32x16_bf16 {vr(SA,16)}, {vr(KF[0],4)}, {vr(QA,4)}, {vr(CA,16)}")
    a("s_nop 7")
    stamp(a, 3)
    a("s_mov_b32 s70, 0")
    a("s_mov_b32 s71, 0")
    a("s_nop 7")
    Lloop = a.newlabel("A_loop"); a.label(Lloop)
    a("v_mov_b32 v10, v11"); a("v_mov_b32 v12, v13")
    a("s_add_u32 s72, s70, 1")
    a("s_and_b32 s71, s72, 3"); a("s_lshl_b32 s71, s71, 12")
    a("s_bfe_u32 s73, s72, 0x10002"); a("s_lshl_b32 s73, s73, 15"); a("s_add_u32 s71, s71, s73")
    a("v_add_u32 v11, s71, v3"); a("v_mad_u32_u24 v13, v9, s71, v5")
    a("s_and_b32 s72, s70, 3")
    for t in range(4):
        bf = t & 1; nb = bf ^ 1
        for i in range(32):
            if t == 0 and i == 1:
                Lb = a.newlabel("A_nb"); Ly = a.newlabel("A_yb")
                a("s_cmp_eq_u32 s70, 4"); a(f"s_cbranch_scc1 {Ly}")
                a("s_cmp_eq_u32 s70, 8"); a(f"s_cbranch_scc1 {Ly}")
                a("s_cmp_eq_u32 s70, 7"); a(f"s_cbranch_scc1 {Ly}")
                a("s_cmp_eq_u32 s70, 11"); a(f"s_cbranch_scc0 {Lb}")
                a.label(Ly); a("s_barrier"); a.label(Lb)
            if i == 2:
                a(f"v_smfmac_f32_32x32x32_bf16 {vr(OB,16)}, {vr(VF[nb][1],4)}, {vr(SB+8,8)}, v{IDX}")
            if i == 5:
                lds_reads(t+1, nb)
            if t == 1 and i == 9:
                L5 = a.newlabel("A_s5"); L9 = a.newlabel("A_s9"); Le = a.newlabel("A_se")
                a("s_cmp_eq_u32 s70, 5"); a(f"s_cbranch_scc1 {L5}")
                a("s_cmp_eq_u32 s70, 9"); a(f"s_cbranch_scc1 {L9}")
                a(f"s_branch {Le}")
                a.label(L5)
                a("s_waitcnt vmcnt(0)")
                stage_write(0, 0)
                a("s_add_u32 s15, s12, 49152")
                stage_load("s15", 1)
                a(f"s_branch {Le}")
                a.label(L9)
                a("s_waitcnt vmcnt(0)")
                stage_write(1, 1)
                a.label(Le)
            if i == 7:
                a(f"v_mfma_f32_32x32x16_bf16 {vr(SB,16)}, {vr(KF[bf],4)}, {vr(QB,4)}, {vr(CB,16)}")
            if i == 12:
                a(f"v_smfmac_f32_32x32x32_bf16 {vr(OA,16)}, {vr(VF[bf][0],4)}, {vr(SA,8)}, v{IDX}")
            if i == 18:
                a(f"v_smfmac_f32_32x32x32_bf16 {vr(OA,16)}, {vr(VF[bf][1],4)}, {vr(SA+8,8)}, v{IDX}")
            if i == 22:
                a("s_waitcnt lgkmcnt(0)")
            if i == 23:
                a(f"v_mfma_f32_32x32x16_bf16 {vr(SA,16)}, {vr(KF[nb],4)}, {vr(QA,4)}, {vr(CA,16)}")
            if i == 28:
                a(f"v_smfmac_f32_32x32x32_bf16 {vr(OB,16)}, {vr(VF[bf][0],4)}, {vr(SB,8)}, v{IDX}")
            reg = SA + i if i < 16 else SB + i - 16
            a(f"v_exp_f32 v{reg}, v{reg}")
    a("s_add_u32 s70, s70, 1"); a(f"s_cmp_lt_u32 s70, {ATT_ITERS}"); a(f"s_cbranch_scc1 {Lloop}")
    a("s_nop 1")
    a(f"v_smfmac_f32_32x32x32_bf16 {vr(OB,16)}, {vr(VF[1][1],4)}, {vr(SB+8,8)}, v{IDX}")
    stamp(a, 4)
    a("s_nop 15"); a("s_nop 7")
    a(f"v_rcp_f32 v186, v{OA+8}"); a(f"v_rcp_f32 v187, v{OB+8}"); a("s_nop 0")
    for j in range(8):
        a(f"v_mul_f32 v{OA+j}, v{OA+j}, v186"); a(f"v_mul_f32 v{OB+j}, v{OB+j}, v187")
    for j in range(4):
        a(f"v_cvt_pk_bf16_f32 v{SA+j}, v{OA+2*j}, v{OA+2*j+1}"); a(f"v_cvt_pk_bf16_f32 v{SA+4+j}, v{OB+2*j}, v{OB+2*j+1}")
    a("s_lshl_b32 s13, s4, 1"); a("s_add_u32 s13, s13, s7"); a("s_lshl_b32 s13, s13, 5")
    a("s_lshl_b32 s14, s5, 2"); a("s_add_u32 s13, s13, s14"); a("s_lshl_b32 s14, s6, 1"); a("s_add_u32 s13, s13, s14"); a("s_lshl_b32 s13, s13, 10")
    a(f"buffer_store_dwordx4 {vr(SA,4)}, v3, s[56:59], s13 offen {SC}")
    a(f"buffer_store_dwordx4 {vr(SA+4,4)}, v3, s[56:59], s13 offen offset:1024 {SC}")
    a("s_lshl_b32 s12, s4, 7"); a("s_lshl_b32 s13, s5, 2"); a("s_add_u32 s12, s12, s13"); a(f"s_add_u32 s12, s12, {WS_FO}")
    signal(a, "s12", 1, 0, have_tag=True)
    stamp(a, 5)

GK1 = -2.0 * 0.7978845608028654 * 1.4426950408889634
GK2 = GK1 * 0.044715
def role_gu(a):
    a.c("==== GU role ====")
    stamp(a, 0)
    srd(a, 40, S_X, 2048*1024); srd(a, 44, S_WG, 512*3584); srd(a, 48, S_WU, 512*3584)
    a("s_and_b32 s6, s3, 1"); a("s_lshr_b32 s7, s3, 1")
    STG = 24576
    a("v_lshrrev_b32 v3, 2, v1"); a("v_lshlrev_b32 v3, 10, v3"); a("v_and_b32 v4, 3, v1"); a("v_lshrrev_b32 v5, 4, v1")
    a("v_xor_b32 v2, v4, v5"); a("v_lshl_add_u32 v8, v2, 4, v3")
    a("v_mul_u32_u24 v9, 3584, v5"); a("v_bfe_u32 v3, v1, 2, 2"); a("v_xor_b32 v3, v3, v5")
    a("v_lshl_add_u32 v9, v3, 6, v9"); a("v_lshl_add_u32 v9, v4, 4, v9")
    a("s_lshl_b32 s8, s4, 7"); a("s_lshl_b32 s9, s3, 5"); a("s_add_u32 s8, s8, s9"); a("s_lshl_b32 s8, s8, 10")
    a(f"s_mul_i32 s9, s3, {8*3584}"); a("s_lshl_b32 s10, s5, 8"); a("s_add_u32 s9, s9, s10"); a("s_lshl_b32 s10, s3, 11")
    a("s_and_b32 s66, s4, 3"); a("s_lshl_b32 s66, s66, 2")
    def dma(stage_s):
        a("s_lshl_b32 s12, s66, 6"); a("s_add_u32 s12, s12, s8")
        a(f"s_mul_i32 s13, s66, {32*3584}"); a("s_add_u32 s13, s13, s9")
        a("s_add_u32 s66, s66, 1"); a("s_and_b32 s66, s66, 15")
        for i in range(2):
            a(f"s_add_u32 m0, s{stage_s}, {i*1024}")
            a(f"s_add_u32 s14, s12, {i*16*1024}")
            a("buffer_load_dwordx4 v8, s[40:43], s14 offen lds")
        for g in range(2):
            for i in range(2):
                a(f"s_add_u32 m0, s{stage_s}, {8192 + g*8192 + i*1024}")
                a(f"s_add_u32 s14, s13, {i*4*3584}")
                a(f"buffer_load_dwordx4 v9, s[{44+4*g}:{47+4*g}], s14 offen lds")
    a("s_mov_b32 s11, s10"); dma(11)
    a(f"s_add_u32 s11, s10, {STG}"); dma(11)
    a(f"s_add_u32 s11, s10, {2*STG}"); dma(11)
    NT = 0
    if TOUCH:
        a("v_lshrrev_b32 v2, 1, v1"); a("v_mul_u32_u24 v2, 3584, v2"); a("v_and_b32 v3, 1, v1"); a("v_lshl_add_u32 v2, v3, 7, v2")
        a("s_and_b32 s14, s4, 3"); a("s_lshl_b32 s14, s14, 2"); a("s_add_u32 s14, s14, s3"); a(f"s_mul_i32 s14, s14, {32*3584}")
        a("s_lshl_b32 s15, s5, 8"); a("s_add_u32 s14, s14, s15")
        a("buffer_load_dword v60, v2, s[44:47], s14 offen"); a("buffer_load_dword v61, v2, s[48:51], s14 offen")
        NT = 2
    srd(a, 52, S_WS, WS_SMALL_END); srd(a, 56, S_WS, HF_BYTES, WS_HF)
    a("v_and_b32 v6, 31, v1"); a("v_lshrrev_b32 v7, 5, v1")
    a("v_bfe_u32 v10, v1, 2, 2"); a("v_xor_b32 v10, v10, v7"); a("v_lshlrev_b32 v10, 4, v10"); a("v_lshl_add_u32 v10, v6, 6, v10")
    a("s_lshl_b32 s14, s6, 12"); a("v_add_u32 v10, s14, v10"); a("v_xor_b32 v11, 32, v10")
    a("v_bfe_u32 v2, v1, 2, 2"); a("v_lshl_add_u32 v12, v7, 3, v2"); a("v_lshlrev_b32 v12, 8, v12")
    a("s_lshl_b32 s14, s7, 1"); a("v_xor_b32 v2, s14, v2"); a("v_lshl_add_u32 v12, v2, 6, v12")
    a("v_bfe_u32 v2, v1, 4, 1"); a("v_lshl_add_u32 v12, v2, 5, v12"); a("v_and_b32 v2, 3, v1"); a("v_lshl_add_u32 v12, v2, 3, v12")
    a("v_add_u32 v12, 8192, v12"); a("v_xor_b32 v13, 64, v12")
    ACC = 128
    def acc(mt, ft, g): return ACC + ((mt*2+ft)*2+g)*16
    for i in range(128): a(f"v_mov_b32 v{ACC+i}, 0")
    XF = lambda b, mt: 64 + (b*2+mt)*4
    WF = lambda b, ft, g: 80 + ((b*2+ft)*2+g)*4
    def set_addr(sreg):
        for i in range(4): a(f"v_add_u32 v{14+i}, {sreg}, v{10+i}")
    def reads(s, b):
        for mt in range(2): a(f"ds_read_b128 {vr(XF(b,mt),4)}, v{14+s} offset:{mt*2048}")
        for ft in range(2):
            for g in range(2):
                a(f"ds_read_b64_tr_b16 {vr(WF(b,ft,g),2)}, v{16+ft} offset:{g*8192 + (16*s)*256}")
                a(f"ds_read_b64_tr_b16 {vr(WF(b,ft,g)+2,2)}, v{16+ft} offset:{g*8192 + (16*s+4)*256}")
    def mfmas(b):
        for ft in range(2):
            for g in range(2):
                for mt in range(2):
                    a(f"v_mfma_f32_32x32x16_bf16 {vr(acc(mt,ft,g),16)}, {vr(WF(b,ft,g),4)}, {vr(XF(b,mt),4)}, {vr(acc(mt,ft,g),16)}")
    a("s_mov_b32 s15, 0")
    a(f"s_waitcnt vmcnt({12+NT})"); a("s_barrier")
    stamp(a, 4)
    set_addr("s15"); reads(0, 0)
    def chunk(kind):
        a("s_waitcnt lgkmcnt(0)")
        reads(1, 1)
        mfmas(0)
        if kind != "last":
            a(f"s_waitcnt vmcnt({kind[1]}) lgkmcnt(0)")
            a("s_barrier")
            if kind[0]:
                a("s_add_u32 s11, s15, s10"); dma(11)
            a(f"s_add_u32 s15, s15, {STG}"); a(f"s_cmp_eq_u32 s15, {3*STG}"); a("s_cselect_b32 s15, 0, s15")
            set_addr("s15"); reads(0, 0)
        else:
            a("s_waitcnt lgkmcnt(0)")
        mfmas(1)
    chunk((True, 6 + NT))
    a("s_mov_b32 s65, 1")
    Lloop = a.newlabel("GU_loop"); a.label(Lloop)
    chunk((True, 6))
    a("s_add_u32 s65, s65, 1"); a("s_cmp_lt_u32 s65, 13"); a(f"s_cbranch_scc1 {Lloop}")
    chunk((False, 6))
    chunk((False, 0))
    chunk("last")
    stamp(a, 1)
    def pre(a):
        a("s_and_b32 s12, s2, 15"); a("s_lshl_b32 s12, s12, 8"); a(f"s_add_u32 s12, s12, {WS_FKV}")
        a("s_and_b32 s13, s2, 7"); a("s_lshl_b32 s13, s13, 8"); a(f"s_add_u32 s13, s13, {WS_FCS}")
    wg_wait(a, [("s12", 64), ("s13", 56)], pre=pre)
    a("s_lshl_b32 s8, s4, 7"); a("s_lshl_b32 s9, s6, 6"); a("s_add_u32 s8, s8, s9")
    a("v_add_u32 v2, s8, v6"); a("v_lshlrev_b32 v2, 2, v2")
    a(f"s_mov_b32 s9, {WS_ST}"); a(f"s_mov_b32 s10, {WS_ST+8192}")
    for mt in range(2):
        a(f"buffer_load_dword v{8+mt}, v2, s[52:55], s9 offen offset:{mt*128} {SC}")
        a(f"buffer_load_dword v{10+mt}, v2, s[52:55], s10 offen offset:{mt*128} {SC}")
    a("s_lshl_b32 s8, s5, 9"); a("s_lshl_b32 s9, s7, 8"); a("s_add_u32 s8, s8, s9"); a(f"s_add_u32 s8, s8, {WS_CS}"); a(f"s_add_u32 s9, s8, {1792*4}")
    a("v_lshlrev_b32 v2, 4, v7")
    CS = lambda ft, g: 64 + (ft*2+g)*16
    for ft in range(2):
        for g in range(2):
            for q in range(4):
                a(f"buffer_load_dwordx4 {vr(CS(ft,g)+4*q,4)}, v2, s[52:55], s{8+g} offen offset:{ft*128 + q*32} {SC}")
    a("v_lshlrev_b32 v3, 4, v1")
    a("s_lshl_b32 s8, s4, 2"); a("s_lshl_b32 s9, s6, 1"); a("s_add_u32 s8, s8, s9"); a("s_mul_i32 s8, s8, 112")
    a("s_lshl_b32 s9, s5, 3"); a("s_add_u32 s8, s8, s9"); a("s_lshl_b32 s9, s7, 2"); a("s_add_u32 s8, s8, s9"); a("s_lshl_b32 s8, s8, 10")
    a(f"v_mov_b32 v12, {GK1!r}"); a(f"v_mov_b32 v13, {GK2!r}")
    a("s_waitcnt vmcnt(0)")
    stamp(a, 2)
    T = 16
    for mt in range(2):
        for ft in range(2):
            G, U = acc(mt,ft,0), acc(mt,ft,1)
            for r0 in range(0, 16, 8):
                R = range(r0, r0+8)
                tt = lambda r: T + 2*(r - r0)
                for r in R: a(f"v_mul_f32 v{tt(r)}, v{10+mt}, v{CS(ft,0)+r}")
                for r in R: a(f"v_mul_f32 v{tt(r)+1}, v{10+mt}, v{CS(ft,1)+r}")
                for r in R: a(f"v_fma_f32 v{G+r}, v{G+r}, v{8+mt}, v{tt(r)}")
                for r in R: a(f"v_fma_f32 v{U+r}, v{U+r}, v{8+mt}, v{tt(r)+1}")
                for r in R: a(f"v_mul_f32 v{tt(r)}, v{G+r}, v{G+r}")
                for r in R: a(f"v_fma_f32 v{tt(r)}, v{tt(r)}, v13, v12")
                for r in R: a(f"v_mul_f32 v{tt(r)}, v{tt(r)}, v{G+r}")
                for r in R: a(f"v_exp_f32 v{tt(r)}, v{tt(r)}")
                for r in R: a(f"v_mul_f32 v{U+r}, v{U+r}, v{G+r}")
                for r in R: a(f"v_add_f32 v{tt(r)}, 1.0, v{tt(r)}")
                for r in R: a(f"v_rcp_f32 v{tt(r)}, v{tt(r)}")
                for r in R: a(f"v_mul_f32 v{U+r}, v{U+r}, v{tt(r)}")
            for j in range(8): a(f"v_cvt_pk_bf16_f32 v{G+j}, v{U+2*j}, v{U+2*j+1}")
            a(f"s_add_u32 s9, s8, {(mt*112 + 2*ft)*1024}")
            a(f"buffer_store_dwordx4 {vr(G,4)}, v3, s[56:59], s9 offen {SC}")
            a(f"buffer_store_dwordx4 {vr(G+4,4)}, v3, s[56:59], s9 offen offset:1024 {SC}")
    a("s_lshl_b32 s12, s4, 7"); a("s_lshl_b32 s13, s5, 2"); a("s_add_u32 s12, s12, s13"); a(f"s_add_u32 s12, s12, {WS_FH}")
    signal(a, "s12", 1, 0, have_tag=True)
    stamp(a, 3)

def role_fin(a):
    a.c("==== FIN role ====")
    stamp(a, 0)
    srd(a, 40, S_WD, 1792*1024); srd(a, 44, S_WO, 512*1024); srd(a, 48, S_X, 2048*1024); srd(a, 52, S_WS, WS_SMALL_END)
    srd(a, 56, S_WS, HF_BYTES, WS_HF); srd(a, 60, S_WS, OF_BYTES, WS_OF); srd(a, 64, S_OUT, 2048*1024)
    R = 7
    a("v_lshrrev_b32 v3, 3, v1"); a("v_lshlrev_b32 v3, 10, v3"); a("v_bfe_u32 v4, v1, 2, 1"); a("v_bfe_u32 v5, v1, 4, 1")
    a("v_xor_b32 v4, v4, v5"); a("v_lshl_add_u32 v8, v4, 6, v3"); a("v_and_b32 v4, 3, v1"); a("v_lshl_add_u32 v8, v4, 4, v8")
    a("v_lshlrev_b32 v9, 4, v1"); a("s_lshl_b32 s6, s3, 14")
    a("v_lshrrev_b32 v7, 5, v1"); a("v_and_b32 v6, 31, v1"); a("v_bfe_u32 v2, v1, 2, 2")
    a("v_lshl_add_u32 v10, v7, 2, v2"); a("v_lshlrev_b32 v10, 7, v10"); a("v_lshrrev_b32 v2, 1, v2"); a("v_lshl_add_u32 v10, v2, 6, v10")
    a("v_and_b32 v2, 1, v1"); a("v_lshl_add_u32 v10, v2, 5, v10"); a("v_bfe_u32 v2, v1, 4, 1"); a("v_lshl_add_u32 v10, v2, 4, v10")
    a("v_bfe_u32 v2, v1, 1, 1"); a("v_lshl_add_u32 v10, v2, 3, v10"); a("v_add_u32 v10, s6, v10"); a("v_xor_b32 v11, 64, v10")
    ACC = 192
    acc = lambda mt, nt: ACC + (mt*2+nt)*16
    for i in range(64): a(f"v_mov_b32 v{ACC+i}, 0")
    HB = lambda p, mt: 64 + (p*2+mt)*4
    WF = lambda b, nt: 128 + (b*2+nt)*4
    a("s_and_b32 s7, s3, 1"); a("s_lshr_b32 s8, s3, 1"); a("s_lshl_b32 s9, s4, 6"); a("s_lshl_b32 s10, s7, 5"); a("s_add_u32 s9, s9, s10")
    a("v_add_u32 v12, s9, v6"); a("v_lshlrev_b32 v12, 10, v12"); a("v_lshl_add_u32 v12, v7, 5, v12")
    a("s_lshl_b32 s9, s5, 7"); a("s_lshl_b32 s10, s8, 6"); a("s_add_u32 s9, s9, s10"); a("v_add_u32 v12, s9, v12")
    a("buffer_load_dwordx4 v[16:19], v12, s[48:51], 0 offen")
    a("buffer_load_dwordx4 v[20:23], v12, s[48:51], 0 offen offset:16")
    a("s_and_b32 s70, s4, 3"); a("s_mul_i32 s70, s70, 7"); a("s_mul_i32 s71, s5, 7"); a("s_lshr_b32 s71, s71, 1"); a("s_add_u32 s70, s70, s71")
    a("s_cmp_ge_u32 s70, 28"); a("s_cselect_b32 s71, 28, 0"); a("s_sub_u32 s70, s70, s71")
    a("s_mov_b32 s72, s70")
    a("s_lshl_b32 s11, s4, 1"); a("s_mul_i32 s11, s11, 112"); a("s_mul_i32 s12, s3, 28"); a("s_add_u32 s11, s11, s12"); a("s_lshl_b32 s11, s11, 10")
    a("s_lshl_b32 s12, s12, 14"); a("s_lshl_b32 s13, s5, 7"); a("s_add_u32 s12, s12, s13")
    def adv(reg):
        a(f"s_add_u32 s{reg}, s{reg}, 1"); a(f"s_cmp_eq_u32 s{reg}, 28"); a(f"s_cselect_b32 s{reg}, 0, s{reg}")
    def issue_w(slot):
        a("s_lshl_b32 s15, s70, 14"); a("s_add_u32 s15, s15, s12"); adv(70)
        for q in range(2):
            a(f"s_add_u32 m0, s6, {slot*2048 + q*1024}")
            a(f"s_add_u32 s14, s15, {q*8*1024}")
            a("buffer_load_dwordx4 v8, s[40:43], s14 offen lds")
    def issue_h(slot):
        a("s_lshl_b32 s15, s72, 10"); a("s_add_u32 s15, s15, s11"); adv(72)
        for mt in range(2):
            a(f"s_add_u32 s14, s15, {mt*112*1024}")
            a(f"buffer_load_dwordx4 {vr(HB(slot,mt),4)}, v9, s[56:59], s14 offen {SC}")
    def trreads(slot, b):
        for nt in range(2):
            a(f"ds_read_b64_tr_b16 {vr(WF(b,nt),2)}, v{10+nt} offset:{slot*2048}")
            a(f"ds_read_b64_tr_b16 {vr(WF(b,nt)+2,2)}, v{10+nt} offset:{slot*2048 + 8*128}")
    def mfmas(slot, b):
        for nt in range(2):
            for mt in range(2):
                a(f"v_mfma_f32_32x32x16_bf16 {vr(acc(mt,nt),16)}, {vr(WF(b,nt),4)}, {vr(HB(slot,mt),4)}, {vr(acc(mt,nt),16)}")
    for i in range(6): issue_w(i)
    def pre(a):
        a("s_lshr_b32 s14, s4, 1"); a("s_lshl_b32 s14, s14, 7"); a(f"s_add_u32 s14, s14, {WS_FH}")
    wg_wait(a, [("s14", 14)], pre=pre)
    stamp(a, 1)
    for i in range(6): issue_h(i)
    a("s_waitcnt vmcnt(12)")
    trreads(0, 0); trreads(1, 1)
    def step(i, n_total=28, rolled=False):
        slot = i % R; b = i % 3
        if i + 6 < n_total:
            issue_w((i+6) % R); issue_h((i+6) % R)
        def after_H(i):
            cnt = 0
            if i <= 5:
                cnt += 2*(5-i)
                cnt += 4*min(i+1, n_total-6)
            else:
                g = i - 6
                cnt += 4*(min(i, n_total-7) - g)
            return cnt
        def after_W(j):
            if j <= 5: return 10**6
            g = j - 6
            return 2 + 4*(min(i, n_total-7) - g)
        need = after_H(i)
        if i + 2 < n_total: need = min(need, after_W(i+2))
        a(f"s_waitcnt vmcnt({min(need,63)})")
        if i + 2 < n_total:
            trreads((i+2) % R, (i+2) % 3)
            a("s_waitcnt lgkmcnt(8)")
        elif i + 1 < n_total:
            a("s_waitcnt lgkmcnt(4)")
        else:
            a("s_waitcnt lgkmcnt(0)")
        mfmas(slot, b)
    for i in range(28): step(i)
    stamp(a, 2)
    a("s_lshl_b32 s12, s3, 17"); a("s_add_u32 s12, s12, s13")
    for i in range(8):
        for q in range(2):
            a(f"s_add_u32 m0, s6, {i*2048 + q*1024}")
            a(f"s_add_u32 s14, s12, {(i*16 + q*8)*1024}")
            a("buffer_load_dwordx4 v8, s[44:47], s14 offen lds")
    a("s_waitcnt vmcnt(0)")
    WO = lambda i, nt: 128 + (i*2+nt)*4
    for i in range(8):
        for nt in range(2):
            a(f"ds_read_b64_tr_b16 {vr(WO(i,nt),2)}, v{10+nt} offset:{i*2048}")
            a(f"ds_read_b64_tr_b16 {vr(WO(i,nt)+2,2)}, v{10+nt} offset:{i*2048 + 8*128}")
        if i % 2 == 1: a("s_waitcnt lgkmcnt(0)")
    def pre(a):
        a("s_lshl_b32 s14, s4, 7"); a(f"s_add_u32 s14, s14, {WS_FO}")
    wg_wait(a, [("s14", 8)], have_tag=True, pre=pre)
    stamp(a, 5)
    a("s_lshl_b32 s11, s4, 6"); a("s_lshl_b32 s14, s3, 3"); a("s_add_u32 s11, s11, s14"); a("s_lshl_b32 s11, s11, 10")
    for i in range(8):
        for mt in range(2):
            a(f"s_add_u32 s14, s11, {i*1024 + mt*32*1024}")
            a(f"buffer_load_dwordx4 {vr(HB(i,mt),4)}, v9, s[60:63], s14 offen {SC}")
    for i in range(8):
        a(f"s_waitcnt vmcnt({2*(7-i)})")
        for nt in range(2):
            for mt in range(2):
                a(f"v_mfma_f32_32x32x16_bf16 {vr(acc(mt,nt),16)}, {vr(WO(i,nt),4)}, {vr(HB(i,mt),4)}, {vr(acc(mt,nt),16)}")
    stamp(a, 3)
    a("v_add_u32 v13, s6, v9")
    a("s_nop 7"); a("s_nop 7")
    Ls = [a.newlabel("F_own") for _ in range(4)]
    for tl in range(4):
        a(f"s_cmp_eq_u32 s3, {tl}"); a(f"s_cbranch_scc1 {Ls[tl]}")
        mt, nt = tl & 1, tl >> 1
        for q in range(4): a(f"ds_write_b128 v13, {vr(acc(mt,nt)+4*q,4)} offset:{tl*4096 + q*1024}")
        a.label(Ls[tl])
    Lm = [a.newlabel("F_mv") for _ in range(4)]; Ldone = a.newlabel("F_mvd")
    for tl in range(4):
        a(f"s_cmp_lg_u32 s3, {tl}"); a(f"s_cbranch_scc1 {Lm[tl]}")
        mt, nt = tl & 1, tl >> 1
        for i in range(16): a(f"v_mov_b32 v{24+i}, v{acc(mt,nt)+i}")
        a(f"s_branch {Ldone}")
        a.label(Lm[tl])
    a.label(Ldone)
    for j in range(8):
        a(f"v_lshlrev_b32 v40, 16, v{16+j}"); a(f"v_and_b32 v41, 0xffff0000, v{16+j}")
        a(f"v_add_f32 v{24+2*j}, v{24+2*j}, v40"); a(f"v_add_f32 v{24+2*j+1}, v{24+2*j+1}, v41")
    a("s_lshl_b32 s14, s3, 12"); a("v_add_u32 v13, s14, v9")
    a("s_waitcnt lgkmcnt(0)"); a("s_barrier")
    for k in range(1, 4):
        a(f"s_add_u32 s15, s3, {k}"); a("s_and_b32 s15, s15, 3"); a("s_lshl_b32 s15, s15, 14"); a("v_add_u32 v14, s15, v13")
        for q in range(4): a(f"ds_read_b128 {vr(64+16*(k-1)+4*q,4)}, v14 offset:{q*1024}")
    for k in range(3):
        a(f"s_waitcnt lgkmcnt({4*(2-k)})")
        for i in range(16): a(f"v_add_f32 v{24+i}, v{24+i}, v{64+16*k+i}")
    for j in range(8): a(f"v_cvt_pk_bf16_f32 v{64+j}, v{24+2*j}, v{24+2*j+1}")
    a("buffer_store_dwordx4 v[64:67], v12, s[64:67], 0 offen")
    a("buffer_store_dwordx4 v[68:71], v12, s[64:67], 0 offen offset:16")
    stamp(a, 4)

def kd(name, vgpr=256, sgpr=96):
    return f"""
.section .rodata,"a"
.p2align 6
.amdhsa_kernel {name}
  .amdhsa_next_free_vgpr {vgpr}
  .amdhsa_next_free_sgpr {sgpr}
  .amdhsa_accum_offset {vgpr}
  .amdhsa_group_segment_fixed_size 0
  .amdhsa_kernarg_size 96
  .amdhsa_user_sgpr_count 2
  .amdhsa_user_sgpr_kernarg_segment_ptr 1
  .amdhsa_system_sgpr_workgroup_id_x 1
.end_amdhsa_kernel
"""
def khead(name):
    return f""".text
.globl {name}
.p2align 8
.type {name},@function
{name}:
"""
HEADER = open(f"cdna_kernels/{NAME}.s.ref").read().split("; Override")[0]
def map_attn_ids(a, idreg):
    a(f"s_and_b32 s4, s{idreg}, 7"); a("s_lshl_b32 s4, s4, 2"); a(f"s_lshr_b32 s5, s{idreg}, 3")
    a("s_and_b32 s6, s5, 3"); a("s_add_u32 s4, s4, s6"); a("s_lshr_b32 s5, s5, 2")
def map_gu_ids(a, idreg):
    a(f"s_and_b32 s6, s{idreg}, 7"); a(f"s_lshr_b32 s7, s{idreg}, 3"); a("s_lshr_b32 s4, s6, 1"); a("s_lshl_b32 s4, s4, 2")
    a("s_and_b32 s8, s7, 3"); a("s_add_u32 s4, s4, s8"); a("s_and_b32 s5, s6, 1"); a("s_mul_i32 s5, s5, 7"); a("s_lshr_b32 s7, s7, 2"); a("s_add_u32 s5, s5, s7")

def build():
    out = HEADER
    out += f"; @launch grid=({ID_END},1,1) block=(256,1,1) lds=81920\n"
    out += '.amdgcn_target "amdgcn-amd-amdhsa--gfx950"\n'
    KN = NAME + "_kernel"
    a = Asm()
    a(f"s_cmp_ge_u32 s2, {ID_END}"); a("s_cbranch_scc1 K_end")
    prologue(a); stamp_init(a)
    a(f"s_cmp_ge_u32 s2, {ID_F}"); a("s_cbranch_scc1 K_fin")
    a(f"s_cmp_ge_u32 s2, {ID_G}"); a("s_cbranch_scc1 K_gu")
    a(f"s_cmp_ge_u32 s2, {ID_A}"); a("s_cbranch_scc1 K_attn")
    a(f"s_setprio {PRIO_KV}")
    a("s_and_b32 s4, s2, 7"); a("s_lshl_b32 s4, s4, 3"); a("s_lshr_b32 s5, s2, 3"); a("s_add_u32 s4, s4, s5")
    role_kv(a)
    a("s_lshl_b32 s12, s4, 2"); a(f"s_add_u32 s12, s12, {WS_FKV}")
    signal(a, "s12", 16, 256)
    stamp(a, 5)
    a("s_setprio 0")
    a("s_lshr_b32 s5, s2, 1"); a("s_and_b32 s6, s2, 1"); a("s_mul_i32 s6, s6, 14")
    a("s_cmp_ge_u32 s5, 14"); a("s_cselect_b32 s7, 14, 0"); a("s_add_u32 s4, s5, s7"); a("s_add_u32 s4, s4, s6")
    a("s_cmp_ge_u32 s5, 28"); a("s_cselect_b32 s4, 63, s4")
    role_colsum(a)
    a("s_branch K_flush")
    a.label("K_attn")
    a(f"s_setprio {PRIO_A}")
    a(f"s_sub_u32 s9, s2, {ID_A}"); map_attn_ids(a, 9)
    role_attn(a)
    a("s_branch K_flush")
    a.label("K_gu")
    a(f"s_setprio {PRIO_G}")
    a(f"s_sub_u32 s9, s2, {ID_G}"); map_gu_ids(a, 9)
    if SKIP_GU:
        srd(a, 52, S_WS, WS_SMALL_END)
        a("s_lshl_b32 s12, s4, 7"); a("s_lshl_b32 s13, s5, 2"); a("s_add_u32 s12, s12, s13"); a(f"s_add_u32 s12, s12, {WS_FH}")
        signal(a, "s12", 1, 0)
    else: role_gu(a)
    a("s_branch K_flush")
    a.label("K_fin")
    a(f"s_setprio {PRIO_F}")
    a(f"s_sub_u32 s9, s2, {ID_F}"); map_attn_ids(a, 9)
    if not SKIP_FIN: role_fin(a)
    a.label("K_flush")
    stamp_flush(a)
    a.label("K_end"); a("s_endpgm")
    out += khead(KN) + a.text() + kd(KN)
    return out

if __name__ == "__main__":
    dst = sys.argv[1] if len(sys.argv) > 1 else f"cdna_kernels/{NAME}.s"
    for arg in sys.argv[2:]:
        k, v = arg.split("="); globals()[k] = int(v)
    txt = build()
    open(dst, "w").write(txt)
    print("wrote", dst, len(txt))
```

```python
import sys, math
from asmlib import Asm, vr, sr

NAME = "parallel_sum__grouped_kv_mqa__glu_gated_geglu__prompt"
WS_KF = 0x0; WS_VF = 0x10000; WS_ST = 0x20000; WS_KM = 0x24000; WS_CS = 0x25000
WS_FKV = 0x30000
WS_FCS = 0x31000
WS_FH  = 0x32000
WS_FO  = 0x33000
WS_SMALL_END = 0x40000
WS_HF = 0x100000; WS_OF = 0x800000
HF_BYTES = 64*112*1024; OF_BYTES = 64*32*1024
WS_PROF = 0xC00000
S_X, S_WQ, S_WK, S_WV, S_WO, S_BX, S_WG, S_WU, S_WD, S_OUT, S_DBG, S_WS = 16,18,20,22,24,26,28,30,32,34,36,38
ONES_BF16 = 0x3F803F80
SC = "sc1"
HPROF = 0; PROF = 0; ATT_ITERS = 16; SKIP_GU = 0; SKIP_FIN = 0; SPIN_MAX = 200000; TOUCH = 1
PRIO_A = 1; PRIO_G = 0; PRIO_F = 0; PRIO_KV = 3
ID_A, ID_G, ID_F, ID_END = 32, 288, 512, 768

def prologue(a):
    a("""
    s_load_dwordx16 s[16:31], s[0:1], 0
    s_load_dwordx8 s[32:39], s[0:1], 64
    v_and_b32 v1, 63, v0
    v_lshrrev_b32 v2, 6, v0
    s_nop 0
    v_readfirstlane_b32 s3, v2
    s_waitcnt lgkmcnt(0)
    """)
def srd(a, d, ptr, nbytes, off=0):
    if off:
        a(f"s_add_u32 s{d}, s{ptr}, {off}")
        a(f"s_addc_u32 s{d+1}, s{ptr+1}, 0")
        a(f"s_and_b32 s{d+1}, s{d+1}, 0xffff")
    else:
        a(f"s_mov_b32 s{d}, s{ptr}")
        a(f"s_and_b32 s{d+1}, s{ptr+1}, 0xffff")
    a(f"s_mov_b32 s{d+2}, {nbytes}")
    a(f"s_mov_b32 s{d+3}, 0x00020000")

def stamp(a, idx):
    if not PROF: return
    a("s_memtime s[78:79]"); a("s_waitcnt lgkmcnt(0)"); a(f"s_mov_b32 s{80+idx}, s78")
def stamp_init(a):
    if not PROF: return
    a("s_memrealtime s[78:79]"); a("s_waitcnt lgkmcnt(0)"); a("s_mov_b32 s95, s78")
    for i in range(80, 95): a(f"s_mov_b32 s{i}, 0")
def stamp_flush(a):
    if not PROF: return
    L = a.newlabel("PF")
    a("s_cmp_lg_u32 s3, 0"); a(f"s_cbranch_scc1 {L}")
    a("s_memrealtime s[78:79]"); a("s_waitcnt lgkmcnt(0)"); a("s_mov_b32 s94, s78")
    srd(a, 72, S_WS, 0x100000, WS_PROF)
    a("s_lshl_b32 s76, s2, 6")
    a("v_mov_b32 v250, 0")
    set_exec(a, 1)
    for i in range(16):
        a(f"v_mov_b32 v251, s{80+i}")
        a(f"buffer_store_dword v251, v250, s[72:75], s76 offen offset:{4*i}")
    a("s_mov_b64 exec, -1")
    a.label(L)

def set_exec(a, m):
    if m == (1 << 64) - 1: a("s_mov_b64 exec, -1"); return
    a(f"s_mov_b32 exec_lo, {m & 0xffffffff:#x}"); a(f"s_mov_b32 exec_hi, {m >> 32:#x}")
def interleave(a, mains, fillers, start=0, per=1):
    fi = 0
    for i, m in enumerate(mains):
        a(m)
        if i >= start:
            for _ in range(per):
                if fi < len(fillers):
                    for x in fillers[fi]: a(x)
                    fi += 1
    while fi < len(fillers):
        for x in fillers[fi]: a(x)
        fi += 1
def dpp_wave_max(a, v):
    for mod in ("quad_perm:[1,0,3,2] row_mask:0xf bank_mask:0xf", "quad_perm:[2,3,0,1] row_mask:0xf bank_mask:0xf",
                "row_half_mirror row_mask:0xf bank_mask:0xf", "row_mirror row_mask:0xf bank_mask:0xf",
                "row_bcast:15 row_mask:0xa bank_mask:0xf", "row_bcast:31 row_mask:0xc bank_mask:0xf"):
        a("s_nop 1")
        a(f"v_max_f32_dpp v{v}, v{v}, v{v} {mod}")
def half_sum(a, v, t, op="v_add_f32"):
    a(f"v_mov_b32 v{t}, v{v}"); a("s_nop 1")
    a(f"v_permlane32_swap_b32 v{v}, v{t}"); a("s_nop 1")
    a(f"{op} v{v}, v{v}, v{t}")

def write_tag(a):
    L = a.newlabel("TAGW")
    a("s_or_b32 s76, s2, s3")
    a("s_cmp_lg_u32 s76, 0"); a(f"s_cbranch_scc1 {L}")
    a("s_memrealtime s[76:77]"); a("s_waitcnt lgkmcnt(0)")
    a("s_or_b32 s76, s76, 1")
    a("v_mov_b32 v2, 0"); a("v_mov_b32 v3, s76")
    set_exec(a, 1)
    a(f"global_store_dword v2, v3, s[{S_DBG}:{S_DBG+1}] sc0 sc1")
    a("s_mov_b64 exec, -1")
    a.label(L)
def get_tag(a):
    L = a.newlabel("TAG"); Ld = a.newlabel("TAGD")
    a("v_mov_b32 v2, 0")
    a(f"global_load_dword v3, v2, s[{S_DBG}:{S_DBG+1}]")
    a("s_waitcnt vmcnt(0)")
    a("v_readfirstlane_b32 s74, v3")
    a("s_cmp_lg_u32 s74, 0"); a(f"s_cbranch_scc1 {Ld}")
    a("s_mov_b32 s75, 0")
    a.label(L)
    a("s_sleep 4")
    a(f"global_load_dword v3, v2, s[{S_DBG}:{S_DBG+1}] sc0 sc1")
    a("s_waitcnt vmcnt(0)")
    a("v_readfirstlane_b32 s74, v3")
    a("s_cmp_lg_u32 s74, 0"); a(f"s_cbranch_scc1 {Ld}")
    a("s_add_u32 s75, s75, 1"); a(f"s_cmp_lt_u32 s75, {SPIN_MAX}"); a(f"s_cbranch_scc1 {L}")
    a.label(Ld)
def signal(a, off_sreg, ncopies, stride, have_tag=False):
    a("s_waitcnt vmcnt(0)")
    a("s_barrier")
    L = a.newlabel("SIG")
    a("s_cmp_lg_u32 s3, 0"); a(f"s_cbranch_scc1 {L}")
    if not have_tag: get_tag(a)
    a(f"v_mul_u32_u24 v2, {stride}, v1")
    a("v_mov_b32 v3, s74")
    set_exec(a, (1<<ncopies)-1)
    a(f"buffer_store_dword v3, v2, s[52:55], {off_sreg} offen sc0 sc1")
    a("s_mov_b64 exec, -1")
    a.label(L)
def poll(a, off_sreg, n, sleep=2):
    L = a.newlabel("POLL"); Ld = a.newlabel("POLLD")
    a("v_lshlrev_b32 v2, 2, v1")
    a("s_mov_b32 s75, 0")
    if n < 64: set_exec(a, (1<<n)-1)
    a.label(L)
    a(f"buffer_load_dword v3, v2, s[52:55], {off_sreg} offen sc0 sc1")
    a("s_waitcnt vmcnt(0)")
    a("v_cmp_ne_u32 vcc, s74, v3")
    a(f"s_cbranch_vccz {Ld}")
    a(f"s_sleep {sleep}")
    a("s_add_u32 s75, s75, 1"); a(f"s_cmp_lt_u32 s75, {SPIN_MAX}"); a(f"s_cbranch_scc1 {L}")
    a.label(Ld)
    a("s_mov_b64 exec, -1")
def wg_wait(a, waits, have_tag=False, pre=None):
    L = a.newlabel("WGW")
    a("s_cmp_lg_u32 s3, 0"); a(f"s_cbranch_scc1 {L}")
    if not have_tag: get_tag(a)
    if pre: pre(a)
    for off, n in waits: poll(a, off, n)
    a.label(L)
    a("s_barrier")

def role_kv(a):
    a.c("==== KV role ====")
    stamp(a, 0)
    XQ = [0, 16384, 32768, 0]
    L_W = 49152
    srd(a, 40, S_X, 2048*1024)
    a("v_lshrrev_b32 v5, 4, v1"); a("v_and_b32 v4, 15, v1"); a("v_xor_b32 v4, v4, v5"); a("v_lshlrev_b32 v4, 4, v4")
    a("v_lshl_add_u32 v4, v5, 10, v4")
    a("s_lshl_b32 s6, s4, 6"); a("s_lshl_b32 s7, s3, 4"); a("s_add_u32 s6, s6, s7"); a("s_lshl_b32 s6, s6, 10")
    a("s_lshl_b32 s7, s3, 12")
    for i in range(4): a(f"v_xor_b32 v{40+i}, {(4*i)<<4}, v4")
    def xdma(qd):
        return [[f"s_add_u32 m0, s7, {XQ[qd] + i*1024}", f"s_add_u32 s8, s6, {i*4096 + qd*256}",
                 f"buffer_load_dwordx4 v{40+i}, s[40:43], s8 offen lds"] for i in range(4)]
    for g in xdma(0):
        for x in g: a(x)
    srd(a, 44, S_WK, 16384); srd(a, 48, S_WV, 16384)
    a("v_lshlrev_b32 v3, 4, v1"); a("v_xor_b32 v5, 128, v3"); a("s_lshl_b32 s9, s3, 12")
    for i in range(4):
        a(f"s_add_u32 m0, s9, {L_W + i*1024}"); a(f"s_add_u32 s8, s9, {i*1024}")
        a("buffer_load_dwordx4 v3, s[44:47], s8 offen lds")
        a(f"s_add_u32 m0, s9, {L_W + 16384 + i*1024}")
        a("buffer_load_dwordx4 v5, s[48:51], s8 offen lds")
    for qd in (1, 2):
        for g in xdma(qd):
            for x in g: a(x)
    a("v_lshrrev_b32 v6, 1, v1"); a("v_lshlrev_b32 v6, 10, v6"); a("v_and_b32 v7, 1, v1"); a("v_lshl_add_u32 v6, v7, 7, v6")
    a("s_lshl_b32 s8, s4, 6"); a("s_and_b32 s10, s3, 1"); a("s_lshl_b32 s10, s10, 5"); a("s_add_u32 s8, s8, s10"); a("s_lshl_b32 s8, s8, 10"); a("s_add_u32 s8, s8, 768")
    a("buffer_load_dword v60, v6, s[40:43], s8 offen")
    srd(a, 52, S_WS, WS_SMALL_END)
    write_tag(a)
    a("v_and_b32 v6, 31, v1"); a("v_lshrrev_b32 v7, 5, v1")
    a("s_and_b32 s11, s3, 1"); a("s_lshr_b32 s10, s3, 1")
    a("v_and_b32 v8, 15, v1"); a("v_xor_b32 v8, v8, v7"); a("v_lshlrev_b32 v8, 4, v8"); a("v_lshl_add_u32 v8, v6, 8, v8")
    a("s_lshl_b32 s12, s10, 13"); a("v_add_u32 v8, s12, v8")
    for k in range(8): a(f"v_xor_b32 v{48+k}, {k<<5}, v8")
    a("v_bfe_u32 v9, v1, 4, 1"); a("v_lshlrev_b32 v10, 14, v9")
    a("v_bfe_u32 v11, v1, 2, 2"); a("v_lshl_add_u32 v11, v7, 3, v11"); a("v_lshl_add_u32 v10, v11, 5, v10")
    a("v_and_b32 v11, 3, v1"); a("v_lshl_add_u32 v10, v11, 3, v10"); a(f"v_add_u32 v10, {L_W}, v10")
    a("v_lshlrev_b32 v9, 7, v9"); a("v_add_u32 v11, v10, v9"); a("v_xor_b32 v9, 128, v9"); a("v_add_u32 v10, v10, v9")
    ACC = 16
    for i in range(16): a(f"v_mov_b32 v{ACC+i}, 0")
    for i in (12, 13, 14): a(f"v_mov_b32 v{i}, 0")
    a(f"v_mov_b32 v15, {ONES_BF16:#x}")
    a("s_waitcnt vmcnt(1)")
    a("s_barrier")
    stamp(a, 1)
    FR = 128
    XF = lambda s: FR + 8*(s & 3); WF = lambda s: FR + 8*(s & 3) + 4
    def reads(s):
        return [f"ds_read_b128 {vr(XF(s),4)}, v{48+(s&7)} offset:{XQ[s>>3]}",
                f"ds_read_b64_tr_b16 {vr(WF(s),2)}, v11 offset:{s*512}",
                f"ds_read_b64_tr_b16 {vr(WF(s)+2,2)}, v10 offset:{s*512}"]
    Ljoin = a.newlabel("KV_join"); Lw = [a.newlabel("KV_w") for _ in range(4)]
    for w in range(1, 4):
        a(f"s_cmp_eq_u32 s3, {w}"); a(f"s_cbranch_scc1 {Lw[w]}")
    for w in range(4):
        a.label(Lw[w])
        o = w & 1
        for s in range(3):
            for x in reads(s): a(x)
        for s in range(32):
            if s == 10:
                a("s_barrier")
                for g in xdma(3):
                    for x in g: a(x)
            if s == 21:
                a("s_waitcnt vmcnt(0)"); a("s_barrier")
            if s + 3 < 32:
                for x in reads(s+3): a(x)
            a(f"s_waitcnt lgkmcnt({3*min(3, 31-s)})")
            x, wf = XF(s), WF(s)
            if o == 0:
                a(f"v_mfma_f32_32x32x16_bf16 {vr(ACC,16)}, {vr(wf,4)}, {vr(x,4)}, {vr(ACC,16)}")
                for r in range(4): a(f"v_dot2_f32_bf16 v{12+(r&1)}, v{x+r}, v15, v{12+(r&1)}")
            else:
                a(f"v_mfma_f32_32x32x16_bf16 {vr(ACC,16)}, {vr(x,4)}, {vr(wf,4)}, {vr(ACC,16)}")
                for r in range(4): a(f"v_dot2_f32_bf16 v{12+(r&1)}, v{x+r}, v{x+r}, v{12+(r&1)}")
            a(f"v_dot2_f32_bf16 v14, v{wf+w}, v15, v14")
        if w < 3: a(f"s_branch {Ljoin}")
    a.label(Ljoin)
    stamp(a, 2)
    a("s_barrier")
    a("s_nop 3")
    a("v_add_f32 v12, v12, v13")
    a("v_lshlrev_b32 v2, 2, v1"); a("s_lshl_b32 s12, s3, 8"); a("v_add_u32 v2, s12, v2")
    a("ds_write_b32 v2, v12"); a("ds_write_b32 v2, v14 offset:1024")
    a("s_waitcnt lgkmcnt(0)"); a("s_barrier")
    a("v_lshlrev_b32 v2, 2, v6"); a("s_lshl_b32 s12, s10, 9"); a("v_add_u32 v3, s12, v2")
    a("ds_read2_b32 v[66:67], v3 offset0:0 offset1:32")
    a("ds_read2_b32 v[70:71], v3 offset0:64 offset1:96")
    a("v_add_u32 v4, 1024, v2")
    for k in range(4): a(f"ds_read2_b32 v[{72+2*k}:{73+2*k}], v4 offset0:{64*k} offset1:{64*k+32}")
    a("s_waitcnt lgkmcnt(0)")
    a("v_add_f32 v66, v66, v67"); a("v_add_f32 v70, v70, v71")
    a("v_add_f32 v72, v72, v73"); a("v_add_f32 v74, v74, v75"); a("v_add_f32 v76, v76, v77"); a("v_add_f32 v78, v78, v79")
    a(f"v_mul_f32 v66, {1.0/512.0!r}, v66"); a(f"v_mul_f32 v70, {1.0/512.0!r}, v70")
    a("v_add_f32 v72, v72, v74"); a("v_add_f32 v76, v76, v78")
    a("v_fma_f32 v70, -v66, v66, v70"); a("v_add_f32 v74, v72, v76"); a("v_max_f32 v70, 0, v70"); a("v_add_f32 v70, 0x3727c5ac, v70")
    a("v_rsq_f32 v70, v70"); a("s_nop 0")
    a("v_mul_f32 v66, v66, v70"); a("v_sub_f32 v66, 0, v66")
    a("s_lshl_b32 s12, s3, 9"); a("s_add_u32 s12, s12, 2048"); a("v_add_u32 v3, s12, v2")
    a("ds_write_b32 v3, v70"); a("ds_write_b32 v3, v66 offset:128"); a("ds_write_b32 v3, v74 offset:256")
    a("v_lshl_add_u32 v64, v7, 4, s12")
    a("s_lshl_b32 s13, s4, 1"); a("s_add_u32 s13, s13, s10")
    LV = a.newlabel("KV_V"); Lfin_end = a.newlabel("KV_finend")
    a("s_waitcnt lgkmcnt(0)")
    a("s_cmp_eq_u32 s11, 1"); a(f"s_cbranch_scc1 {LV}")
    a("ds_read_b128 v[76:79], v64 offset:256"); a("ds_read_b128 v[80:83], v64 offset:288")
    a("s_lshl_b32 s12, s13, 7"); a("v_add_u32 v65, s12, v2")
    set_exec(a, 0xffffffff)
    a(f"s_mov_b32 s14, {WS_ST}"); a(f"buffer_store_dword v70, v65, s[52:55], s14 offen {SC}")
    a(f"s_mov_b32 s14, {WS_ST+8192}"); a(f"buffer_store_dword v66, v65, s[52:55], s14 offen {SC}")
    a("s_mov_b64 exec, -1")
    a("v_and_b32 v64, 0x33, v1"); a("v_bfe_u32 v65, v1, 2, 1"); a("v_lshl_or_b32 v64, v65, 3, v64")
    a("v_bfe_u32 v65, v1, 3, 1"); a("v_lshl_or_b32 v64, v65, 2, v64"); a("v_lshlrev_b32 v64, 4, v64")
    a("s_lshl_b32 s12, s13, 10"); a(f"s_add_u32 s12, s12, {WS_KF}")
    a("s_waitcnt lgkmcnt(0)")
    for j in range(8): a(f"v_mul_f32 v{76+j}, v66, v{76+j}")
    for j in range(8): a(f"v_fma_f32 v{ACC+j}, v{ACC+j}, v70, v{76+j}")
    for j in range(4): a(f"v_cvt_pk_bf16_f32 v{88+j}, v{ACC+2*j}, v{ACC+2*j+1}")
    a(f"buffer_store_dwordx4 v[88:91], v64, s[52:55], s12 offen {SC}")
    a(f"v_mul_f32 v84, v{ACC}, v{ACC}"); a(f"v_mul_f32 v85, v{ACC+1}, v{ACC+1}")
    for j in range(2, 8): a(f"v_fmac_f32 v{84+(j&1)}, v{ACC+j}, v{ACC+j}")
    a("v_add_f32 v84, v84, v85")
    half_sum(a, 84, 85)
    dpp_wave_max(a, 84)
    a("s_lshl_b32 s12, s13, 2"); a(f"s_add_u32 s12, s12, {WS_KM}")
    a("v_mov_b32 v65, 0")
    set_exec(a, 1 << 63)
    a(f"buffer_store_dword v84, v65, s[52:55], s12 offen {SC}")
    a("s_mov_b64 exec, -1")
    a(f"s_branch {Lfin_end}")
    a.label(LV)
    for g in range(4):
        a(f"ds_read_b128 {vr(76+4*g,4)}, v64 offset:{32*g}")
        a(f"ds_read_b128 {vr(92+4*g,4)}, v64 offset:{128 + 32*g}")
    a("v_and_b32 v64, 15, v1"); a("v_lshl_add_u32 v64, v7, 4, v64"); a("v_lshlrev_b32 v64, 4, v64")
    a("s_lshl_b32 s12, s13, 10"); a(f"s_add_u32 s12, s12, {WS_VF}")
    a("s_waitcnt lgkmcnt(0)")
    for r in range(16): a(f"v_mul_f32 v{92+r}, v{92+r}, v74")
    for r in range(16): a(f"v_fma_f32 v{ACC+r}, v{ACC+r}, v{76+r}, v{92+r}")
    for j in range(8): a(f"v_cvt_pk_bf16_f32 v{108+j}, v{ACC+2*j}, v{ACC+2*j+1}")
    set_exec(a, 0xffff0000ffff0000)
    a(f"buffer_store_dwordx4 v[108:111], v64, s[52:55], s12 offen {SC}")
    a(f"buffer_store_dwordx4 v[112:115], v64, s[52:55], s12 offen offset:512 {SC}")
    a("s_mov_b64 exec, -1")
    a.label(Lfin_end)
    stamp(a, 3)

def role_colsum(a):
    a.c("==== colsum part ==== (s4 = block 0..55)")
    a("s_cmp_ge_u32 s4, 28")
    a(f"s_cselect_b32 s44, s{S_WU}, s{S_WG}"); a(f"s_cselect_b32 s45, s{S_WU+1}, s{S_WG+1}")
    a("s_and_b32 s45, s45, 0xffff"); a(f"s_mov_b32 s46, {512*3584}"); a("s_mov_b32 s47, 0x00020000")
    a("s_sub_u32 s5, s4, 28"); a("s_cmp_ge_u32 s4, 28"); a("s_cselect_b32 s5, s5, s4"); a("s_lshl_b32 s5, s5, 7")
    a("v_lshrrev_b32 v3, 3, v1"); a("v_mul_u32_u24 v3, 3584, v3")
    a("v_bfe_u32 v4, v1, 2, 1"); a("v_bfe_u32 v5, v1, 4, 1"); a("v_xor_b32 v4, v4, v5")
    a("v_lshl_add_u32 v3, v4, 6, v3"); a("v_and_b32 v4, 3, v1"); a("v_lshl_add_u32 v3, v4, 4, v3")
    a(f"s_mul_i32 s6, s3, {128*3584}"); a("s_add_u32 s6, s6, s5"); a("s_lshl_b32 s7, s3, 14")
    for k in range(16):
        a(f"s_add_u32 m0, s7, {k*1024}"); a(f"s_add_u32 s8, s6, {k*8*3584}")
        a("buffer_load_dwordx4 v3, s[44:47], s8 offen lds")
    a("v_lshrrev_b32 v7, 5, v1"); a("v_bfe_u32 v10, v1, 2, 2"); a("v_lshl_add_u32 v9, v7, 3, v10"); a("v_lshlrev_b32 v9, 7, v9")
    a("v_lshrrev_b32 v10, 1, v10"); a("v_xor_b32 v10, s3, v10"); a("v_and_b32 v10, 1, v10"); a("v_lshl_add_u32 v9, v10, 6, v9")
    a("v_bfe_u32 v10, v1, 4, 1"); a("v_lshl_add_u32 v9, v10, 5, v9"); a("v_and_b32 v10, 3, v1"); a("v_lshl_add_u32 v9, v10, 3, v9")
    a("s_lshr_b32 s8, s3, 1"); a("s_lshl_b32 s8, s8, 15"); a("v_add_u32 v9, s8, v9")
    for i in range(16): a(f"v_mov_b32 v{16+i}, 0")
    for i in range(4): a(f"v_mov_b32 v{32+i}, {ONES_BF16:#x}")
    a("s_waitcnt vmcnt(0)"); a("s_barrier")
    WF = lambda s: 40 + 4*(s & 3)
    def rd(s):
        a(f"ds_read_b64_tr_b16 {vr(WF(s),2)}, v9 offset:{(16*s)*128}")
        a(f"ds_read_b64_tr_b16 {vr(WF(s)+2,2)}, v9 offset:{(16*s+4)*128}")
    for s in range(3): rd(s)
    for s in range(16):
        if s + 3 < 16: rd(s+3)
        a(f"s_waitcnt lgkmcnt({2*min(3, 15-s)})")
        a(f"v_mfma_f32_32x32x16_bf16 v[16:31], {vr(WF(s),4)}, v[32:35], v[16:31]")
    a("s_barrier")
    a("v_lshlrev_b32 v3, 4, v1"); a("s_and_b32 s8, s3, 1"); a("s_lshl_b32 s8, s8, 12"); a("v_add_u32 v3, s8, v3")
    Lw = a.newlabel("CS_w"); Lsk = a.newlabel("CS_sk")
    a("s_nop 7"); a("s_nop 7")
    a("s_cmp_lt_u32 s3, 2"); a(f"s_cbranch_scc1 {Lw}")
    for q in range(4): a(f"ds_write_b128 v3, {vr(16+4*q,4)} offset:{q*1024}")
    a.label(Lw)
    a("s_waitcnt lgkmcnt(0)"); a("s_barrier")
    a("s_cmp_ge_u32 s3, 2"); a(f"s_cbranch_scc1 {Lsk}")
    for q in range(4): a(f"ds_read_b128 {vr(40+4*q,4)}, v3 offset:{q*1024}")
    a("s_lshl_b32 s12, s4, 8"); a("s_lshl_b32 s13, s3, 7"); a("s_add_u32 s12, s12, s13"); a(f"s_add_u32 s12, s12, {WS_CS}")
    a("v_lshlrev_b32 v3, 4, v7")
    a("s_waitcnt lgkmcnt(0)")
    for i in range(16): a(f"v_add_f32 v{16+i}, v{16+i}, v{40+i}")
    set_exec(a, 0x0000000100000001)
    for g in range(4): a(f"buffer_store_dwordx4 {vr(16+4*g,4)}, v3, s[52:55], s12 offen offset:{32*g} {SC}")
    a("s_mov_b64 exec, -1")
    a.label(Lsk)
    a("s_lshl_b32 s12, s4, 2"); a(f"s_add_u32 s12, s12, {WS_FCS}")
    signal(a, "s12", 8, 256, have_tag=True)

QSCALE = 0.25 * 1.4426950408889634
M_THRESH = 48.0
def role_attn(a):
    a.c("==== ATTN role ====")
    stamp(a, 0)
    srd(a, 40, S_X, 2048*1024)
    srd(a, 44, S_WQ, 512*1024)
    a("s_and_b32 s6, s3, 1"); a("s_lshr_b32 s7, s3, 1")
    a("v_lshrrev_b32 v3, 3, v1"); a("v_lshlrev_b32 v3, 10, v3")
    a("v_and_b32 v4, 7, v1"); a("v_lshrrev_b32 v5, 4, v1"); a("v_xor_b32 v6, v4, v5")
    a("v_lshl_add_u32 v8, v6, 4, v3"); a("v_xor_b32 v9, 64, v8")
    a("v_bfe_u32 v6, v1, 2, 1"); a("v_and_b32 v7, 1, v5"); a("v_xor_b32 v6, v6, v7")
    a("v_lshl_add_u32 v10, v6, 6, v3"); a("v_and_b32 v6, 3, v1"); a("v_lshl_add_u32 v10, v6, 4, v10")
    a("s_lshl_b32 s8, s4, 6"); a("s_lshl_b32 s9, s3, 4"); a("s_add_u32 s8, s8, s9"); a("s_lshl_b32 s8, s8, 10")
    a("s_lshl_b32 s9, s9, 10"); a("s_lshl_b32 s10, s5, 7"); a("s_add_u32 s9, s9, s10"); a("s_lshl_b32 s10, s3, 11")
    a("s_and_b32 s69, s4, 3"); a("s_lshl_b32 s69, s69, 1")
    def dma_groups(st):
        pre = ["s_lshl_b32 s12, s69, 7", "s_add_u32 s12, s12, s8", "s_lshl_b32 s13, s69, 16", "s_add_u32 s13, s13, s9",
               "s_add_u32 s69, s69, 1", "s_and_b32 s69, s69, 7"]
        gs = []
        for i in range(2):
            gs.append([f"s_add_u32 m0, s10, {st*16384 + i*1024}", f"s_add_u32 s11, s12, {i*8*1024}", f"buffer_load_dwordx4 v{8+i}, s[40:43], s11 offen lds"])
        for i in range(2):
            gs.append([f"s_add_u32 m0, s10, {st*16384 + 8192 + i*1024}", f"s_add_u32 s11, s13, {i*8*1024}", "buffer_load_dwordx4 v10, s[44:47], s11 offen lds"])
        gs[0] = pre + gs[0]
        return gs
    for c in range(4):
        for g in dma_groups(c):
            for x in g: a(x)
    srd(a, 52, S_WS, WS_SMALL_END)
    srd(a, 56, S_WS, OF_BYTES, WS_OF)
    srd(a, 60, S_WS, 65536, WS_KF)
    srd(a, 64, S_WS, 65536, WS_VF)
    a("v_and_b32 v6, 31, v1"); a("v_lshrrev_b32 v7, 5, v1")
    a("v_bfe_u32 v11, v1, 1, 3"); a("v_xor_b32 v11, v11, v7"); a("v_lshlrev_b32 v11, 4, v11"); a("v_lshl_add_u32 v11, v6, 7, v11")
    a("s_lshl_b32 s11, s7, 12"); a("v_add_u32 v12, s11, v11")
    for s in range(1, 4): a(f"v_xor_b32 v{12+s}, {s<<5}, v12")
    a("v_bfe_u32 v11, v1, 2, 2"); a("v_lshl_add_u32 v2, v7, 3, v11"); a("v_lshlrev_b32 v2, 7, v2")
    a("v_lshrrev_b32 v11, 1, v11"); a("v_xor_b32 v11, s6, v11"); a("v_lshl_add_u32 v2, v11, 6, v2")
    a("v_bfe_u32 v11, v1, 4, 1"); a("v_lshl_add_u32 v2, v11, 5, v2"); a("v_and_b32 v11, 3, v1"); a("v_lshl_add_u32 v4, v11, 3, v2")
    ACC = 16
    FR = lambda b, s: 64 + (b*4+s)*8
    for i in range(16): a(f"v_mov_b32 v{ACC+i}, 0")
    a("v_mov_b32 v48, 0"); a("v_mov_b32 v50, 0"); a(f"v_mov_b32 v49, {ONES_BF16:#x}")
    def read_groups(c):
        st = c % 4; b = c & 1
        return [[f"ds_read_b128 {vr(FR(b,s),4)}, v{12+s} offset:{st*16384}",
                 f"ds_read_b64_tr_b16 {vr(FR(b,s)+4,2)}, v4 offset:{st*16384 + 8192 + (16*s)*128}",
                 f"ds_read_b64_tr_b16 {vr(FR(b,s)+6,2)}, v4 offset:{st*16384 + 8192 + (16*s+4)*128}"] for s in range(4)]
    a("s_waitcnt vmcnt(12)"); a("s_barrier")
    stamp(a, 1)
    for g in read_groups(0):
        for x in g: a(x)
    for c in range(8):
        b = c & 1
        fill = []
        if c + 1 < 8:
            issued = min(c + 3, 7)
            a(f"s_waitcnt vmcnt({4*(issued-(c+1))}) lgkmcnt(0)")
            a("s_barrier")
            rg = read_groups(c+1)
            dg = dma_groups(c % 4) if c + 4 < 8 else [[], [], [], []]
            fill = [rg[k] + dg[k] for k in range(4)]
        else:
            a("s_waitcnt lgkmcnt(0)")
        mains = []
        for s_ in range(4):
            mains.append("\n".join([f"v_mfma_f32_32x32x16_bf16 {vr(ACC,16)}, {vr(FR(b,s_)+4,4)}, {vr(FR(b,s_),4)}, {vr(ACC,16)}"] +
                         [f"v_dot2_f32_bf16 v{48+2*(r&1)}, v{FR(b,s_)+4+r}, v49, v{48+2*(r&1)}" for r in range(4)]))
        interleave(a, mains, fill)
    stamp(a, 2)
    a("s_nop 3"); a("v_add_f32 v48, v48, v50")
    half_sum(a, 48, 49)
    a("s_lshl_b32 s11, s3, 8"); a("s_add_u32 s11, s11, 73728")
    a("v_lshl_add_u32 v11, v6, 2, s11"); a("ds_write_b32 v11, v48"); a("v_lshl_add_u32 v11, v7, 4, s11")
    CONST = 65536
    Lc = a.newlabel("A_c")
    a("s_cmp_lg_u32 s3, 3"); a(f"s_cbranch_scc1 {Lc}")
    a("v_lshrrev_b32 v5, 3, v1"); a("v_lshlrev_b32 v5, 9, v5"); a("v_and_b32 v8, 7, v1"); a("v_lshl_add_u32 v5, v8, 2, v5")
    a(f"v_add_u32 v5, {CONST}, v5")
    a("v_cmp_gt_u32 vcc, 4, v8"); a(f"v_mov_b32 v9, {ONES_BF16:#x}"); a("s_nop 0"); a("v_cndmask_b32 v9, 0, v9, vcc")
    a("ds_write_b32 v5, v9")
    a.label(Lc)
    a("s_waitcnt lgkmcnt(0)")
    for g in range(4): a(f"ds_read_b128 {vr(48+4*g,4)}, v11 offset:{32*g}")
    def pre(a):
        a("s_and_b32 s12, s2, 15"); a("s_lshl_b32 s12, s12, 8"); a(f"s_add_u32 s12, s12, {WS_FKV}")
    a("s_waitcnt lgkmcnt(0)")
    wg_wait(a, [("s12", 32)], pre=pre)
    stamp(a, 6)
    QA, QB, CA, CB, SA, SB, OA, OB = 32, 36, 48, 64, 80, 96, 112, 128
    KF = [144, 148]; VF = [[152, 156], [160, 164]]; IDX = 184
    STG = [192, 224]
    a("v_lshlrev_b32 v3, 4, v1"); a("s_lshl_b32 s12, s3, 10")
    def stage_load(soff_expr, st):
        for q in range(4):
            a(f"s_add_u32 s13, {soff_expr}, {q*4096}")
            a(f"buffer_load_dwordx4 {vr(STG[st]+8*q,4)}, v3, s[60:63], s13 offen {SC}")
            a(f"buffer_load_dwordx4 {vr(STG[st]+8*q+4,4)}, v3, s[64:67], s13 offen {SC}")
    def stage_write(st, slot):
        for q in range(4):
            a(f"ds_write_b128 v8, {vr(STG[st]+8*q,4)} offset:{slot*32768 + q*4096}")
            a(f"ds_write_b128 v8, {vr(STG[st]+8*q+4,4)} offset:{slot*32768 + 16384 + q*4096}")
    stage_load("s12", 0)
    a("s_lshl_b32 s13, s4, 6"); a("s_lshl_b32 s14, s7, 5"); a("s_add_u32 s13, s13, s14")
    a("v_add_u32 v11, s13, v6"); a("v_lshlrev_b32 v11, 2, v11")
    a(f"s_mov_b32 s14, {WS_ST}"); a(f"buffer_load_dword v186, v11, s[52:55], s14 offen {SC}")
    a(f"s_mov_b32 s14, {WS_ST+8192}"); a(f"buffer_load_dword v187, v11, s[52:55], s14 offen {SC}")
    a("v_lshlrev_b32 v11, 2, v1"); a(f"s_mov_b32 s14, {WS_KM}"); a(f"buffer_load_dword v188, v11, s[52:55], s14 offen {SC}")
    a("s_add_u32 s15, s12, 16384")
    stage_load("s15", 1)
    a(f"v_mov_b32 v{IDX}, 0xdddddddd")
    for i in range(16):
        a(f"v_mov_b32 v{OA+i}, 0"); a(f"v_mov_b32 v{OB+i}, 0"); a(f"v_mov_b32 v{SB+i}, 0")
    for r in range(4): a(f"v_mov_b32 v{VF[1][1]+r}, 0")
    a("v_add_u32 v8, s12, v3")
    a("v_and_b32 v5, 15, v1"); a("v_lshl_add_u32 v5, v7, 4, v5"); a("v_lshlrev_b32 v5, 4, v5"); a("v_add_u32 v5, 16384, v5")
    a("v_and_b32 v11, 27, v6"); a("v_cmp_eq_u32 vcc, 16, v11")
    a(f"v_mov_b32 v9, {CONST+16}"); a(f"v_mov_b32 v10, {CONST}"); a("v_cndmask_b32 v9, v9, v10, vcc")
    a("v_cmp_gt_u32 vcc, 16, v6"); a("s_nop 1")
    a("v_cndmask_b32 v5, v9, v5, vcc")
    a("v_cndmask_b32 v9, 0, 1, vcc")
    a("s_waitcnt vmcnt(8)")
    stamp(a, 7)
    stage_write(0, 0)
    a(f"v_mul_f32 v186, {QSCALE!r}, v186"); a(f"v_mul_f32 v187, {QSCALE!r}, v187")
    dpp_wave_max(a, 188)
    for r in range(16): a(f"v_mul_f32 v{48+r}, v187, v{48+r}")
    for r in range(16): a(f"v_fma_f32 v{ACC+r}, v{ACC+r}, v186, v{48+r}")
    a("v_readlane_b32 s14, v188, 63")
    for hd in range(2):
        for j in range(4): a(f"v_cvt_pk_bf16_f32 v{QA+4*hd+j}, v{ACC+8*hd+2*j}, v{ACC+8*hd+2*j+1}")
    a(f"v_mul_f32 v186, v{ACC}, v{ACC}"); a(f"v_mul_f32 v187, v{ACC+8}, v{ACC+8}")
    for j in range(1, 8):
        a(f"v_fmac_f32 v186, v{ACC+j}, v{ACC+j}"); a(f"v_fmac_f32 v187, v{ACC+8+j}, v{ACC+8+j}")
    half_sum(a, 186, 189); half_sum(a, 187, 190)
    a("v_mul_f32 v186, s14, v186"); a("v_mul_f32 v187, s14, v187")
    a("v_sqrt_f32 v186, v186"); a("v_sqrt_f32 v187, v187"); a("s_nop 0")
    a(f"v_mul_f32 v186, {1.015625!r}, v186"); a(f"v_mul_f32 v187, {1.015625!r}, v187")
    a("v_max_f32 v189, v186, v187")
    a(f"v_cmp_nge_f32 vcc, {M_THRESH!r}, v189")
    Lfast = a.newlabel("A_fast")
    a(f"s_cbranch_vccz {Lfast}")
    a.c("fallback: true row max")
    a("v_mov_b32 v186, 0xff800000"); a("v_mov_b32 v187, 0xff800000"); a("s_mov_b32 s14, 0")
    Lmx = a.newlabel("A_mx"); a.label(Lmx)
    a(f"buffer_load_dwordx4 {vr(KF[0],4)}, v3, s[60:63], s14 offen {SC}")
    a("s_waitcnt vmcnt(0)")
    a(f"v_mfma_f32_32x32x16_bf16 {vr(SA,16)}, {vr(KF[0],4)}, {vr(QA,4)}, 0")
    a(f"v_mfma_f32_32x32x16_bf16 {vr(CB,16)}, {vr(KF[0],4)}, {vr(QB,4)}, 0")
    a("s_nop 15"); a("s_nop 7")
    for i in range(0, 16, 2):
        a(f"v_max3_f32 v186, v{SA+i}, v{SA+i+1}, v186"); a(f"v_max3_f32 v187, v{CB+i}, v{CB+i+1}, v187")
    a("s_add_u32 s14, s14, 1024"); a("s_cmp_lt_u32 s14, 65536"); a(f"s_cbranch_scc1 {Lmx}")
    half_sum(a, 186, 189, "v_max_f32"); half_sum(a, 187, 189, "v_max_f32")
    a.label(Lfast)
    for i in range(16):
        a(f"v_sub_f32 v{CA+i}, 0, v186"); a(f"v_sub_f32 v{CB+i}, 0, v187")
    a("s_waitcnt vmcnt(0)")
    stage_write(1, 1)
    a("s_waitcnt lgkmcnt(0)")
    a("s_barrier")
    NTILE = 4*ATT_ITERS
    def ldsoff(t): return ((t >> 4) & 1)*32768 + (t & 15)*1024
    def lds_reads(t):
        bf = t & 1
        va = 12 + ((t >> 2) & 1)
        a(f"ds_read_b128 {vr(KF[bf],4)}, v3 offset:{ldsoff(t)}")
        a(f"ds_read_b128 {vr(VF[bf][0],4)}, v{va} offset:{(t & 3)*1024}")
        a(f"ds_read_b128 {vr(VF[bf][1],4)}, v{va} offset:{(t & 3)*1024+512}")
    def vaddr(body):
        a(f"s_mov_b32 s71, {ldsoff(4*body)}")
        a(f"v_mad_u32_u24 v{12 + (body & 1)}, v9, s71, v5")
    vaddr(0)
    lds_reads(0)
    a("s_waitcnt lgkmcnt(0)")
    a(f"v_mfma_f32_32x32x16_bf16 {vr(SA,16)}, {vr(KF[0],4)}, {vr(QA,4)}, {vr(CA,16)}")
    vaddr(1)
    a("s_nop 7")
    stamp(a, 3)
    a("s_nop 7")
    for t in range(NTILE):
        bf = t & 1; nb = bf ^ 1
        for i in range(32):
            if i == 1 and t in (16, 32, 28, 44): a("s_barrier")
            if i == 2:
                a(f"v_smfmac_f32_32x32x32_bf16 {vr(OB,16)}, {vr(VF[nb][1],4)}, {vr(SB+8,8)}, v{IDX}")
            if i == 5: lds_reads((t+1) % 64)
            if i == 9 and (t & 3) == 0 and t > 0: vaddr(t//4 + 1)
            if t in (20, 36) and i == 9: a("s_waitcnt vmcnt(0)")
            if t in (20, 21, 22, 23) and i in (10, 16):
                q = t - 20; k = 0 if i == 10 else 1
                a(f"ds_write_b128 v8, {vr(STG[0]+8*q+4*k,4)} offset:{0*32768 + k*16384 + q*4096}")
            if t in (36, 37, 38, 39) and i in (10, 16):
                q = t - 36; k = 0 if i == 10 else 1
                a(f"ds_write_b128 v8, {vr(STG[1]+8*q+4*k,4)} offset:{1*32768 + k*16384 + q*4096}")
            if t in (2, 3, 4, 5) and i in (10, 16):
                q = t - 2; k = 0 if i == 10 else 1
                a(f"s_add_u32 s13, s12, {2*16384 + q*4096}")
                a(f"buffer_load_dwordx4 {vr(STG[0]+8*q+4*k,4)}, v3, s[{60+4*k}:{63+4*k}], s13 offen {SC}")
            if t in (8, 9, 10, 11) and i in (10, 16):
                q = t - 8; k = 0 if i == 10 else 1
                a(f"s_add_u32 s13, s12, {3*16384 + q*4096}")
                a(f"buffer_load_dwordx4 {vr(STG[1]+8*q+4*k,4)}, v3, s[{60+4*k}:{63+4*k}], s13 offen {SC}")
            if i == 7:
                a(f"v_mfma_f32_32x32x16_bf16 {vr(SB,16)}, {vr(KF[bf],4)}, {vr(QB,4)}, {vr(CB,16)}")
            if i == 12:
                a(f"v_smfmac_f32_32x32x32_bf16 {vr(OA,16)}, {vr(VF[bf][0],4)}, {vr(SA,8)}, v{IDX}")
            if i == 18:
                a(f"v_smfmac_f32_32x32x32_bf16 {vr(OA,16)}, {vr(VF[bf][1],4)}, {vr(SA+8,8)}, v{IDX}")
            if i == 22:
                a("s_waitcnt lgkmcnt(0)")
            if i == 23:
                a(f"v_mfma_f32_32x32x16_bf16 {vr(SA,16)}, {vr(KF[nb],4)}, {vr(QA,4)}, {vr(CA,16)}")
            if i == 28:
                a(f"v_smfmac_f32_32x32x32_bf16 {vr(OB,16)}, {vr(VF[bf][0],4)}, {vr(SB,8)}, v{IDX}")
            reg = SA + i if i < 16 else SB + i - 16
            a(f"v_exp_f32 v{reg}, v{reg}")
    a("s_nop 1")
    a(f"v_smfmac_f32_32x32x32_bf16 {vr(OB,16)}, {vr(VF[1][1],4)}, {vr(SB+8,8)}, v{IDX}")
    stamp(a, 4)
    a("s_nop 15"); a("s_nop 7")
    a(f"v_rcp_f32 v186, v{OA+8}"); a(f"v_rcp_f32 v187, v{OB+8}"); a("s_nop 0")
    for j in range(8):
        a(f"v_mul_f32 v{OA+j}, v{OA+j}, v186"); a(f"v_mul_f32 v{OB+j}, v{OB+j}, v187")
    for j in range(4):
        a(f"v_cvt_pk_bf16_f32 v{SA+j}, v{OA+2*j}, v{OA+2*j+1}"); a(f"v_cvt_pk_bf16_f32 v{SA+4+j}, v{OB+2*j}, v{OB+2*j+1}")
    a("s_lshl_b32 s13, s4, 1"); a("s_add_u32 s13, s13, s7"); a("s_lshl_b32 s13, s13, 5")
    a("s_lshl_b32 s14, s5, 2"); a("s_add_u32 s13, s13, s14"); a("s_lshl_b32 s14, s6, 1"); a("s_add_u32 s13, s13, s14"); a("s_lshl_b32 s13, s13, 10")
    a(f"buffer_store_dwordx4 {vr(SA,4)}, v3, s[56:59], s13 offen {SC}")
    a(f"buffer_store_dwordx4 {vr(SA+4,4)}, v3, s[56:59], s13 offen offset:1024 {SC}")
    a("s_lshl_b32 s12, s4, 7"); a("s_lshl_b32 s13, s5, 2"); a("s_add_u32 s12, s12, s13"); a(f"s_add_u32 s12, s12, {WS_FO}")
    signal(a, "s12", 1, 0, have_tag=True)
    stamp(a, 5)

GK1 = -2.0 * 0.7978845608028654 * 1.4426950408889634
GK2 = GK1 * 0.044715
def role_gu(a):
    a.c("==== GU role ====")
    stamp(a, 0)
    srd(a, 40, S_X, 2048*1024); srd(a, 44, S_WG, 512*3584); srd(a, 48, S_WU, 512*3584)
    a("s_and_b32 s6, s3, 1"); a("s_lshr_b32 s7, s3, 1")
    STG = 24576
    a("v_lshrrev_b32 v3, 2, v1"); a("v_lshlrev_b32 v3, 10, v3"); a("v_and_b32 v4, 3, v1"); a("v_lshrrev_b32 v5, 4, v1")
    a("v_xor_b32 v2, v4, v5"); a("v_lshl_add_u32 v8, v2, 4, v3")
    a("v_mul_u32_u24 v9, 3584, v5"); a("v_bfe_u32 v3, v1, 2, 2"); a("v_xor_b32 v3, v3, v5")
    a("v_lshl_add_u32 v9, v3, 6, v9"); a("v_lshl_add_u32 v9, v4, 4, v9")
    a("s_lshl_b32 s8, s4, 7"); a("s_lshl_b32 s9, s3, 5"); a("s_add_u32 s8, s8, s9"); a("s_lshl_b32 s8, s8, 10")
    a(f"s_mul_i32 s9, s3, {8*3584}"); a("s_lshl_b32 s10, s5, 8"); a("s_add_u32 s9, s9, s10"); a("s_lshl_b32 s10, s3, 11")
    a("s_and_b32 s66, s4, 3"); a("s_lshl_b32 s66, s66, 2")
    def dma_groups(st):
        pre = ["s_lshl_b32 s12, s66, 6", "s_add_u32 s12, s12, s8", f"s_mul_i32 s13, s66, {32*3584}", "s_add_u32 s13, s13, s9",
               "s_add_u32 s66, s66, 1", "s_and_b32 s66, s66, 15"]
        gs = []
        for i in range(2):
            gs.append([f"s_add_u32 m0, s10, {st*STG + i*1024}", f"s_add_u32 s14, s12, {i*16*1024}", "buffer_load_dwordx4 v8, s[40:43], s14 offen lds"])
        for g in range(2):
            for i in range(2):
                gs.append([f"s_add_u32 m0, s10, {st*STG + 8192 + g*8192 + i*1024}", f"s_add_u32 s14, s13, {i*4*3584}",
                           f"buffer_load_dwordx4 v9, s[{44+4*g}:{47+4*g}], s14 offen lds"])
        gs[0] = pre + gs[0]
        return gs
    for st in range(3):
        for g in dma_groups(st):
            for x in g: a(x)
    NT = 0
    if TOUCH:
        a("v_lshrrev_b32 v2, 1, v1"); a("v_mul_u32_u24 v2, 3584, v2"); a("v_and_b32 v3, 1, v1"); a("v_lshl_add_u32 v2, v3, 7, v2")
        a("s_and_b32 s14, s4, 3"); a("s_lshl_b32 s14, s14, 2"); a("s_add_u32 s14, s14, s3"); a(f"s_mul_i32 s14, s14, {32*3584}")
        a("s_lshl_b32 s15, s5, 8"); a("s_add_u32 s14, s14, s15")
        a("buffer_load_dword v60, v2, s[44:47], s14 offen"); a("buffer_load_dword v61, v2, s[48:51], s14 offen")
        NT = 2
    srd(a, 52, S_WS, WS_SMALL_END); srd(a, 56, S_WS, HF_BYTES, WS_HF)
    a("v_and_b32 v6, 31, v1"); a("v_lshrrev_b32 v7, 5, v1")
    a("v_bfe_u32 v10, v1, 2, 2"); a("v_xor_b32 v10, v10, v7"); a("v_lshlrev_b32 v10, 4, v10"); a("v_lshl_add_u32 v10, v6, 6, v10")
    a("s_lshl_b32 s14, s6, 12"); a("v_add_u32 v10, s14, v10"); a("v_xor_b32 v11, 32, v10")
    a("v_bfe_u32 v2, v1, 2, 2"); a("v_lshl_add_u32 v12, v7, 3, v2"); a("v_lshlrev_b32 v12, 8, v12")
    a("s_lshl_b32 s14, s7, 1"); a("v_xor_b32 v2, s14, v2"); a("v_lshl_add_u32 v12, v2, 6, v12")
    a("v_bfe_u32 v2, v1, 4, 1"); a("v_lshl_add_u32 v12, v2, 5, v12"); a("v_and_b32 v2, 3, v1"); a("v_lshl_add_u32 v12, v2, 3, v12")
    a("v_add_u32 v12, 8192, v12"); a("v_xor_b32 v13, 64, v12")
    ACC = 128
    def acc(mt, ft, g): return ACC + ((mt*2+ft)*2+g)*16
    for i in range(128): a(f"v_mov_b32 v{ACC+i}, 0")
    XF = lambda b, mt: 64 + (b*2+mt)*4
    WF = lambda b, ft, g: 80 + ((b*2+ft)*2+g)*4
    for i in range(4): a(f"v_add_u32 v{14+i}, {2*STG}, v{10+i}")
    def read_list(st, sstep, b):
        base = 14 if st == 2 else 10
        so = 0 if st == 2 else st*STG
        L = []
        for mt in range(2): L.append(f"ds_read_b128 {vr(XF(b,mt),4)}, v{base+sstep} offset:{so + mt*2048}")
        for ft in range(2):
            for g in range(2):
                L.append(f"ds_read_b64_tr_b16 {vr(WF(b,ft,g),2)}, v{base+2+ft} offset:{so + g*8192 + (16*sstep)*256}")
                L.append(f"ds_read_b64_tr_b16 {vr(WF(b,ft,g)+2,2)}, v{base+2+ft} offset:{so + g*8192 + (16*sstep+4)*256}")
        return L
    def mfma_list(b):
        return [f"v_mfma_f32_32x32x16_bf16 {vr(acc(mt,ft,g),16)}, {vr(WF(b,ft,g),4)}, {vr(XF(b,mt),4)}, {vr(acc(mt,ft,g),16)}"
                for ft in range(2) for g in range(2) for mt in range(2)]
    a(f"s_waitcnt vmcnt({12+NT})"); a("s_barrier")
    stamp(a, 4)
    for x in read_list(0, 0, 0): a(x)
    pend = []
    for c in range(16):
        st = c % 3
        a("s_waitcnt lgkmcnt(0)")
        rl = read_list(st, 1, 1)
        fill = [rl[2*k:2*k+2] for k in range(5)] + pend
        pend = []
        interleave(a, mfma_list(0), fill)
        if c < 15:
            vm = 6 if c + 2 <= 15 else 0
            if c == 0: vm += NT
            a(f"s_waitcnt vmcnt({vm}) lgkmcnt(0)")
            a("s_barrier")
            rl = read_list((c+1) % 3, 0, 0)
            fill = [rl[2*k:2*k+2] for k in range(5)]
            if c + 3 <= 15:
                dg = dma_groups(st)
                fill += dg[:3]; pend = dg[3:]
            interleave(a, mfma_list(1), fill)
        else:
            a("s_waitcnt lgkmcnt(0)")
            interleave(a, mfma_list(1), [])
    stamp(a, 1)
    def pre(a):
        a("s_and_b32 s12, s2, 15"); a("s_lshl_b32 s12, s12, 8"); a(f"s_add_u32 s12, s12, {WS_FKV}")
        a("s_and_b32 s13, s2, 7"); a("s_lshl_b32 s13, s13, 8"); a(f"s_add_u32 s13, s13, {WS_FCS}")
    wg_wait(a, [("s12", 32), ("s13", 56)], pre=pre)
    a("s_lshl_b32 s8, s4, 7"); a("s_lshl_b32 s9, s6, 6"); a("s_add_u32 s8, s8, s9")
    a("v_add_u32 v2, s8, v6"); a("v_lshlrev_b32 v2, 2, v2")
    a(f"s_mov_b32 s9, {WS_ST}"); a(f"s_mov_b32 s10, {WS_ST+8192}")
    for mt in range(2):
        a(f"buffer_load_dword v{8+mt}, v2, s[52:55], s9 offen offset:{mt*128} {SC}")
        a(f"buffer_load_dword v{10+mt}, v2, s[52:55], s10 offen offset:{mt*128} {SC}")
    a("s_lshl_b32 s8, s5, 9"); a("s_lshl_b32 s9, s7, 8"); a("s_add_u32 s8, s8, s9"); a(f"s_add_u32 s8, s8, {WS_CS}"); a(f"s_add_u32 s9, s8, {1792*4}")
    a("v_lshlrev_b32 v2, 4, v7")
    CS = lambda ft, g: 64 + (ft*2+g)*16
    for ft in range(2):
        for g in range(2):
            for q in range(4):
                a(f"buffer_load_dwordx4 {vr(CS(ft,g)+4*q,4)}, v2, s[52:55], s{8+g} offen offset:{ft*128 + q*32} {SC}")
    a("v_lshlrev_b32 v3, 4, v1")
    a("s_lshl_b32 s8, s4, 2"); a("s_lshl_b32 s9, s6, 1"); a("s_add_u32 s8, s8, s9"); a("s_mul_i32 s8, s8, 112")
    a("s_lshl_b32 s9, s5, 3"); a("s_add_u32 s8, s8, s9"); a("s_lshl_b32 s9, s7, 2"); a("s_add_u32 s8, s8, s9"); a("s_lshl_b32 s8, s8, 10")
    a(f"v_mov_b32 v12, {GK1!r}"); a(f"v_mov_b32 v13, {GK2!r}")
    a("s_waitcnt vmcnt(0)")
    stamp(a, 2)
    T = 16
    for mt in range(2):
        for ft in range(2):
            G, U = acc(mt,ft,0), acc(mt,ft,1)
            for r0 in range(0, 16, 8):
                R = range(r0, r0+8)
                tt = lambda r: T + 2*(r - r0)
                for r in R: a(f"v_mul_f32 v{tt(r)}, v{10+mt}, v{CS(ft,0)+r}")
                for r in R: a(f"v_mul_f32 v{tt(r)+1}, v{10+mt}, v{CS(ft,1)+r}")
                for r in R: a(f"v_fma_f32 v{G+r}, v{G+r}, v{8+mt}, v{tt(r)}")
                for r in R: a(f"v_fma_f32 v{U+r}, v{U+r}, v{8+mt}, v{tt(r)+1}")
                for r in R: a(f"v_mul_f32 v{tt(r)}, v{G+r}, v{G+r}")
                for r in R: a(f"v_fma_f32 v{tt(r)}, v{tt(r)}, v13, v12")
                for r in R: a(f"v_mul_f32 v{tt(r)}, v{tt(r)}, v{G+r}")
                for r in R: a(f"v_exp_f32 v{tt(r)}, v{tt(r)}")
                for r in R: a(f"v_mul_f32 v{U+r}, v{U+r}, v{G+r}")
                for r in R: a(f"v_add_f32 v{tt(r)}, 1.0, v{tt(r)}")
                for r in R: a(f"v_rcp_f32 v{tt(r)}, v{tt(r)}")
                for r in R: a(f"v_mul_f32 v{U+r}, v{U+r}, v{tt(r)}")
            for j in range(8): a(f"v_cvt_pk_bf16_f32 v{G+j}, v{U+2*j}, v{U+2*j+1}")
            a(f"s_add_u32 s9, s8, {(mt*112 + 2*ft)*1024}")
            a(f"buffer_store_dwordx4 {vr(G,4)}, v3, s[56:59], s9 offen {SC}")
            a(f"buffer_store_dwordx4 {vr(G+4,4)}, v3, s[56:59], s9 offen offset:1024 {SC}")
    a("s_lshl_b32 s12, s4, 7"); a("s_lshl_b32 s13, s5, 2"); a("s_add_u32 s12, s12, s13"); a(f"s_add_u32 s12, s12, {WS_FH}")
    signal(a, "s12", 1, 0, have_tag=True)
    stamp(a, 3)

def role_fin(a):
    a.c("==== FIN role ====")
    stamp(a, 0)
    srd(a, 40, S_WD, 1792*1024); srd(a, 44, S_WO, 512*1024); srd(a, 48, S_X, 2048*1024); srd(a, 52, S_WS, WS_SMALL_END)
    srd(a, 56, S_WS, HF_BYTES, WS_HF); srd(a, 60, S_WS, OF_BYTES, WS_OF); srd(a, 64, S_OUT, 2048*1024)
    R = 7
    a("v_lshrrev_b32 v3, 3, v1"); a("v_lshlrev_b32 v3, 10, v3"); a("v_bfe_u32 v4, v1, 2, 1"); a("v_bfe_u32 v5, v1, 4, 1")
    a("v_xor_b32 v4, v4, v5"); a("v_lshl_add_u32 v8, v4, 6, v3"); a("v_and_b32 v4, 3, v1"); a("v_lshl_add_u32 v8, v4, 4, v8")
    a("v_lshlrev_b32 v9, 4, v1"); a("s_lshl_b32 s6, s3, 14")
    a("v_lshrrev_b32 v7, 5, v1"); a("v_and_b32 v6, 31, v1"); a("v_bfe_u32 v2, v1, 2, 2")
    a("v_lshl_add_u32 v10, v7, 2, v2"); a("v_lshlrev_b32 v10, 7, v10"); a("v_lshrrev_b32 v2, 1, v2"); a("v_lshl_add_u32 v10, v2, 6, v10")
    a("v_and_b32 v2, 1, v1"); a("v_lshl_add_u32 v10, v2, 5, v10"); a("v_bfe_u32 v2, v1, 4, 1"); a("v_lshl_add_u32 v10, v2, 4, v10")
    a("v_bfe_u32 v2, v1, 1, 1"); a("v_lshl_add_u32 v10, v2, 3, v10"); a("v_add_u32 v10, s6, v10"); a("v_xor_b32 v11, 64, v10")
    ACC = 192
    acc = lambda mt, nt: ACC + (mt*2+nt)*16
    for i in range(64): a(f"v_mov_b32 v{ACC+i}, 0")
    HB = lambda p, mt: 64 + (p*2+mt)*4
    WF = lambda b, nt: 128 + (b*2+nt)*4
    a("s_and_b32 s7, s3, 1"); a("s_lshr_b32 s8, s3, 1"); a("s_lshl_b32 s9, s4, 6"); a("s_lshl_b32 s10, s7, 5"); a("s_add_u32 s9, s9, s10")
    a("v_add_u32 v12, s9, v6"); a("v_lshlrev_b32 v12, 10, v12"); a("v_lshl_add_u32 v12, v7, 5, v12")
    a("s_lshl_b32 s9, s5, 7"); a("s_lshl_b32 s10, s8, 6"); a("s_add_u32 s9, s9, s10"); a("v_add_u32 v12, s9, v12")
    a("buffer_load_dwordx4 v[16:19], v12, s[48:51], 0 offen")
    a("buffer_load_dwordx4 v[20:23], v12, s[48:51], 0 offen offset:16")
    a("s_and_b32 s70, s4, 3"); a("s_mul_i32 s70, s70, 7"); a("s_mul_i32 s71, s5, 7"); a("s_lshr_b32 s71, s71, 1"); a("s_add_u32 s70, s70, s71")
    a("s_cmp_ge_u32 s70, 28"); a("s_cselect_b32 s71, 28, 0"); a("s_sub_u32 s70, s70, s71")
    a("s_mov_b32 s72, s70")
    a("s_lshl_b32 s11, s4, 1"); a("s_mul_i32 s11, s11, 112"); a("s_mul_i32 s12, s3, 28"); a("s_add_u32 s11, s11, s12"); a("s_lshl_b32 s11, s11, 10")
    a("s_lshl_b32 s12, s12, 14"); a("s_lshl_b32 s13, s5, 7"); a("s_add_u32 s12, s12, s13")
    def adv(reg):
        a(f"s_add_u32 s{reg}, s{reg}, 1"); a(f"s_cmp_eq_u32 s{reg}, 28"); a(f"s_cselect_b32 s{reg}, 0, s{reg}")
    def issue_w(slot):
        a("s_lshl_b32 s15, s70, 14"); a("s_add_u32 s15, s15, s12"); adv(70)
        for q in range(2):
            a(f"s_add_u32 m0, s6, {slot*2048 + q*1024}")
            a(f"s_add_u32 s14, s15, {q*8*1024}")
            a("buffer_load_dwordx4 v8, s[40:43], s14 offen lds")
    def issue_h(slot):
        a("s_lshl_b32 s15, s72, 10"); a("s_add_u32 s15, s15, s11"); adv(72)
        for mt in range(2):
            a(f"s_add_u32 s14, s15, {mt*112*1024}")
            a(f"buffer_load_dwordx4 {vr(HB(slot,mt),4)}, v9, s[56:59], s14 offen {SC}")
    def trreads(slot, b):
        for nt in range(2):
            a(f"ds_read_b64_tr_b16 {vr(WF(b,nt),2)}, v{10+nt} offset:{slot*2048}")
            a(f"ds_read_b64_tr_b16 {vr(WF(b,nt)+2,2)}, v{10+nt} offset:{slot*2048 + 8*128}")
    def mfmas(slot, b):
        for nt in range(2):
            for mt in range(2):
                a(f"v_mfma_f32_32x32x16_bf16 {vr(acc(mt,nt),16)}, {vr(WF(b,nt),4)}, {vr(HB(slot,mt),4)}, {vr(acc(mt,nt),16)}")
    for i in range(6): issue_w(i)
    def pre(a):
        a("s_lshr_b32 s14, s4, 1"); a("s_lshl_b32 s14, s14, 7"); a(f"s_add_u32 s14, s14, {WS_FH}")
    wg_wait(a, [("s14", 14)], pre=pre)
    stamp(a, 1)
    for i in range(6): issue_h(i)
    a("s_waitcnt vmcnt(12)")
    trreads(0, 0); trreads(1, 1)
    def grp_w(slot):
        g0 = ["s_lshl_b32 s15, s70, 14", "s_add_u32 s15, s15, s12", "s_add_u32 s70, s70, 1", "s_cmp_eq_u32 s70, 28", "s_cselect_b32 s70, 0, s70"]
        L = []
        for q in range(2):
            L.append([f"s_add_u32 m0, s6, {slot*2048 + q*1024}", f"s_add_u32 s14, s15, {q*8*1024}", "buffer_load_dwordx4 v8, s[40:43], s14 offen lds"])
        L[0] = g0 + L[0]
        return L
    def grp_h(slot):
        g0 = ["s_lshl_b32 s69, s72, 10", "s_add_u32 s69, s69, s11", "s_add_u32 s72, s72, 1", "s_cmp_eq_u32 s72, 28", "s_cselect_b32 s72, 0, s72"]
        L = []
        for mt in range(2):
            L.append([f"s_add_u32 s14, s69, {mt*112*1024}", f"buffer_load_dwordx4 {vr(HB(slot,mt),4)}, v9, s[56:59], s14 offen {SC}"])
        L[0] = g0 + L[0]
        return L
    N = 28
    for i in range(N):
        slot = i % R; b = i % 3
        last = min(i - 1, N - 7)
        if i <= 5: aH = 2*(5-i) + 4*(last+1)
        else: aH = 4*(last - (i-6))
        need = aH
        j = i + 2
        if j < N and j > 5: need = min(need, 2 + 4*(last - (j-6)))
        a(f"s_waitcnt vmcnt({min(need,63)}) lgkmcnt({4 if i+1 < N else 0})")
        mains = [f"v_mfma_f32_32x32x16_bf16 {vr(acc(mt,nt),16)}, {vr(WF(b,nt),4)}, {vr(HB(slot,mt),4)}, {vr(acc(mt,nt),16)}" for nt in range(2) for mt in range(2)]
        fill = []
        tr = []
        if j < N:
            for nt in range(2):
                tr += [f"ds_read_b64_tr_b16 {vr(WF(j%3,nt),2)}, v{10+nt} offset:{(j%R)*2048}", f"ds_read_b64_tr_b16 {vr(WF(j%3,nt)+2,2)}, v{10+nt} offset:{(j%R)*2048 + 8*128}"]
        if i + 6 < N:
            gw = grp_w((i+6) % R); gh = grp_h((i+6) % R)
            fill = [tr + gw[0], gw[1], gh[0], gh[1]]
        else:
            fill = [tr]
        interleave(a, mains, fill)
    stamp(a, 2)
    a("s_lshl_b32 s12, s3, 17"); a("s_add_u32 s12, s12, s13")
    for i in range(8):
        for q in range(2):
            a(f"s_add_u32 m0, s6, {i*2048 + q*1024}")
            a(f"s_add_u32 s14, s12, {(i*16 + q*8)*1024}")
            a("buffer_load_dwordx4 v8, s[44:47], s14 offen lds")
    a("s_waitcnt vmcnt(0)")
    WO = lambda i, nt: 128 + (i*2+nt)*4
    for i in range(8):
        for nt in range(2):
            a(f"ds_read_b64_tr_b16 {vr(WO(i,nt),2)}, v{10+nt} offset:{i*2048}")
            a(f"ds_read_b64_tr_b16 {vr(WO(i,nt)+2,2)}, v{10+nt} offset:{i*2048 + 8*128}")
        if i % 2 == 1: a("s_waitcnt lgkmcnt(0)")
    def pre(a):
        a("s_lshl_b32 s14, s4, 7"); a(f"s_add_u32 s14, s14, {WS_FO}")
    wg_wait(a, [("s14", 8)], have_tag=True, pre=pre)
    stamp(a, 5)
    a("s_lshl_b32 s11, s4, 6"); a("s_lshl_b32 s14, s3, 3"); a("s_add_u32 s11, s11, s14"); a("s_lshl_b32 s11, s11, 10")
    for i in range(8):
        for mt in range(2):
            a(f"s_add_u32 s14, s11, {i*1024 + mt*32*1024}")
            a(f"buffer_load_dwordx4 {vr(HB(i,mt),4)}, v9, s[60:63], s14 offen {SC}")
    for i in range(8):
        a(f"s_waitcnt vmcnt({2*(7-i)})")
        for nt in range(2):
            for mt in range(2):
                a(f"v_mfma_f32_32x32x16_bf16 {vr(acc(mt,nt),16)}, {vr(WO(i,nt),4)}, {vr(HB(i,mt),4)}, {vr(acc(mt,nt),16)}")
    stamp(a, 3)
    a("v_add_u32 v13, s6, v9")
    a("s_nop 7"); a("s_nop 7")
    Ls = [a.newlabel("F_own") for _ in range(4)]
    for tl in range(4):
        a(f"s_cmp_eq_u32 s3, {tl}"); a(f"s_cbranch_scc1 {Ls[tl]}")
        mt, nt = tl & 1, tl >> 1
        for q in range(4): a(f"ds_write_b128 v13, {vr(acc(mt,nt)+4*q,4)} offset:{tl*4096 + q*1024}")
        a.label(Ls[tl])
    Lm = [a.newlabel("F_mv") for _ in range(4)]; Ldone = a.newlabel("F_mvd")
    for tl in range(4):
        a(f"s_cmp_lg_u32 s3, {tl}"); a(f"s_cbranch_scc1 {Lm[tl]}")
        mt, nt = tl & 1, tl >> 1
        for i in range(16): a(f"v_mov_b32 v{24+i}, v{acc(mt,nt)+i}")
        a(f"s_branch {Ldone}")
        a.label(Lm[tl])
    a.label(Ldone)
    for j in range(8):
        a(f"v_lshlrev_b32 v40, 16, v{16+j}"); a(f"v_and_b32 v41, 0xffff0000, v{16+j}")
        a(f"v_add_f32 v{24+2*j}, v{24+2*j}, v40"); a(f"v_add_f32 v{24+2*j+1}, v{24+2*j+1}, v41")
    a("s_lshl_b32 s14, s3, 12"); a("v_add_u32 v13, s14, v9")
    a("s_waitcnt lgkmcnt(0)"); a("s_barrier")
    for k in range(1, 4):
        a(f"s_add_u32 s15, s3, {k}"); a("s_and_b32 s15, s15, 3"); a("s_lshl_b32 s15, s15, 14"); a("v_add_u32 v14, s15, v13")
        for q in range(4): a(f"ds_read_b128 {vr(64+16*(k-1)+4*q,4)}, v14 offset:{q*1024}")
    for k in range(3):
        a(f"s_waitcnt lgkmcnt({4*(2-k)})")
        for i in range(16): a(f"v_add_f32 v{24+i}, v{24+i}, v{64+16*k+i}")
    for j in range(8): a(f"v_cvt_pk_bf16_f32 v{64+j}, v{24+2*j}, v{24+2*j+1}")
    a("buffer_store_dwordx4 v[64:67], v12, s[64:67], 0 offen")
    a("buffer_store_dwordx4 v[68:71], v12, s[64:67], 0 offen offset:16")
    stamp(a, 4)

def kd(name, vgpr=256, sgpr=102):
    return f"""
.section .rodata,"a"
.p2align 6
.amdhsa_kernel {name}
  .amdhsa_next_free_vgpr {vgpr}
  .amdhsa_next_free_sgpr {sgpr}
  .amdhsa_accum_offset {vgpr}
  .amdhsa_group_segment_fixed_size 0
  .amdhsa_kernarg_size 96
  .amdhsa_user_sgpr_count 2
  .amdhsa_user_sgpr_kernarg_segment_ptr 1
  .amdhsa_system_sgpr_workgroup_id_x 1
.end_amdhsa_kernel
"""
def khead(name):
    return f""".text
.globl {name}
.p2align 8
.type {name},@function
{name}:
"""
HEADER = open(f"cdna_kernels/{NAME}.s.ref").read().split("; Override")[0]
def map_attn_ids(a, idreg):
    a(f"s_and_b32 s4, s{idreg}, 7"); a("s_lshl_b32 s4, s4, 2"); a(f"s_lshr_b32 s5, s{idreg}, 3")
    a("s_and_b32 s6, s5, 3"); a("s_add_u32 s4, s4, s6"); a("s_lshr_b32 s5, s5, 2")
def map_gu_ids(a, idreg):
    a(f"s_and_b32 s6, s{idreg}, 7"); a(f"s_lshr_b32 s7, s{idreg}, 3"); a("s_lshr_b32 s4, s6, 1"); a("s_lshl_b32 s4, s4, 2")
    a("s_and_b32 s8, s7, 3"); a("s_add_u32 s4, s4, s8"); a("s_and_b32 s5, s6, 1"); a("s_mul_i32 s5, s5, 7"); a("s_lshr_b32 s7, s7, 2"); a("s_add_u32 s5, s5, s7")

def build():
    out = HEADER
    out += f"; @launch grid=({ID_END},1,1) block=(256,1,1) lds=81920\n"
    out += '.amdgcn_target "amdgcn-amd-amdhsa--gfx950"\n'
    KN = NAME + "_kernel"
    a = Asm()
    a(f"s_cmp_ge_u32 s2, {ID_END}"); a("s_cbranch_scc1 K_end")
    prologue(a); stamp_init(a)
    if HPROF:
        a("s_memrealtime s[96:97]"); a("s_waitcnt lgkmcnt(0)")
    a(f"s_cmp_ge_u32 s2, {ID_F}"); a("s_cbranch_scc1 K_fin")
    a(f"s_cmp_ge_u32 s2, {ID_G}"); a("s_cbranch_scc1 K_gu")
    a(f"s_cmp_ge_u32 s2, {ID_A}"); a("s_cbranch_scc1 K_attn")
    a(f"s_setprio {PRIO_KV}")
    a("s_and_b32 s4, s2, 7"); a("s_lshl_b32 s4, s4, 2"); a("s_lshr_b32 s5, s2, 3"); a("s_add_u32 s4, s4, s5")
    role_kv(a)
    a("s_lshl_b32 s12, s4, 2"); a(f"s_add_u32 s12, s12, {WS_FKV}")
    signal(a, "s12", 16, 256)
    stamp(a, 5)
    a("s_setprio 0")
    a("s_lshr_b32 s67, s2, 1")
    Lcs = a.newlabel("CS_loop"); a.label(Lcs)
    a("s_and_b32 s6, s2, 1"); a("s_mul_i32 s6, s6, 14")
    a("s_cmp_ge_u32 s67, 14"); a("s_cselect_b32 s7, 14, 0"); a("s_add_u32 s4, s67, s7"); a("s_add_u32 s4, s4, s6")
    role_colsum(a)
    a("s_add_u32 s67, s67, 16"); a("s_cmp_lt_u32 s67, 28"); a(f"s_cbranch_scc1 {Lcs}")
    stamp(a, 4)
    a("s_branch K_flush")
    a.label("K_attn")
    a(f"s_setprio {PRIO_A}")
    a(f"s_sub_u32 s9, s2, {ID_A}"); map_attn_ids(a, 9)
    role_attn(a)
    a("s_branch K_flush")
    a.label("K_gu")
    a(f"s_setprio {PRIO_G}")
    a(f"s_sub_u32 s9, s2, {ID_G}"); map_gu_ids(a, 9)
    if SKIP_GU:
        srd(a, 52, S_WS, WS_SMALL_END)
        a("s_lshl_b32 s12, s4, 7"); a("s_lshl_b32 s13, s5, 2"); a("s_add_u32 s12, s12, s13"); a(f"s_add_u32 s12, s12, {WS_FH}")
        signal(a, "s12", 1, 0)
    else: role_gu(a)
    a("s_branch K_flush")
    a.label("K_fin")
    a(f"s_setprio {PRIO_F}")
    a(f"s_sub_u32 s9, s2, {ID_F}"); map_attn_ids(a, 9)
    if not SKIP_FIN: role_fin(a)
    a.label("K_flush")
    stamp_flush(a)
    if HPROF:
        L = a.newlabel("HP")
        a("s_cmp_lg_u32 s3, 0"); a(f"s_cbranch_scc1 {L}")
        a("s_and_b32 s76, s2, 3"); a("s_cmp_lg_u32 s76, 0"); a(f"s_cbranch_scc1 {L}")
        a("s_memrealtime s[98:99]"); a("s_waitcnt lgkmcnt(0)")
        a("s_not_b32 s96, s96")
        a("s_mov_b32 s76, 3"); a(f"s_cmp_ge_u32 s2, {ID_A}"); a("s_cselect_b32 s76, 4, s76"); a(f"s_cmp_ge_u32 s2, {ID_G}"); a("s_cselect_b32 s76, 5, s76")
        a(f"s_cmp_ge_u32 s2, {ID_F}"); a("s_cselect_b32 s76, 6, s76"); a("s_lshl_b32 s76, s76, 2")
        a("v_mov_b32 v2, 4"); a("v_mov_b32 v3, s96"); a("v_mov_b32 v4, s76"); a("v_mov_b32 v5, s98")
        set_exec(a, 1)
        a(f"global_atomic_umax v2, v3, s[{S_DBG}:{S_DBG+1}] sc1")
        a(f"global_atomic_umax v4, v5, s[{S_DBG}:{S_DBG+1}] sc1")
        a("s_mov_b64 exec, -1")
        a.label(L)
    a.label("K_end"); a("s_endpgm")
    out += khead(KN) + a.text() + kd(KN)
    return out

if __name__ == "__main__":
    dst = sys.argv[1] if len(sys.argv) > 1 else f"cdna_kernels/{NAME}.s"
    for arg in sys.argv[2:]:
        k, v = arg.split("="); globals()[k] = int(v)
    txt = build()
    open(dst, "w").write(txt)
    print("wrote", dst, len(txt))
```

```python
import sys, math
from asmlib import Asm, vr, sr

NAME = "parallel_sum__grouped_kv_mqa__glu_gated_geglu__prompt"
WS_KF = 0x0; WS_VF = 0x10000; WS_ST = 0x20000; WS_KM = 0x24000; WS_CS = 0x25000
WS_FKV = 0x30000
WS_FCS = 0x31000
WS_FH  = 0x32000
WS_FO  = 0x33000
WS_FST = 0x34000
WS_SMALL_END = 0x40000
WS_HF = 0x100000; WS_OF = 0x800000
HF_BYTES = 64*112*1024; OF_BYTES = 64*32*1024
WS_PROF = 0xC00000
S_X, S_WQ, S_WK, S_WV, S_WO, S_BX, S_WG, S_WU, S_WD, S_OUT, S_DBG, S_WS = 16,18,20,22,24,26,28,30,32,34,36,38
ONES_BF16 = 0x3F803F80
SC = "sc1"
HPROF = 0; PROF = 0; ATT_ITERS = 16; SKIP_GU = 0; SKIP_FIN = 0; SPIN_MAX = 200000; TOUCH = 1
TOUCH_A = 1; GU_DELAY = 0; SKIP_A = 0; GU_NOBAR = 0; GU_NODMA = 0; GU_NOREAD = 0; PRIO_GE = 3; PRIO_FT = 3; PRIO_A2 = 0; PRIO_A = 1; PRIO_G = 0; PRIO_F = 0; PRIO_KV = 3
ID_A, ID_G, ID_F, ID_END = 32, 288, 512, 768

def prologue(a):
    a("""
    s_load_dwordx16 s[16:31], s[0:1], 0
    s_load_dwordx8 s[32:39], s[0:1], 64
    v_and_b32 v1, 63, v0
    v_lshrrev_b32 v2, 6, v0
    s_nop 0
    v_readfirstlane_b32 s3, v2
    s_waitcnt lgkmcnt(0)
    """)
def srd(a, d, ptr, nbytes, off=0):
    if off:
        a(f"s_add_u32 s{d}, s{ptr}, {off}")
        a(f"s_addc_u32 s{d+1}, s{ptr+1}, 0")
        a(f"s_and_b32 s{d+1}, s{d+1}, 0xffff")
    else:
        a(f"s_mov_b32 s{d}, s{ptr}")
        a(f"s_and_b32 s{d+1}, s{ptr+1}, 0xffff")
    a(f"s_mov_b32 s{d+2}, {nbytes}")
    a(f"s_mov_b32 s{d+3}, 0x00020000")

def stamp(a, idx):
    if not PROF: return
    a("s_memtime s[78:79]"); a("s_waitcnt lgkmcnt(0)"); a(f"s_mov_b32 s{80+idx}, s78")
def stamp_init(a):
    if not PROF: return
    a("s_memrealtime s[78:79]"); a("s_waitcnt lgkmcnt(0)"); a("s_mov_b32 s95, s78")
    for i in range(80, 95): a(f"s_mov_b32 s{i}, 0")
def stamp_flush(a):
    if not PROF: return
    L = a.newlabel("PF")
    a("s_cmp_lg_u32 s3, 0"); a(f"s_cbranch_scc1 {L}")
    a("s_memrealtime s[78:79]"); a("s_waitcnt lgkmcnt(0)"); a("s_mov_b32 s94, s78")
    srd(a, 72, S_WS, 0x100000, WS_PROF)
    a("s_lshl_b32 s76, s2, 6")
    a("v_mov_b32 v250, 0")
    set_exec(a, 1)
    for i in range(16):
        a(f"v_mov_b32 v251, s{80+i}")
        a(f"buffer_store_dword v251, v250, s[72:75], s76 offen offset:{4*i}")
    a("s_mov_b64 exec, -1")
    a.label(L)

def set_exec(a, m):
    if m == (1 << 64) - 1: a("s_mov_b64 exec, -1"); return
    a(f"s_mov_b32 exec_lo, {m & 0xffffffff:#x}"); a(f"s_mov_b32 exec_hi, {m >> 32:#x}")
def interleave(a, mains, fillers, start=0, per=1):
    fi = 0
    for i, m in enumerate(mains):
        a(m)
        if i >= start:
            for _ in range(per):
                if fi < len(fillers):
                    for x in fillers[fi]: a(x)
                    fi += 1
    while fi < len(fillers):
        for x in fillers[fi]: a(x)
        fi += 1
def dpp_wave_max(a, v):
    for mod in ("quad_perm:[1,0,3,2] row_mask:0xf bank_mask:0xf", "quad_perm:[2,3,0,1] row_mask:0xf bank_mask:0xf",
                "row_half_mirror row_mask:0xf bank_mask:0xf", "row_mirror row_mask:0xf bank_mask:0xf",
                "row_bcast:15 row_mask:0xa bank_mask:0xf", "row_bcast:31 row_mask:0xc bank_mask:0xf"):
        a("s_nop 1")
        a(f"v_max_f32_dpp v{v}, v{v}, v{v} {mod}")
def half_sum(a, v, t, op="v_add_f32"):
    a(f"v_mov_b32 v{t}, v{v}"); a("s_nop 1")
    a(f"v_permlane32_swap_b32 v{v}, v{t}"); a("s_nop 1")
    a(f"{op} v{v}, v{v}, v{t}")

def write_tag(a):
    L = a.newlabel("TAGW")
    a("s_or_b32 s76, s2, s3")
    a("s_cmp_lg_u32 s76, 0"); a(f"s_cbranch_scc1 {L}")
    a("s_memrealtime s[76:77]"); a("s_waitcnt lgkmcnt(0)")
    a("s_or_b32 s76, s76, 1")
    a("v_mov_b32 v2, 0"); a("v_mov_b32 v3, s76")
    set_exec(a, 1)
    a(f"global_store_dword v2, v3, s[{S_DBG}:{S_DBG+1}] sc0 sc1")
    a("s_mov_b64 exec, -1")
    a.label(L)
def get_tag(a):
    L = a.newlabel("TAG"); Ld = a.newlabel("TAGD")
    a("v_mov_b32 v2, 0")
    a(f"global_load_dword v3, v2, s[{S_DBG}:{S_DBG+1}]")
    a("s_waitcnt vmcnt(0)")
    a("v_readfirstlane_b32 s74, v3")
    a("s_cmp_lg_u32 s74, 0"); a(f"s_cbranch_scc1 {Ld}")
    a("s_mov_b32 s75, 0")
    a.label(L)
    a("s_sleep 4")
    a(f"global_load_dword v3, v2, s[{S_DBG}:{S_DBG+1}] sc0 sc1")
    a("s_waitcnt vmcnt(0)")
    a("v_readfirstlane_b32 s74, v3")
    a("s_cmp_lg_u32 s74, 0"); a(f"s_cbranch_scc1 {Ld}")
    a("s_add_u32 s75, s75, 1"); a(f"s_cmp_lt_u32 s75, {SPIN_MAX}"); a(f"s_cbranch_scc1 {L}")
    a.label(Ld)
def signal(a, off_sreg, ncopies, stride, have_tag=False):
    a("s_waitcnt vmcnt(0)")
    a("s_barrier")
    L = a.newlabel("SIG")
    a("s_cmp_lg_u32 s3, 0"); a(f"s_cbranch_scc1 {L}")
    if not have_tag: get_tag(a)
    a(f"v_mul_u32_u24 v2, {stride}, v1")
    a("v_mov_b32 v3, s74")
    set_exec(a, (1<<ncopies)-1)
    a(f"buffer_store_dword v3, v2, s[52:55], {off_sreg} offen sc0 sc1")
    a("s_mov_b64 exec, -1")
    a.label(L)
def poll(a, off_sreg, n, sleep=2):
    L = a.newlabel("POLL"); Ld = a.newlabel("POLLD")
    a("v_lshlrev_b32 v2, 2, v1")
    a("s_mov_b32 s75, 0")
    if n < 64: set_exec(a, (1<<n)-1)
    a.label(L)
    a(f"buffer_load_dword v3, v2, s[52:55], {off_sreg} offen sc0 sc1")
    a("s_waitcnt vmcnt(0)")
    a("v_cmp_ne_u32 vcc, s74, v3")
    a(f"s_cbranch_vccz {Ld}")
    a(f"s_sleep {sleep}")
    a("s_add_u32 s75, s75, 1"); a(f"s_cmp_lt_u32 s75, {SPIN_MAX}"); a(f"s_cbranch_scc1 {L}")
    a.label(Ld)
    a("s_mov_b64 exec, -1")
def wg_wait(a, waits, have_tag=False, pre=None):
    L = a.newlabel("WGW")
    a("s_cmp_lg_u32 s3, 0"); a(f"s_cbranch_scc1 {L}")
    if not have_tag: get_tag(a)
    if pre: pre(a)
    for off, n in waits: poll(a, off, n)
    a.label(L)
    a("s_barrier")

def role_kv(a):
    a.c("==== KV role ====")
    stamp(a, 0)
    srd(a, 40, S_X, 2048*1024)
    a("s_mul_i32 s6, s3, 20480")
    a("v_lshrrev_b32 v3, 3, v1"); a("v_lshlrev_b32 v3, 10, v3"); a("v_and_b32 v4, 7, v1"); a("v_lshrrev_b32 v5, 4, v1"); a("v_xor_b32 v6, v4, v5")
    a("v_lshl_add_u32 v8, v6, 4, v3"); a("v_xor_b32 v9, 64, v8")
    a("s_lshl_b32 s8, s4, 16"); a("s_lshl_b32 s9, s3, 8"); a("s_add_u32 s8, s8, s9")
    def xblk(mt, half, ldsoff):
        L = []
        for i in range(4):
            L.append([f"s_add_u32 m0, s6, {ldsoff + i*1024}", f"s_add_u32 s10, s8, {(32*mt + 8*i)*1024 + half*128}",
                      f"buffer_load_dwordx4 v{8+(i&1)}, s[40:43], s10 offen lds"])
        return L
    for g in xblk(0, 0, 8192):
        for x in g: a(x)
    srd(a, 44, S_WK, 16384); srd(a, 48, S_WV, 16384)
    a("v_lshlrev_b32 v3, 4, v1"); a("v_xor_b32 v5, 128, v3"); a("s_lshl_b32 s9, s3, 12")
    for i in range(4):
        a(f"s_add_u32 m0, s6, {i*1024}"); a(f"s_add_u32 s10, s9, {i*1024}")
        a("buffer_load_dwordx4 v3, s[44:47], s10 offen lds")
        a(f"s_add_u32 m0, s6, {4096 + i*1024}"); a("s_nop 0")
        a("buffer_load_dwordx4 v5, s[48:51], s10 offen lds")
    for mt, half, off in ((0, 1, 12288), (1, 0, 16384)):
        for g in xblk(mt, half, off):
            for x in g: a(x)
    a("v_lshlrev_b32 v6, 10, v1"); a(f"s_add_u32 s10, s8, {32*1024 + 128}")
    set_exec(a, 0xffffffff)
    a("buffer_load_dword v200, v6, s[40:43], s10 offen")
    a("s_mov_b64 exec, -1")
    srd(a, 52, S_WS, WS_SMALL_END); srd(a, 60, S_WS, 65536, WS_KF); srd(a, 64, S_WS, 65536, WS_VF)
    write_tag(a)
    a("v_and_b32 v6, 31, v1"); a("v_lshrrev_b32 v7, 5, v1")
    a("v_bfe_u32 v11, v1, 1, 3"); a("v_xor_b32 v11, v11, v7"); a("v_lshlrev_b32 v11, 4, v11"); a("v_lshl_add_u32 v11, v6, 7, v11")
    a("v_add_u32 v12, s6, v11")
    for s_ in range(1, 4): a(f"v_xor_b32 v{12+s_}, {s_<<5}, v12")
    a("v_bfe_u32 v3, v1, 4, 1"); a("v_lshlrev_b32 v10, 12, v3")
    a("v_bfe_u32 v11, v1, 2, 2"); a("v_lshl_add_u32 v11, v7, 3, v11"); a("v_lshl_add_u32 v10, v11, 5, v10")
    a("v_and_b32 v11, 3, v1"); a("v_lshl_add_u32 v10, v11, 3, v10"); a("v_add_u32 v10, s6, v10")
    a("v_lshlrev_b32 v3, 7, v3"); a("v_xor_b32 v11, 128, v3"); a("v_add_u32 v11, v10, v11"); a("v_add_u32 v10, v10, v3")
    TK = [16, 32]; CS = 48; SX = [64, 80]
    for i in range(80): a(f"v_mov_b32 v{16+i}, 0")
    for i in range(4): a(f"v_mov_b32 v{128+i}, {ONES_BF16:#x}")
    for i in range(4): a(f"v_mov_b32 v{132+i}, 0")
    WF = lambda s_: 96 + 4*s_
    XB = lambda k: 144 + 4*k
    XOFF = {(0,0): 8192, (0,1): 12288, (1,0): 16384, (1,1): 8192}
    a("s_waitcnt vmcnt(1)")
    stamp(a, 1)
    for s_ in range(8):
        a(f"ds_read_b64_tr_b16 {vr(WF(s_),2)}, v10 offset:{s_*512}"); a(f"ds_read_b64_tr_b16 {vr(WF(s_)+2,2)}, v11 offset:{s_*512}")
    seq = [(mt, s_) for mt in range(2) for s_ in range(8)]
    def xread(k):
        mt, s_ = seq[k]
        return f"ds_read_b128 {vr(XB(k&3),4)}, v{12+(s_&3)} offset:{XOFF[(mt, s_>>2)]}"
    for k in range(3): a(xread(k))
    for k, (mt, s_) in enumerate(seq):
        if k == 12: a("s_waitcnt vmcnt(0)")
        x = XB(k & 3); w = WF(s_)
        nxt = k + 3
        if nxt < 16:
            if nxt == 12: a("s_waitcnt vmcnt(0)")
            a(xread(nxt))
        a(f"s_waitcnt lgkmcnt({min(3, 15-k)})")
        a(f"v_mfma_f32_32x32x16_bf16 {vr(TK[mt],16)}, {vr(w,4)}, {vr(x,4)}, {vr(TK[mt],16)}")
        L = []
        for r in range(4):
            lo, hi = 136 + 2*(r & 1), 137 + 2*(r & 1)
            L += [f"v_lshlrev_b32 v{lo}, 16, v{x+r}", f"v_and_b32 v{hi}, 0xffff0000, v{x+r}",
                  f"v_fma_f32 v{132+2*mt}, v{lo}, v{lo}, v{132+2*mt}", f"v_fma_f32 v{133+2*mt}, v{hi}, v{hi}, v{133+2*mt}"]
        for i_ in L[:6]: a(i_)
        a(f"v_mfma_f32_32x32x16_bf16 {vr(SX[mt],16)}, v[128:131], {vr(x,4)}, {vr(SX[mt],16)}")
        for i_ in L[6:12]: a(i_)
        if mt == 0:
            a(f"v_mfma_f32_32x32x16_bf16 {vr(CS,16)}, {vr(w,4)}, v[128:131], {vr(CS,16)}")
        for i_ in L[12:]: a(i_)
        if k == 4:
            for g in xblk(1, 1, 8192):
                for x_ in g: a(x_)
    stamp(a, 2)
    a("s_barrier")
    a("v_add_f32 v132, v132, v133"); a("v_add_f32 v134, v134, v135")
    a("v_lshlrev_b32 v3, 4, v1"); a("s_mul_i32 s9, s3, 12288"); a("v_add_u32 v2, s9, v3")
    for mt in range(2):
        for q in range(4): a(f"ds_write_b128 v2, {vr(TK[mt]+4*q,4)} offset:{mt*4096 + q*1024}")
    for q in range(4): a(f"ds_write_b128 v2, {vr(CS+4*q,4)} offset:{8192 + q*1024}")
    a("v_lshlrev_b32 v4, 2, v1"); a("s_lshl_b32 s9, s3, 10"); a("s_add_u32 s9, s9, 49152"); a("v_add_u32 v4, s9, v4")
    a(f"ds_write_b32 v4, v{SX[0]}"); a(f"ds_write_b32 v4, v{SX[1]} offset:256"); a("ds_write_b32 v4, v132 offset:512"); a("ds_write_b32 v4, v134 offset:768")
    get_tag(a)
    a("s_waitcnt lgkmcnt(0)"); a("s_barrier")
    a("v_lshlrev_b32 v3, 4, v1")
    a("s_and_b32 s10, s3, 1"); a("s_lshr_b32 s11, s3, 1")
    a("s_lshl_b32 s9, s10, 12"); a("s_lshl_b32 s12, s11, 11"); a("s_add_u32 s9, s9, s12"); a("v_add_u32 v2, s9, v3")
    a("v_add_u32 v4, s12, v3")
    for w in range(4):
        for q in range(2):
            a(f"ds_read_b128 {vr(16+8*w+4*q,4)}, v2 offset:{w*12288 + q*1024}")
            a(f"ds_read_b128 {vr(48+8*w+4*q,4)}, v4 offset:{w*12288 + 8192 + q*1024}")
    a("v_lshlrev_b32 v5, 2, v6"); a("s_lshl_b32 s9, s10, 8"); a("s_add_u32 s9, s9, 49152"); a("v_add_u32 v5, s9, v5")
    for w in range(4):
        a(f"ds_read_b32 v{80+w}, v5 offset:{w*1024}")
        a(f"ds_read_b32 v{84+2*w}, v5 offset:{w*1024 + 512}"); a(f"ds_read_b32 v{85+2*w}, v5 offset:{w*1024 + 512 + 128}")
    a("s_lshl_b32 s13, s4, 1"); a("s_add_u32 s13, s13, s10")
    a("s_waitcnt lgkmcnt(0)")
    for i in range(8):
        a(f"v_add_f32 v{16+i}, v{16+i}, v{24+i}"); a(f"v_add_f32 v{32+i}, v{32+i}, v{40+i}")
        a(f"v_add_f32 v{48+i}, v{48+i}, v{56+i}"); a(f"v_add_f32 v{64+i}, v{64+i}, v{72+i}")
    a("v_add_f32 v80, v80, v81"); a("v_add_f32 v82, v82, v83"); a("v_add_f32 v84, v84, v85"); a("v_add_f32 v86, v86, v87"); a("v_add_f32 v88, v88, v89"); a("v_add_f32 v90, v90, v91")
    a("v_add_f32 v80, v80, v82"); a("v_add_f32 v84, v84, v86"); a("v_add_f32 v88, v88, v90"); a("v_add_f32 v84, v84, v88")
    a(f"v_mul_f32 v80, {1.0/512.0!r}, v80"); a(f"v_mul_f32 v84, {1.0/512.0!r}, v84")
    a("v_fma_f32 v84, -v80, v80, v84"); a("v_max_f32 v84, 0, v84"); a("v_add_f32 v84, 0x3727c5ac, v84")
    a("v_rsq_f32 v86, v84")
    for i in range(8):
        a(f"v_add_f32 v{16+i}, v{16+i}, v{32+i}"); a(f"v_add_f32 v{48+i}, v{48+i}, v{64+i}")
    a("v_mul_f32 v87, v80, v86"); a("v_sub_f32 v87, 0, v87")
    for i in range(8): a(f"v_mul_f32 v{48+i}, v87, v{48+i}")
    for i in range(8): a(f"v_fma_f32 v{16+i}, v{16+i}, v86, v{48+i}")
    for j in range(4): a(f"v_cvt_pk_bf16_f32 v{64+j}, v{16+2*j}, v{16+2*j+1}")
    LV = a.newlabel("KV_V"); Lend = a.newlabel("KV_e")
    a("s_cmp_eq_u32 s11, 1"); a(f"s_cbranch_scc1 {LV}")
    a("v_and_b32 v2, 0x33, v1"); a("v_bfe_u32 v4, v1, 2, 1"); a("v_lshl_or_b32 v2, v4, 3, v2")
    a("v_bfe_u32 v4, v1, 3, 1"); a("v_lshl_or_b32 v2, v4, 2, v2"); a("v_lshlrev_b32 v2, 4, v2")
    a("s_lshl_b32 s12, s13, 10")
    a(f"buffer_store_dwordx4 v[64:67], v2, s[60:63], s12 offen {SC}")
    a("s_lshl_b32 s12, s13, 7"); a("v_lshl_add_u32 v4, v6, 2, s12")
    set_exec(a, 0xffffffff)
    a(f"s_mov_b32 s14, {WS_ST}"); a(f"buffer_store_dword v86, v4, s[52:55], s14 offen {SC}")
    a(f"s_mov_b32 s14, {WS_ST+8192}"); a(f"buffer_store_dword v87, v4, s[52:55], s14 offen {SC}")
    a("s_mov_b64 exec, -1")
    a("v_mul_f32 v84, v16, v16"); a("v_mul_f32 v85, v17, v17")
    for j in range(2, 8): a(f"v_fmac_f32 v{84+(j&1)}, v{16+j}, v{16+j}")
    a("v_add_f32 v84, v84, v85")
    half_sum(a, 84, 85)
    dpp_wave_max(a, 84)
    a("s_lshl_b32 s12, s13, 2"); a(f"s_add_u32 s14, s12, {WS_KM}"); a("v_mov_b32 v2, 0")
    set_exec(a, 1 << 63)
    a(f"buffer_store_dword v84, v2, s[52:55], s14 offen {SC}")
    a("s_mov_b64 exec, -1")
    a(f"s_branch {Lend}")
    a.label(LV)
    a("s_lshl_b32 s9, s10, 10"); a("s_add_u32 s9, s9, 57344")
    a("v_lshlrev_b32 v2, 1, v6"); a("v_lshl_add_u32 v2, v7, 8, v2"); a("v_add_u32 v2, s9, v2")
    for j in range(4):
        d0 = ((2*j) & 3) + 8*((2*j) >> 2); d1 = ((2*j+1) & 3) + 8*((2*j+1) >> 2)
        a(f"ds_write_b16 v2, v{64+j} offset:{d0*64}"); a(f"ds_write_b16_d16_hi v2, v{64+j} offset:{d1*64}")
    a("v_and_b32 v2, 15, v1"); a("v_lshlrev_b32 v4, 6, v2"); a("v_lshl_add_u32 v4, v7, 3, v4"); a("v_add_u32 v4, s9, v4")
    a("v_lshl_add_u32 v2, v7, 4, v2"); a("v_lshlrev_b32 v2, 4, v2")
    a("s_lshl_b32 s12, s13, 10")
    a("s_waitcnt lgkmcnt(0)")
    for c in range(2):
        a(f"ds_read_b64 {vr(72+4*c,2)}, v4 offset:{32*c}"); a(f"ds_read_b64 {vr(74+4*c,2)}, v4 offset:{32*c+16}")
    a("s_waitcnt lgkmcnt(0)")
    set_exec(a, 0x0000ffff0000ffff)
    a(f"buffer_store_dwordx4 v[72:75], v2, s[64:67], s12 offen {SC}")
    a(f"buffer_store_dwordx4 v[76:79], v2, s[64:67], s12 offen offset:512 {SC}")
    a("s_mov_b64 exec, -1")
    a.label(Lend)
    stamp(a, 3)

def role_colsum(a, have_tag=True):
    a.c("==== colsum part ==== (s4 = block 0..55)")
    a("s_cmp_ge_u32 s4, 28")
    a(f"s_cselect_b32 s44, s{S_WU}, s{S_WG}"); a(f"s_cselect_b32 s45, s{S_WU+1}, s{S_WG+1}")
    a("s_and_b32 s45, s45, 0xffff"); a(f"s_mov_b32 s46, {512*3584}"); a("s_mov_b32 s47, 0x00020000")
    a("s_sub_u32 s5, s4, 28"); a("s_cmp_ge_u32 s4, 28"); a("s_cselect_b32 s5, s5, s4"); a("s_lshl_b32 s5, s5, 7")
    a("v_lshrrev_b32 v3, 3, v1"); a("v_mul_u32_u24 v3, 3584, v3")
    a("v_bfe_u32 v4, v1, 2, 1"); a("v_bfe_u32 v5, v1, 4, 1"); a("v_xor_b32 v4, v4, v5")
    a("v_lshl_add_u32 v3, v4, 6, v3"); a("v_and_b32 v4, 3, v1"); a("v_lshl_add_u32 v3, v4, 4, v3")
    a(f"s_mul_i32 s6, s3, {128*3584}"); a("s_add_u32 s6, s6, s5"); a("s_lshl_b32 s7, s3, 14")
    for k in range(16):
        a(f"s_add_u32 m0, s7, {k*1024}"); a(f"s_add_u32 s8, s6, {k*8*3584}")
        a("buffer_load_dwordx4 v3, s[44:47], s8 offen lds")
    a("v_lshrrev_b32 v7, 5, v1"); a("v_bfe_u32 v10, v1, 2, 2"); a("v_lshl_add_u32 v9, v7, 3, v10"); a("v_lshlrev_b32 v9, 7, v9")
    a("v_lshrrev_b32 v10, 1, v10"); a("v_xor_b32 v10, s3, v10"); a("v_and_b32 v10, 1, v10"); a("v_lshl_add_u32 v9, v10, 6, v9")
    a("v_bfe_u32 v10, v1, 4, 1"); a("v_lshl_add_u32 v9, v10, 5, v9"); a("v_and_b32 v10, 3, v1"); a("v_lshl_add_u32 v9, v10, 3, v9")
    a("s_lshr_b32 s8, s3, 1"); a("s_lshl_b32 s8, s8, 15"); a("v_add_u32 v9, s8, v9")
    for i in range(16): a(f"v_mov_b32 v{16+i}, 0")
    for i in range(4): a(f"v_mov_b32 v{32+i}, {ONES_BF16:#x}")
    a("s_waitcnt vmcnt(0)"); a("s_barrier")
    WF = lambda s: 40 + 4*(s & 3)
    def rd(s):
        a(f"ds_read_b64_tr_b16 {vr(WF(s),2)}, v9 offset:{(16*s)*128}")
        a(f"ds_read_b64_tr_b16 {vr(WF(s)+2,2)}, v9 offset:{(16*s+4)*128}")
    for s in range(3): rd(s)
    for s in range(16):
        if s + 3 < 16: rd(s+3)
        a(f"s_waitcnt lgkmcnt({2*min(3, 15-s)})")
        a(f"v_mfma_f32_32x32x16_bf16 v[16:31], {vr(WF(s),4)}, v[32:35], v[16:31]")
    a("s_barrier")
    a("v_lshlrev_b32 v3, 4, v1"); a("s_and_b32 s8, s3, 1"); a("s_lshl_b32 s8, s8, 12"); a("v_add_u32 v3, s8, v3")
    Lw = a.newlabel("CS_w"); Lsk = a.newlabel("CS_sk")
    a("s_nop 7"); a("s_nop 7")
    a("s_cmp_lt_u32 s3, 2"); a(f"s_cbranch_scc1 {Lw}")
    for q in range(4): a(f"ds_write_b128 v3, {vr(16+4*q,4)} offset:{q*1024}")
    a.label(Lw)
    a("s_waitcnt lgkmcnt(0)"); a("s_barrier")
    a("s_cmp_ge_u32 s3, 2"); a(f"s_cbranch_scc1 {Lsk}")
    for q in range(4): a(f"ds_read_b128 {vr(40+4*q,4)}, v3 offset:{q*1024}")
    a("s_lshl_b32 s12, s4, 8"); a("s_lshl_b32 s13, s3, 7"); a("s_add_u32 s12, s12, s13"); a(f"s_add_u32 s12, s12, {WS_CS}")
    a("v_lshlrev_b32 v3, 4, v7")
    a("s_waitcnt lgkmcnt(0)")
    for i in range(16): a(f"v_add_f32 v{16+i}, v{16+i}, v{40+i}")
    set_exec(a, 0x0000000100000001)
    for g in range(4): a(f"buffer_store_dwordx4 {vr(16+4*g,4)}, v3, s[52:55], s12 offen offset:{32*g} {SC}")
    a("s_mov_b64 exec, -1")
    a.label(Lsk)
    a("s_lshl_b32 s12, s4, 2"); a(f"s_add_u32 s12, s12, {WS_FCS}")
    signal(a, "s12", 8, 256, have_tag=have_tag)

QSCALE = 0.25 * 1.4426950408889634
M_THRESH = 48.0
def role_attn(a):
    a.c("==== ATTN role ====")
    stamp(a, 0)
    L_W = 49152
    srd(a, 40, S_X, 2048*1024)
    srd(a, 44, S_WQ, 512*1024)
    a("s_and_b32 s6, s3, 1"); a("s_lshr_b32 s7, s3, 1")
    a("v_lshrrev_b32 v3, 3, v1"); a("v_lshlrev_b32 v3, 10, v3")
    a("v_and_b32 v4, 7, v1"); a("v_lshrrev_b32 v5, 4, v1"); a("v_xor_b32 v6, v4, v5")
    a("v_lshl_add_u32 v8, v6, 4, v3"); a("v_xor_b32 v9, 64, v8")
    a("v_bfe_u32 v6, v1, 2, 1"); a("v_and_b32 v7, 1, v5"); a("v_xor_b32 v6, v6, v7")
    a("v_lshl_add_u32 v10, v6, 6, v3"); a("v_and_b32 v6, 3, v1"); a("v_lshl_add_u32 v10, v6, 4, v10")
    a("s_lshl_b32 s8, s4, 6"); a("s_lshl_b32 s9, s3, 4"); a("s_add_u32 s8, s8, s9"); a("s_lshl_b32 s8, s8, 10")
    a("s_lshl_b32 s9, s9, 10"); a("s_lshl_b32 s10, s5, 7"); a("s_add_u32 s9, s9, s10"); a("s_lshl_b32 s10, s3, 11")
    a("s_and_b32 s69, s4, 3"); a("s_lshl_b32 s69, s69, 1")
    a("s_mov_b32 s68, s69")
    NST = 4
    def dma_groups(st):
        pre = ["s_lshl_b32 s12, s69, 7", "s_add_u32 s12, s12, s8", "s_lshl_b32 s13, s69, 16", "s_add_u32 s13, s13, s9",
               "s_add_u32 s69, s69, 1", "s_and_b32 s69, s69, 7"]
        gs = []
        for i in range(2):
            gs.append([f"s_add_u32 m0, s10, {st*16384 + i*1024}", f"s_add_u32 s11, s12, {i*8*1024}", f"buffer_load_dwordx4 v{8+i}, s[40:43], s11 offen lds"])
        for i in range(2):
            gs.append([f"s_add_u32 m0, s10, {st*16384 + 8192 + i*1024}", f"s_add_u32 s11, s13, {i*8*1024}", "buffer_load_dwordx4 v10, s[44:47], s11 offen lds"])
        gs[0] = pre + gs[0]
        return gs
    for g in dma_groups(0):
        for x in g: a(x)
    Lnt = a.newlabel("A_nt")
    a(f"s_branch {Lnt}")
    srd(a, 48, S_WK, 16384); srd(a, 52, S_WV, 16384)
    a("v_lshlrev_b32 v3, 4, v1"); a("v_xor_b32 v5, 128, v3"); a("s_lshl_b32 s11, s3, 12")
    for i in range(4):
        a(f"s_add_u32 m0, s11, {L_W + i*1024}"); a(f"s_add_u32 s12, s11, {i*1024}")
        a("buffer_load_dwordx4 v3, s[48:51], s12 offen lds")
        a(f"s_add_u32 m0, s11, {L_W + 16384 + i*1024}")
        a("buffer_load_dwordx4 v5, s[52:55], s12 offen lds")
    a.label(Lnt)
    for c in range(1, NST):
        for g in dma_groups(c):
            for x in g: a(x)
    NTA = 0
    if TOUCH_A:
        a("v_lshrrev_b32 v2, 3, v1"); a("v_lshlrev_b32 v2, 10, v2"); a("v_and_b32 v3, 7, v1"); a("v_lshl_add_u32 v2, v3, 7, v2")
        a("s_lshl_b32 s11, s4, 6"); a("s_lshl_b32 s12, s5, 3"); a("s_add_u32 s11, s11, s12"); a("s_lshl_b32 s11, s11, 10")
        a("v_lshlrev_b32 v3, 10, v1")
        a("s_and_b32 s12, s4, 3"); a("s_lshl_b32 s12, s12, 7"); a("s_and_b32 s13, s3, 1"); a("s_lshl_b32 s13, s13, 6"); a("s_add_u32 s12, s12, s13")
        a("s_lshl_b32 s12, s12, 10"); a("s_lshl_b32 s13, s5, 7"); a("s_add_u32 s12, s12, s13")
        Lt1 = a.newlabel("A_t1"); Lt2 = a.newlabel("A_t2")
        a("s_cmp_ge_u32 s3, 2"); a(f"s_cbranch_scc1 {Lt1}")
        a("buffer_load_dword v190, v3, s[44:47], s12 offen")
        a(f"s_branch {Lt2}")
        a.label(Lt1)
        a("buffer_load_dword v190, v2, s[40:43], s11 offen")
        a.label(Lt2)
        NTA = 1
    srd(a, 52, S_WS, WS_SMALL_END)
    srd(a, 56, S_WS, OF_BYTES, WS_OF)
    srd(a, 60, S_WS, 65536, WS_KF)
    srd(a, 64, S_WS, 65536, WS_VF)
    a("v_and_b32 v6, 31, v1"); a("v_lshrrev_b32 v7, 5, v1")
    a("v_bfe_u32 v11, v1, 1, 3"); a("v_xor_b32 v11, v11, v7"); a("v_lshlrev_b32 v11, 4, v11"); a("v_lshl_add_u32 v11, v6, 7, v11")
    a("s_lshl_b32 s11, s7, 12"); a("v_add_u32 v12, s11, v11")
    a("s_lshl_b32 s11, s6, 5"); a("v_xor_b32 v12, s11, v12")
    for v in range(1, 4): a(f"v_xor_b32 v{12+v}, {v<<5}, v12")
    a("v_bfe_u32 v11, v1, 2, 2"); a("v_lshl_add_u32 v2, v7, 3, v11"); a("v_lshlrev_b32 v2, 7, v2")
    a("v_lshrrev_b32 v11, 1, v11"); a("v_xor_b32 v11, s6, v11"); a("v_lshl_add_u32 v2, v11, 6, v2")
    a("v_bfe_u32 v11, v1, 4, 1"); a("v_lshl_add_u32 v2, v11, 5, v2"); a("v_and_b32 v11, 3, v1"); a("v_lshl_add_u32 v2, v11, 3, v2")
    a("s_lshl_b32 s11, s6, 11"); a("v_add_u32 v4, s11, v2"); a("v_subrev_u32 v5, s11, v2")
    a("v_bfe_u32 v3, v1, 4, 1"); a("v_lshlrev_b32 v140, 14, v3")
    a("v_bfe_u32 v11, v1, 2, 2"); a("v_lshl_add_u32 v11, v7, 3, v11"); a("v_lshl_add_u32 v140, v11, 5, v140")
    a("v_and_b32 v11, 3, v1"); a("v_lshl_add_u32 v140, v11, 3, v140")
    a("s_lshl_b32 s11, s6, 9"); a(f"s_add_u32 s11, s11, {L_W}"); a("v_add_u32 v140, s11, v140")
    a("v_lshlrev_b32 v3, 7, v3"); a("v_xor_b32 v11, 128, v3"); a("v_add_u32 v141, v140, v11"); a("v_add_u32 v140, v140, v3")
    a("v_xor_b32 v160, 4096, v14")
    XE = lambda b: 164 + 4*b
    ACC, TK, CSQ = 16, 32, 48
    FR = lambda b, v: 64 + (b*4+v)*8
    KW = lambda b, v2: 144 + (b*2+v2)*4
    for i in range(48): a(f"v_mov_b32 v{16+i}, 0")
    for i in range(4): a(f"v_mov_b32 v{128+i}, {ONES_BF16:#x}")
    for i in range(4): a(f"v_mov_b32 v{132+i}, 0")
    def read_groups(c, kind):
        st = c % NST; b = c & 1
        gs = []
        for v in range(4):
            wb = 4 if v % 2 == 0 else 5
            g = [f"ds_read_b128 {vr(FR(b,v),4)}, v{12+v} offset:{st*16384}",
                 f"ds_read_b64_tr_b16 {vr(FR(b,v)+4,2)}, v{wb} offset:{st*16384 + 8192 + v*2048}",
                 f"ds_read_b64_tr_b16 {vr(FR(b,v)+6,2)}, v{wb} offset:{st*16384 + 8192 + v*2048 + 512}"]
            if kind == "cs" and v == 2:
                g += [f"ds_read_b128 {vr(XE(b),4)}, v160 offset:{st*16384}"]
            if kind != "none" and v % 2 == 0:
                g += [f"ds_read_b64_tr_b16 {vr(KW(b,v//2),2)}, v142 offset:{v*512}",
                      f"ds_read_b64_tr_b16 {vr(KW(b,v//2)+2,2)}, v143 offset:{v*512}"]
            gs.append(g)
        if kind != "none":
            gs[0] = ["s_lshl_b32 s11, s68, 11", "v_add_u32 v142, s11, v140", "v_add_u32 v143, s11, v141",
                     "s_add_u32 s68, s68, 1", "s_and_b32 s68, s68, 7"] + gs[0]
        return gs
    def stats_instrs(x):
        L = []
        for r in range(4):
            lo, hi = 136 + 2*(r & 1), 137 + 2*(r & 1)
            L += [f"v_lshlrev_b32 v{lo}, 16, v{x+r}", f"v_and_b32 v{hi}, 0xffff0000, v{x+r}",
                  f"v_add_f32 v132, v132, v{lo}", f"v_add_f32 v133, v133, v{hi}",
                  f"v_fma_f32 v134, v{lo}, v{lo}, v134", f"v_fma_f32 v135, v{hi}, v{hi}, v135"]
        return L
    Ljoin = a.newlabel("Q_join"); Lk = {k: a.newlabel("Q_" + k) for k in ("none", "main", "cs")}
    for kind in ("none",):
        a.label(Lk[kind])
        extra = 0 if kind == "none" else 8
        a(f"s_waitcnt vmcnt({4*(NST-1)+NTA})"); a("s_barrier")
        stamp(a, 1)
        for g in read_groups(0, kind):
            for x in g: a(x)
        for c in range(8):
            b = c & 1
            fill = [[] for _ in range(4)]
            if c + 1 < 8:
                issued = min(c + NST - 1, 7)
                a(f"s_waitcnt vmcnt({4*(issued-(c+1)) + (NTA if c + 1 < NST else 0)}) lgkmcnt(0)")
                a("s_barrier")
                rg = read_groups(c+1, kind)
                dg = dma_groups(c % NST) if c + NST < 8 else [[], [], [], []]
                fill = [rg[k] + dg[k] for k in range(4)]
            else:
                a("s_waitcnt lgkmcnt(0)")
            for v in range(4):
                x, w = FR(b, v), FR(b, v) + 4
                st_ = []
                if kind == "main" and v == 0: st_ = stats_instrs(x)
                if kind == "cs" and v == 2: st_ = stats_instrs(XE(b))
                a(f"v_mfma_f32_32x32x16_bf16 {vr(ACC,16)}, {vr(w,4)}, {vr(x,4)}, {vr(ACC,16)}")
                for i_ in st_[0:6]: a(i_)
                for i_ in fill[v][:len(fill[v])//2]: a(i_)
                a(f"v_mfma_f32_32x32x16_bf16 {vr(CSQ,16)}, {vr(w,4)}, v[128:131], {vr(CSQ,16)}")
                for i_ in st_[6:12]: a(i_)
                for i_ in fill[v][len(fill[v])//2:]: a(i_)
                if kind != "none" and v % 2 == 0:
                    bop = vr(x,4) if kind == "main" else "v[128:131]"
                    a(f"v_mfma_f32_32x32x16_bf16 {vr(TK,16)}, {vr(KW(b,v//2),4)}, {bop}, {vr(TK,16)}")
                for i_ in st_[12:]: a(i_)
        if kind != "none": a(f"s_branch {Ljoin}")
    a.label(Ljoin)
    stamp(a, 2)
    CONST = 65536
    Lc = a.newlabel("A_c")
    a("s_cmp_lg_u32 s3, 3"); a(f"s_cbranch_scc1 {Lc}")
    a("v_lshrrev_b32 v5, 3, v1"); a("v_lshlrev_b32 v5, 9, v5"); a("v_and_b32 v8, 7, v1"); a("v_lshl_add_u32 v5, v8, 2, v5")
    a(f"v_add_u32 v5, {CONST}, v5")
    a("v_cmp_gt_u32 vcc, 4, v8"); a(f"v_mov_b32 v9, {ONES_BF16:#x}"); a("s_nop 0"); a("v_cndmask_b32 v9, 0, v9, vcc")
    a("ds_write_b32 v5, v9")
    a.label(Lc)
    Lnt2 = a.newlabel("A_nt2")
    a("s_cmp_ge_u32 s100, 32"); a(f"s_cbranch_scc1 {Lnt2}")
    a("v_mul_u32_u24 v201, 3584, v1")
    for blk in range(2):
        Ls = a.newlabel("KV_tk")
        a("s_lshr_b32 s9, s100, 1"); a(f"s_add_u32 s9, s9, {16*blk}")
        a("s_cmp_ge_u32 s9, 28"); a(f"s_cbranch_scc1 {Ls}")
        a("s_and_b32 s10, s100, 1"); a("s_mul_i32 s10, s10, 14")
        a("s_cmp_ge_u32 s9, 14"); a(f"s_cselect_b32 s68, s{S_WU}, s{S_WG}"); a(f"s_cselect_b32 s69, s{S_WU+1}, s{S_WG+1}")
        a("s_cselect_b32 s11, 14, 0"); a("s_sub_u32 s9, s9, s11"); a("s_add_u32 s9, s9, s10"); a("s_lshl_b32 s9, s9, 7")
        a("s_and_b32 s69, s69, 0xffff"); a(f"s_mov_b32 s70, {512*3584}"); a("s_mov_b32 s71, 0x00020000")
        a(f"s_mul_i32 s10, s3, {128*3584}"); a("s_add_u32 s9, s9, s10")
        a("buffer_load_dword v202, v201, s[68:71], s9 offen")
        a(f"s_add_u32 s9, s9, {64*3584}")
        a("buffer_load_dword v203, v201, s[68:71], s9 offen")
        a.label(Ls)
    a.label(Lnt2)
    def pre(a):
        a("s_and_b32 s12, s2, 15"); a("s_lshl_b32 s12, s12, 8"); a(f"s_add_u32 s12, s12, {WS_FKV}")
    a("s_waitcnt lgkmcnt(0)")
    wg_wait(a, [("s12", 32)], pre=pre)
    stamp(a, 6)
    CA, CB, SA, SB, OA, OB = 48, 64, 80, 96, 112, 128
    KF = [32, 36]; VF = [[152, 156], [160, 164]]; IDX = 184
    STG = [192, 224]
    a("v_lshlrev_b32 v3, 4, v1"); a("s_lshl_b32 s12, s3, 10")
    def stage_load(soff_expr, st):
        for q in range(4):
            a(f"s_add_u32 s13, {soff_expr}, {q*4096}")
            a(f"buffer_load_dwordx4 {vr(STG[st]+8*q,4)}, v3, s[60:63], s13 offen {SC}")
            a(f"buffer_load_dwordx4 {vr(STG[st]+8*q+4,4)}, v3, s[64:67], s13 offen {SC}")
    def stage_write(st, slot):
        for q in range(4):
            a(f"ds_write_b128 v8, {vr(STG[st]+8*q,4)} offset:{slot*32768 + q*4096}")
            a(f"ds_write_b128 v8, {vr(STG[st]+8*q+4,4)} offset:{slot*32768 + 16384 + q*4096}")
    QA, QB = 144, 148
    a("s_lshl_b32 s13, s4, 6"); a("s_lshl_b32 s14, s7, 5"); a("s_add_u32 s13, s13, s14")
    a("v_add_u32 v11, s13, v6"); a("v_lshlrev_b32 v11, 2, v11")
    a(f"s_mov_b32 s14, {WS_ST}"); a(f"buffer_load_dword v186, v11, s[52:55], s14 offen {SC}")
    a(f"s_mov_b32 s14, {WS_ST+8192}"); a(f"buffer_load_dword v187, v11, s[52:55], s14 offen {SC}")
    a("v_lshlrev_b32 v11, 2, v1"); a(f"s_mov_b32 s14, {WS_KM}"); a(f"buffer_load_dword v188, v11, s[52:55], s14 offen {SC}")
    stage_load("s12", 0)
    a("s_add_u32 s15, s12, 16384")
    stage_load("s15", 1)
    a(f"v_mov_b32 v{IDX}, 0xdddddddd")
    for i in range(16):
        a(f"v_mov_b32 v{OA+i}, 0"); a(f"v_mov_b32 v{OB+i}, 0"); a(f"v_mov_b32 v{SB+i}, 0")
    for r in range(4): a(f"v_mov_b32 v{VF[1][1]+r}, 0")
    a("v_add_u32 v8, s12, v3")
    a("v_and_b32 v5, 15, v1"); a("v_lshl_add_u32 v5, v7, 4, v5"); a("v_lshlrev_b32 v5, 4, v5"); a("v_add_u32 v5, 16384, v5")
    a("v_and_b32 v11, 27, v6"); a("v_cmp_eq_u32 vcc, 16, v11")
    a(f"v_mov_b32 v9, {CONST+16}"); a(f"v_mov_b32 v10, {CONST}"); a("v_cndmask_b32 v9, v9, v10, vcc")
    a("v_cmp_gt_u32 vcc, 16, v6"); a("s_nop 1")
    a("v_cndmask_b32 v5, v9, v5, vcc")
    a("v_cndmask_b32 v9, 0, 1, vcc")
    a("s_waitcnt vmcnt(16)")
    stamp(a, 7)
    a(f"v_mul_f32 v186, {QSCALE!r}, v186"); a(f"v_mul_f32 v187, {QSCALE!r}, v187")
    dpp_wave_max(a, 188)
    for r in range(16): a(f"v_mul_f32 v{CSQ+r}, v187, v{CSQ+r}")
    for r in range(16): a(f"v_fma_f32 v{ACC+r}, v{ACC+r}, v186, v{CSQ+r}")
    a("v_readlane_b32 s14, v188, 63")
    for hd in range(2):
        for j in range(4): a(f"v_cvt_pk_bf16_f32 v{QA+4*hd+j}, v{ACC+8*hd+2*j}, v{ACC+8*hd+2*j+1}")
    a(f"v_mul_f32 v186, v{ACC}, v{ACC}"); a(f"v_mul_f32 v187, v{ACC+8}, v{ACC+8}")
    for j in range(1, 8):
        a(f"v_fmac_f32 v186, v{ACC+j}, v{ACC+j}"); a(f"v_fmac_f32 v187, v{ACC+8+j}, v{ACC+8+j}")
    half_sum(a, 186, 189); half_sum(a, 187, 190)
    a("v_mul_f32 v186, s14, v186"); a("v_mul_f32 v187, s14, v187")
    a("v_sqrt_f32 v186, v186"); a("v_sqrt_f32 v187, v187"); a("s_nop 0")
    a(f"v_mul_f32 v186, {1.015625!r}, v186"); a(f"v_mul_f32 v187, {1.015625!r}, v187")
    a("v_max_f32 v189, v186, v187")
    a(f"v_cmp_nge_f32 vcc, {M_THRESH!r}, v189")
    Lfast = a.newlabel("A_fast")
    a(f"s_cbranch_vccz {Lfast}")
    a.c("fallback: true row max")
    a("v_mov_b32 v186, 0xff800000"); a("v_mov_b32 v187, 0xff800000"); a("s_mov_b32 s14, 0")
    Lmx = a.newlabel("A_mx"); a.label(Lmx)
    a(f"buffer_load_dwordx4 {vr(KF[0],4)}, v3, s[60:63], s14 offen {SC}")
    a("s_waitcnt vmcnt(0)")
    a(f"v_mfma_f32_32x32x16_bf16 {vr(SA,16)}, {vr(KF[0],4)}, {vr(QA,4)}, 0")
    a(f"v_mfma_f32_32x32x16_bf16 {vr(CB,16)}, {vr(KF[0],4)}, {vr(QB,4)}, 0")
    a("s_nop 15"); a("s_nop 7")
    for i in range(0, 16, 2):
        a(f"v_max3_f32 v186, v{SA+i}, v{SA+i+1}, v186"); a(f"v_max3_f32 v187, v{CB+i}, v{CB+i+1}, v187")
    a("s_add_u32 s14, s14, 1024"); a("s_cmp_lt_u32 s14, 65536"); a(f"s_cbranch_scc1 {Lmx}")
    half_sum(a, 186, 189, "v_max_f32"); half_sum(a, 187, 189, "v_max_f32")
    a.label(Lfast)
    for i in range(16):
        a(f"v_sub_f32 v{CA+i}, 0, v186"); a(f"v_sub_f32 v{CB+i}, 0, v187")
    a("s_waitcnt vmcnt(8)")
    stage_write(0, 0)
    a("s_waitcnt lgkmcnt(0)")
    a("s_barrier")
    a(f"s_setprio {PRIO_A2}")
    NTILE = 4*ATT_ITERS
    def ldsoff(t): return ((t >> 4) & 1)*32768 + (t & 15)*1024
    def lds_reads(t):
        bf = t & 1
        va = 12 + ((t >> 2) & 1)
        a(f"ds_read_b128 {vr(KF[bf],4)}, v3 offset:{ldsoff(t)}")
        a(f"ds_read_b128 {vr(VF[bf][0],4)}, v{va} offset:{(t & 3)*1024}")
        a(f"ds_read_b128 {vr(VF[bf][1],4)}, v{va} offset:{(t & 3)*1024+512}")
    def vaddr(body):
        a(f"s_mov_b32 s71, {ldsoff(4*body)}")
        a(f"v_mad_u32_u24 v{12 + (body & 1)}, v9, s71, v5")
    vaddr(0)
    lds_reads(0)
    a("s_waitcnt lgkmcnt(0)")
    a(f"v_mfma_f32_32x32x16_bf16 {vr(SA,16)}, {vr(KF[0],4)}, {vr(QA,4)}, {vr(CA,16)}")
    vaddr(1)
    a("s_nop 7")
    stamp(a, 3)
    a("s_nop 7")
    for t in range(NTILE):
        bf = t & 1; nb = bf ^ 1
        for i in range(32):
            if i == 1 and t in (12, 16, 32, 28, 44): a("s_barrier")
            if t == 1 and i == 9: a("s_waitcnt vmcnt(0)")
            if t in (1, 2, 3, 4) and i in (10, 16):
                q = t - 1; k = 0 if i == 10 else 1
                a(f"ds_write_b128 v8, {vr(STG[1]+8*q+4*k,4)} offset:{1*32768 + k*16384 + q*4096}")
            if i == 2:
                a(f"v_smfmac_f32_32x32x32_bf16 {vr(OB,16)}, {vr(VF[nb][1],4)}, {vr(SB+8,8)}, v{IDX}")
            if i == 5: lds_reads((t+1) % 64)
            if i == 9 and (t & 3) == 0 and t > 0: vaddr(t//4 + 1)
            if t in (20, 36) and i == 9: a("s_waitcnt vmcnt(0)")
            if t in (20, 21, 22, 23) and i in (10, 16):
                q = t - 20; k = 0 if i == 10 else 1
                a(f"ds_write_b128 v8, {vr(STG[0]+8*q+4*k,4)} offset:{0*32768 + k*16384 + q*4096}")
            if t in (36, 37, 38, 39) and i in (10, 16):
                q = t - 36; k = 0 if i == 10 else 1
                a(f"ds_write_b128 v8, {vr(STG[1]+8*q+4*k,4)} offset:{1*32768 + k*16384 + q*4096}")
            if t in (5, 6, 7, 8) and i in (12, 19):
                q = t - 5; k = 0 if i == 12 else 1
                a(f"s_add_u32 s13, s12, {2*16384 + q*4096}")
                a(f"buffer_load_dwordx4 {vr(STG[0]+8*q+4*k,4)}, v3, s[{60+4*k}:{63+4*k}], s13 offen {SC}")
            if t in (9, 10, 11, 12) and i in (12, 19):
                q = t - 9; k = 0 if i == 12 else 1
                a(f"s_add_u32 s13, s12, {3*16384 + q*4096}")
                a(f"buffer_load_dwordx4 {vr(STG[1]+8*q+4*k,4)}, v3, s[{60+4*k}:{63+4*k}], s13 offen {SC}")
            if i == 7:
                a(f"v_mfma_f32_32x32x16_bf16 {vr(SB,16)}, {vr(KF[bf],4)}, {vr(QB,4)}, {vr(CB,16)}")
            if i == 12:
                a(f"v_smfmac_f32_32x32x32_bf16 {vr(OA,16)}, {vr(VF[bf][0],4)}, {vr(SA,8)}, v{IDX}")
            if i == 18:
                a(f"v_smfmac_f32_32x32x32_bf16 {vr(OA,16)}, {vr(VF[bf][1],4)}, {vr(SA+8,8)}, v{IDX}")
            if i == 22:
                a("s_waitcnt lgkmcnt(0)")
            if i == 23:
                a(f"v_mfma_f32_32x32x16_bf16 {vr(SA,16)}, {vr(KF[nb],4)}, {vr(QA,4)}, {vr(CA,16)}")
            if i == 28:
                a(f"v_smfmac_f32_32x32x32_bf16 {vr(OB,16)}, {vr(VF[bf][0],4)}, {vr(SB,8)}, v{IDX}")
            reg = SA + i if i < 16 else SB + i - 16
            a(f"v_exp_f32 v{reg}, v{reg}")
    a("s_nop 1")
    a(f"v_smfmac_f32_32x32x32_bf16 {vr(OB,16)}, {vr(VF[1][1],4)}, {vr(SB+8,8)}, v{IDX}")
    stamp(a, 4)
    a("s_nop 15"); a("s_nop 7")
    a(f"v_rcp_f32 v186, v{OA+8}"); a(f"v_rcp_f32 v187, v{OB+8}"); a("s_nop 0")
    for j in range(8):
        a(f"v_mul_f32 v{OA+j}, v{OA+j}, v186"); a(f"v_mul_f32 v{OB+j}, v{OB+j}, v187")
    for j in range(4):
        a(f"v_cvt_pk_bf16_f32 v{SA+j}, v{OA+2*j}, v{OA+2*j+1}"); a(f"v_cvt_pk_bf16_f32 v{SA+4+j}, v{OB+2*j}, v{OB+2*j+1}")
    a("s_lshl_b32 s13, s4, 1"); a("s_add_u32 s13, s13, s7"); a("s_lshl_b32 s13, s13, 5")
    a("s_lshl_b32 s14, s5, 2"); a("s_add_u32 s13, s13, s14"); a("s_lshl_b32 s14, s6, 1"); a("s_add_u32 s13, s13, s14"); a("s_lshl_b32 s13, s13, 10")
    a(f"buffer_store_dwordx4 {vr(SA,4)}, v3, s[56:59], s13 offen {SC}")
    a(f"buffer_store_dwordx4 {vr(SA+4,4)}, v3, s[56:59], s13 offen offset:1024 {SC}")
    a("s_lshl_b32 s12, s4, 7"); a("s_lshl_b32 s13, s5, 2"); a("s_add_u32 s12, s12, s13"); a(f"s_add_u32 s12, s12, {WS_FO}")
    signal(a, "s12", 1, 0, have_tag=True)
    stamp(a, 5)

GK1 = -2.0 * 0.7978845608028654 * 1.4426950408889634
GK2 = GK1 * 0.044715
def role_gu(a):
    a.c("==== GU role ====")
    stamp(a, 0)
    srd(a, 40, S_X, 2048*1024); srd(a, 44, S_WG, 512*3584); srd(a, 48, S_WU, 512*3584)
    a("s_and_b32 s6, s3, 1"); a("s_lshr_b32 s7, s3, 1")
    STG = 24576
    a("v_lshrrev_b32 v3, 2, v1"); a("v_lshlrev_b32 v3, 10, v3"); a("v_and_b32 v4, 3, v1"); a("v_lshrrev_b32 v5, 4, v1")
    a("v_xor_b32 v2, v4, v5"); a("v_lshl_add_u32 v8, v2, 4, v3")
    a("v_mul_u32_u24 v9, 3584, v5"); a("v_bfe_u32 v3, v1, 2, 2"); a("v_xor_b32 v3, v3, v5")
    a("v_lshl_add_u32 v9, v3, 6, v9"); a("v_lshl_add_u32 v9, v4, 4, v9")
    a("s_lshl_b32 s8, s4, 7"); a("s_lshl_b32 s9, s3, 5"); a("s_add_u32 s8, s8, s9"); a("s_lshl_b32 s8, s8, 10")
    a(f"s_mul_i32 s9, s3, {8*3584}"); a("s_lshl_b32 s10, s5, 8"); a("s_add_u32 s9, s9, s10"); a("s_lshl_b32 s10, s3, 11")
    a("s_and_b32 s66, s4, 3"); a("s_lshl_b32 s66, s66, 2")
    def dma_groups(st):
        pre = ["s_lshl_b32 s12, s66, 6", "s_add_u32 s12, s12, s8", f"s_mul_i32 s13, s66, {32*3584}", "s_add_u32 s13, s13, s9",
               "s_add_u32 s66, s66, 1", "s_and_b32 s66, s66, 15"]
        gs = []
        for i in range(2):
            gs.append([f"s_add_u32 m0, s10, {st*STG + i*1024}", f"s_add_u32 s14, s12, {i*16*1024}", "buffer_load_dwordx4 v8, s[40:43], s14 offen lds"])
        for g in range(2):
            for i in range(2):
                gs.append([f"s_add_u32 m0, s10, {st*STG + 8192 + g*8192 + i*1024}", f"s_add_u32 s14, s13, {i*4*3584}",
                           f"buffer_load_dwordx4 v9, s[{44+4*g}:{47+4*g}], s14 offen lds"])
        gs[0] = pre + gs[0]
        return gs
    ACC = 128
    for i in range(128): a(f"v_mov_b32 v{ACC+i}, 0")
    if GU_DELAY: a(f"s_sleep {GU_DELAY}")
    for st in range(3):
        for g in dma_groups(st):
            for x in g: a(x)
    NT = 0
    if TOUCH:
        a("v_lshrrev_b32 v2, 1, v1"); a("v_mul_u32_u24 v2, 3584, v2"); a("v_and_b32 v3, 1, v1"); a("v_lshl_add_u32 v2, v3, 7, v2")
        a("s_and_b32 s14, s4, 3"); a("s_lshl_b32 s14, s14, 2"); a("s_add_u32 s14, s14, s3"); a(f"s_mul_i32 s14, s14, {32*3584}")
        a("s_lshl_b32 s15, s5, 8"); a("s_add_u32 s14, s14, s15")
        a("buffer_load_dword v60, v2, s[44:47], s14 offen"); a("buffer_load_dword v61, v2, s[48:51], s14 offen")
        a("v_lshrrev_b32 v2, 3, v1"); a("v_lshlrev_b32 v2, 10, v2"); a("v_and_b32 v3, 7, v1"); a("v_lshl_add_u32 v2, v3, 7, v2")
        a("s_cmp_ge_u32 s5, 7"); a("s_cselect_b32 s14, 7, 0"); a("s_sub_u32 s14, s5, s14")
        a("s_cmp_ge_u32 s3, 2"); a("s_cselect_b32 s14, 7, s14"); a("s_lshl_b32 s14, s14, 4")
        a("s_and_b32 s15, s3, 1"); a("s_lshl_b32 s15, s15, 3"); a("s_add_u32 s14, s14, s15")
        a("s_lshl_b32 s15, s4, 7"); a("s_add_u32 s14, s14, s15"); a("s_lshl_b32 s14, s14, 10")
        a("buffer_load_dword v62, v2, s[40:43], s14 offen")
        NT = 3
    srd(a, 52, S_WS, WS_SMALL_END); srd(a, 56, S_WS, HF_BYTES, WS_HF)
    a("v_and_b32 v6, 31, v1"); a("v_lshrrev_b32 v7, 5, v1")
    a("v_bfe_u32 v10, v1, 2, 2"); a("v_xor_b32 v10, v10, v7"); a("v_lshlrev_b32 v10, 4, v10"); a("v_lshl_add_u32 v10, v6, 6, v10")
    a("s_lshl_b32 s14, s6, 12"); a("v_add_u32 v10, s14, v10"); a("v_xor_b32 v11, 32, v10")
    a("v_bfe_u32 v2, v1, 2, 2"); a("v_lshl_add_u32 v12, v7, 3, v2"); a("v_lshlrev_b32 v12, 8, v12")
    a("s_lshl_b32 s14, s7, 1"); a("v_xor_b32 v2, s14, v2"); a("v_lshl_add_u32 v12, v2, 6, v12")
    a("v_bfe_u32 v2, v1, 4, 1"); a("v_lshl_add_u32 v12, v2, 5, v12"); a("v_and_b32 v2, 3, v1"); a("v_lshl_add_u32 v12, v2, 3, v12")
    a("v_add_u32 v12, 8192, v12"); a("v_xor_b32 v13, 64, v12")
    ACC = 128
    def acc(mt, ft, g): return ACC + ((mt*2+ft)*2+g)*16
    XF = lambda b, mt: 64 + (b*2+mt)*4
    WF = lambda b, ft, g: 80 + ((b*2+ft)*2+g)*4
    for i in range(4): a(f"v_add_u32 v{14+i}, {2*STG}, v{10+i}")
    def read_list(st, sstep, b):
        base = 14 if st == 2 else 10
        so = 0 if st == 2 else st*STG
        L = []
        for mt in range(2): L.append(f"ds_read_b128 {vr(XF(b,mt),4)}, v{base+sstep} offset:{so + mt*2048}")
        for ft in range(2):
            for g in range(2):
                L.append(f"ds_read_b64_tr_b16 {vr(WF(b,ft,g),2)}, v{base+2+ft} offset:{so + g*8192 + (16*sstep)*256}")
                L.append(f"ds_read_b64_tr_b16 {vr(WF(b,ft,g)+2,2)}, v{base+2+ft} offset:{so + g*8192 + (16*sstep+4)*256}")
        return L if not GU_NOREAD else ["s_nop 0"]*10
    def mfma_list(b):
        return [f"v_mfma_f32_32x32x16_bf16 {vr(acc(mt,ft,g),16)}, {vr(WF(b,ft,g),4)}, {vr(XF(b,mt),4)}, {vr(acc(mt,ft,g),16)}"
                for ft in range(2) for g in range(2) for mt in range(2)]
    a(f"s_waitcnt vmcnt({12+NT})"); a("s_barrier")
    stamp(a, 4)
    for x in read_list(0, 0, 0): a(x)
    pend = []
    for c in range(16):
        st = c % 3
        a("s_waitcnt lgkmcnt(0)")
        rl = read_list(st, 1, 1)
        fill = [rl[2*k:2*k+2] for k in range(5)] + pend
        pend = []
        interleave(a, mfma_list(0), fill)
        if c < 15:
            vm = 6 if c + 2 <= 15 else 0
            if c == 0: vm += NT
            a(f"s_waitcnt vmcnt({vm}) lgkmcnt(0)")
            if not GU_NOBAR: a("s_barrier")
            rl = read_list((c+1) % 3, 0, 0)
            fill = [rl[2*k:2*k+2] for k in range(5)]
            if c + 3 <= 15 and not GU_NODMA:
                dg = dma_groups(st)
                fill += dg[:3]; pend = dg[3:]
            interleave(a, mfma_list(1), fill)
        else:
            a("s_waitcnt lgkmcnt(0)")
            interleave(a, mfma_list(1), [])
    stamp(a, 1)
    a(f"s_setprio {PRIO_GE}")
    def pre(a):
        a("s_and_b32 s13, s2, 7"); a("s_lshl_b32 s13, s13, 8"); a(f"s_add_u32 s13, s13, {WS_FCS}")
        a("s_and_b32 s12, s2, 15"); a("s_lshl_b32 s12, s12, 8"); a(f"s_add_u32 s12, s12, {WS_FKV}")
    wg_wait(a, [("s12", 32), ("s13", 56)], pre=pre)
    a("s_lshl_b32 s8, s4, 7"); a("s_lshl_b32 s9, s6, 6"); a("s_add_u32 s8, s8, s9")
    a("v_add_u32 v2, s8, v6"); a("v_lshlrev_b32 v2, 2, v2")
    a(f"s_mov_b32 s9, {WS_ST}"); a(f"s_mov_b32 s10, {WS_ST+8192}")
    for mt in range(2):
        a(f"buffer_load_dword v{8+mt}, v2, s[52:55], s9 offen offset:{mt*128} {SC}")
        a(f"buffer_load_dword v{10+mt}, v2, s[52:55], s10 offen offset:{mt*128} {SC}")
    a("s_lshl_b32 s8, s5, 9"); a("s_lshl_b32 s9, s7, 8"); a("s_add_u32 s8, s8, s9"); a(f"s_add_u32 s8, s8, {WS_CS}"); a(f"s_add_u32 s9, s8, {1792*4}")
    a("v_lshlrev_b32 v2, 4, v7")
    CS = lambda ft, g: 64 + (ft*2+g)*16
    for ft in range(2):
        for g in range(2):
            for q in range(4):
                a(f"buffer_load_dwordx4 {vr(CS(ft,g)+4*q,4)}, v2, s[52:55], s{8+g} offen offset:{ft*128 + q*32} {SC}")
    a("v_lshlrev_b32 v3, 4, v1")
    a("s_lshl_b32 s8, s4, 2"); a("s_lshl_b32 s9, s6, 1"); a("s_add_u32 s8, s8, s9"); a("s_mul_i32 s8, s8, 112")
    a("s_lshl_b32 s9, s5, 3"); a("s_add_u32 s8, s8, s9"); a("s_lshl_b32 s9, s7, 2"); a("s_add_u32 s8, s8, s9"); a("s_lshl_b32 s8, s8, 10")
    a(f"v_mov_b32 v12, {GK1!r}"); a(f"v_mov_b32 v13, {GK2!r}")
    a("s_waitcnt vmcnt(0)")
    stamp(a, 2)
    T = 16
    for mt in range(2):
        a(f"v_mov_b32 v{40+4*mt}, v{8+mt}"); a(f"v_mov_b32 v{41+4*mt}, v{8+mt}"); a(f"v_mov_b32 v{42+4*mt}, v{10+mt}"); a(f"v_mov_b32 v{43+4*mt}, v{10+mt}")
    a("v_mov_b32 v48, v12"); a("v_mov_b32 v49, v12"); a("v_mov_b32 v50, v13"); a("v_mov_b32 v51, v13"); a("v_mov_b32 v52, 1.0"); a("v_mov_b32 v53, 1.0")
    P2 = lambda r: f"v[{r}:{r+1}]"
    for mt in range(2):
        A2, B2 = P2(40+4*mt), P2(42+4*mt)
        for ft in range(2):
            G, U = acc(mt,ft,0), acc(mt,ft,1)
            R = range(0, 16, 2)
            tt = lambda r: T + r
            t2 = lambda r: 54 + (r // 2 % 4) * 2
            for r in R: a(f"v_pk_mul_f32 {P2(tt(r))}, {B2}, {P2(CS(ft,0)+r)}")
            for r in R: a(f"v_pk_fma_f32 {P2(G+r)}, {P2(G+r)}, {A2}, {P2(tt(r))}")
            for r in R: a(f"v_pk_mul_f32 {P2(tt(r))}, {B2}, {P2(CS(ft,1)+r)}")
            for r in R: a(f"v_pk_fma_f32 {P2(U+r)}, {P2(U+r)}, {A2}, {P2(tt(r))}")
            for r in R: a(f"v_pk_mul_f32 {P2(tt(r))}, {P2(G+r)}, {P2(G+r)}")
            for r in R: a(f"v_pk_fma_f32 {P2(tt(r))}, {P2(tt(r))}, v[50:51], v[48:49]")
            for r in R: a(f"v_pk_mul_f32 {P2(tt(r))}, {P2(tt(r))}, {P2(G+r)}")
            for r in range(16): a(f"v_exp_f32 v{T+r}, v{T+r}")
            for r in R: a(f"v_pk_mul_f32 {P2(U+r)}, {P2(U+r)}, {P2(G+r)}")
            for r in R: a(f"v_pk_add_f32 {P2(tt(r))}, {P2(tt(r))}, v[52:53]")
            for r in range(16): a(f"v_rcp_f32 v{T+r}, v{T+r}")
            a("s_nop 0")
            for r in R: a(f"v_pk_mul_f32 {P2(U+r)}, {P2(U+r)}, {P2(tt(r))}")
            for j in range(8): a(f"v_cvt_pk_bf16_f32 v{G+j}, v{U+2*j}, v{U+2*j+1}")
            a(f"s_add_u32 s9, s8, {(mt*112 + 2*ft)*1024}")
            a(f"buffer_store_dwordx4 {vr(G,4)}, v3, s[56:59], s9 offen {SC}")
            a(f"buffer_store_dwordx4 {vr(G+4,4)}, v3, s[56:59], s9 offen offset:1024 {SC}")
    a("s_lshl_b32 s12, s4, 7"); a("s_lshl_b32 s13, s5, 2"); a("s_add_u32 s12, s12, s13"); a(f"s_add_u32 s12, s12, {WS_FH}")
    signal(a, "s12", 1, 0, have_tag=True)
    stamp(a, 3)

def role_fin(a):
    a.c("==== FIN role ====")
    stamp(a, 0)
    srd(a, 40, S_WD, 1792*1024); srd(a, 44, S_WO, 512*1024); srd(a, 48, S_X, 2048*1024); srd(a, 52, S_WS, WS_SMALL_END)
    srd(a, 56, S_WS, HF_BYTES, WS_HF); srd(a, 60, S_WS, OF_BYTES, WS_OF); srd(a, 64, S_OUT, 2048*1024)
    R = 7
    a("v_lshrrev_b32 v3, 3, v1"); a("v_lshlrev_b32 v3, 10, v3"); a("v_bfe_u32 v4, v1, 2, 1"); a("v_bfe_u32 v5, v1, 4, 1")
    a("v_xor_b32 v4, v4, v5"); a("v_lshl_add_u32 v8, v4, 6, v3"); a("v_and_b32 v4, 3, v1"); a("v_lshl_add_u32 v8, v4, 4, v8")
    a("v_lshlrev_b32 v9, 4, v1"); a("s_lshl_b32 s6, s3, 14")
    a("v_lshrrev_b32 v7, 5, v1"); a("v_and_b32 v6, 31, v1"); a("v_bfe_u32 v2, v1, 2, 2")
    a("v_lshl_add_u32 v10, v7, 2, v2"); a("v_lshlrev_b32 v10, 7, v10"); a("v_lshrrev_b32 v2, 1, v2"); a("v_lshl_add_u32 v10, v2, 6, v10")
    a("v_and_b32 v2, 1, v1"); a("v_lshl_add_u32 v10, v2, 5, v10"); a("v_bfe_u32 v2, v1, 4, 1"); a("v_lshl_add_u32 v10, v2, 4, v10")
    a("v_bfe_u32 v2, v1, 1, 1"); a("v_lshl_add_u32 v10, v2, 3, v10"); a("v_add_u32 v10, s6, v10"); a("v_xor_b32 v11, 64, v10")
    ACC = 192
    acc = lambda mt, nt: ACC + (mt*2+nt)*16
    for i in range(64): a(f"v_mov_b32 v{ACC+i}, 0")
    HB = lambda p, mt: 64 + (p*2+mt)*4
    WF = lambda b, nt: 128 + (b*2+nt)*4
    a("s_and_b32 s7, s3, 1"); a("s_lshr_b32 s8, s3, 1"); a("s_lshl_b32 s9, s4, 6"); a("s_lshl_b32 s10, s7, 5"); a("s_add_u32 s9, s9, s10")
    a("v_add_u32 v12, s9, v6"); a("v_lshlrev_b32 v12, 10, v12"); a("v_lshl_add_u32 v12, v7, 5, v12")
    a("s_lshl_b32 s9, s5, 7"); a("s_lshl_b32 s10, s8, 6"); a("s_add_u32 s9, s9, s10"); a("v_add_u32 v12, s9, v12")
    a("buffer_load_dwordx4 v[16:19], v12, s[48:51], 0 offen")
    a("buffer_load_dwordx4 v[20:23], v12, s[48:51], 0 offen offset:16")
    a("s_and_b32 s70, s4, 3"); a("s_mul_i32 s70, s70, 7"); a("s_mul_i32 s71, s5, 7"); a("s_lshr_b32 s71, s71, 1"); a("s_add_u32 s70, s70, s71")
    a("s_cmp_ge_u32 s70, 28"); a("s_cselect_b32 s71, 28, 0"); a("s_sub_u32 s70, s70, s71")
    a("s_mov_b32 s72, s70")
    a("s_lshl_b32 s11, s4, 1"); a("s_mul_i32 s11, s11, 112"); a("s_mul_i32 s12, s3, 28"); a("s_add_u32 s11, s11, s12"); a("s_lshl_b32 s11, s11, 10")
    a("s_lshl_b32 s12, s12, 14"); a("s_lshl_b32 s13, s5, 7"); a("s_add_u32 s12, s12, s13")
    def adv(reg):
        a(f"s_add_u32 s{reg}, s{reg}, 1"); a(f"s_cmp_eq_u32 s{reg}, 28"); a(f"s_cselect_b32 s{reg}, 0, s{reg}")
    def issue_w(slot):
        a("s_lshl_b32 s15, s70, 14"); a("s_add_u32 s15, s15, s12"); adv(70)
        for q in range(2):
            a(f"s_add_u32 m0, s6, {slot*2048 + q*1024}")
            a(f"s_add_u32 s14, s15, {q*8*1024}")
            a("buffer_load_dwordx4 v8, s[40:43], s14 offen lds")
    def issue_h(slot):
        a("s_lshl_b32 s15, s72, 10"); a("s_add_u32 s15, s15, s11"); adv(72)
        for mt in range(2):
            a(f"s_add_u32 s14, s15, {mt*112*1024}")
            a(f"buffer_load_dwordx4 {vr(HB(slot,mt),4)}, v9, s[56:59], s14 offen {SC}")
    def trreads(slot, b):
        for nt in range(2):
            a(f"ds_read_b64_tr_b16 {vr(WF(b,nt),2)}, v{10+nt} offset:{slot*2048}")
            a(f"ds_read_b64_tr_b16 {vr(WF(b,nt)+2,2)}, v{10+nt} offset:{slot*2048 + 8*128}")
    def mfmas(slot, b):
        for nt in range(2):
            for mt in range(2):
                a(f"v_mfma_f32_32x32x16_bf16 {vr(acc(mt,nt),16)}, {vr(WF(b,nt),4)}, {vr(HB(slot,mt),4)}, {vr(acc(mt,nt),16)}")
    for i in range(6): issue_w(i)
    def pre(a):
        a("s_lshr_b32 s14, s4, 1"); a("s_lshl_b32 s14, s14, 7"); a(f"s_add_u32 s14, s14, {WS_FH}")
    wg_wait(a, [("s14", 14)], pre=pre)
    stamp(a, 1)
    for i in range(6): issue_h(i)
    a("s_waitcnt vmcnt(12)")
    trreads(0, 0); trreads(1, 1)
    def grp_w(slot):
        g0 = ["s_lshl_b32 s15, s70, 14", "s_add_u32 s15, s15, s12", "s_add_u32 s70, s70, 1", "s_cmp_eq_u32 s70, 28", "s_cselect_b32 s70, 0, s70"]
        L = []
        for q in range(2):
            L.append([f"s_add_u32 m0, s6, {slot*2048 + q*1024}", f"s_add_u32 s14, s15, {q*8*1024}", "buffer_load_dwordx4 v8, s[40:43], s14 offen lds"])
        L[0] = g0 + L[0]
        return L
    def grp_h(slot):
        g0 = ["s_lshl_b32 s69, s72, 10", "s_add_u32 s69, s69, s11", "s_add_u32 s72, s72, 1", "s_cmp_eq_u32 s72, 28", "s_cselect_b32 s72, 0, s72"]
        L = []
        for mt in range(2):
            L.append([f"s_add_u32 s14, s69, {mt*112*1024}", f"buffer_load_dwordx4 {vr(HB(slot,mt),4)}, v9, s[56:59], s14 offen {SC}"])
        L[0] = g0 + L[0]
        return L
    N = 28
    for i in range(N):
        slot = i % R; b = i % 3
        last = min(i - 1, N - 7)
        if i <= 5: aH = 2*(5-i) + 4*(last+1)
        else: aH = 4*(last - (i-6))
        need = aH
        j = i + 2
        if j < N and j > 5: need = min(need, 2 + 4*(last - (j-6)))
        a(f"s_waitcnt vmcnt({min(need,63)}) lgkmcnt({4 if i+1 < N else 0})")
        mains = [f"v_mfma_f32_32x32x16_bf16 {vr(acc(mt,nt),16)}, {vr(WF(b,nt),4)}, {vr(HB(slot,mt),4)}, {vr(acc(mt,nt),16)}" for nt in range(2) for mt in range(2)]
        fill = []
        tr = []
        if j < N:
            for nt in range(2):
                tr += [f"ds_read_b64_tr_b16 {vr(WF(j%3,nt),2)}, v{10+nt} offset:{(j%R)*2048}", f"ds_read_b64_tr_b16 {vr(WF(j%3,nt)+2,2)}, v{10+nt} offset:{(j%R)*2048 + 8*128}"]
        if i + 6 < N:
            gw = grp_w((i+6) % R); gh = grp_h((i+6) % R)
            fill = [tr + gw[0], gw[1], gh[0], gh[1]]
        else:
            fill = [tr]
        interleave(a, mains, fill)
    stamp(a, 2)
    a("s_lshl_b32 s12, s3, 17"); a("s_add_u32 s12, s12, s13")
    for i in range(8):
        for q in range(2):
            a(f"s_add_u32 m0, s6, {i*2048 + q*1024}")
            a(f"s_add_u32 s14, s12, {(i*16 + q*8)*1024}")
            a("buffer_load_dwordx4 v8, s[44:47], s14 offen lds")
    a("s_waitcnt vmcnt(0)")
    WO = lambda i, nt: 128 + (i*2+nt)*4
    for i in range(8):
        for nt in range(2):
            a(f"ds_read_b64_tr_b16 {vr(WO(i,nt),2)}, v{10+nt} offset:{i*2048}")
            a(f"ds_read_b64_tr_b16 {vr(WO(i,nt)+2,2)}, v{10+nt} offset:{i*2048 + 8*128}")
        if i % 2 == 1: a("s_waitcnt lgkmcnt(0)")
    def pre(a):
        a("s_lshl_b32 s14, s4, 7"); a(f"s_add_u32 s14, s14, {WS_FO}")
    wg_wait(a, [("s14", 8)], have_tag=True, pre=pre)
    a(f"s_setprio {PRIO_FT}")
    stamp(a, 5)
    a("s_lshl_b32 s11, s4, 6"); a("s_lshl_b32 s14, s3, 3"); a("s_add_u32 s11, s11, s14"); a("s_lshl_b32 s11, s11, 10")
    for i in range(8):
        for mt in range(2):
            a(f"s_add_u32 s14, s11, {i*1024 + mt*32*1024}")
            a(f"buffer_load_dwordx4 {vr(HB(i,mt),4)}, v9, s[60:63], s14 offen {SC}")
    for i in range(8):
        a(f"s_waitcnt vmcnt({2*(7-i)})")
        for nt in range(2):
            for mt in range(2):
                a(f"v_mfma_f32_32x32x16_bf16 {vr(acc(mt,nt),16)}, {vr(WO(i,nt),4)}, {vr(HB(i,mt),4)}, {vr(acc(mt,nt),16)}")
    stamp(a, 3)
    a("v_add_u32 v13, s6, v9")
    a("s_nop 7"); a("s_nop 7")
    Ls = [a.newlabel("F_own") for _ in range(4)]
    for tl in range(4):
        a(f"s_cmp_eq_u32 s3, {tl}"); a(f"s_cbranch_scc1 {Ls[tl]}")
        mt, nt = tl & 1, tl >> 1
        for q in range(4): a(f"ds_write_b128 v13, {vr(acc(mt,nt)+4*q,4)} offset:{tl*4096 + q*1024}")
        a.label(Ls[tl])
    Lm = [a.newlabel("F_mv") for _ in range(4)]; Ldone = a.newlabel("F_mvd")
    for tl in range(4):
        a(f"s_cmp_lg_u32 s3, {tl}"); a(f"s_cbranch_scc1 {Lm[tl]}")
        mt, nt = tl & 1, tl >> 1
        for i in range(16): a(f"v_mov_b32 v{24+i}, v{acc(mt,nt)+i}")
        a(f"s_branch {Ldone}")
        a.label(Lm[tl])
    a.label(Ldone)
    for j in range(8):
        a(f"v_lshlrev_b32 v40, 16, v{16+j}"); a(f"v_and_b32 v41, 0xffff0000, v{16+j}")
        a(f"v_add_f32 v{24+2*j}, v{24+2*j}, v40"); a(f"v_add_f32 v{24+2*j+1}, v{24+2*j+1}, v41")
    a("s_lshl_b32 s14, s3, 12"); a("v_add_u32 v13, s14, v9")
    a("s_waitcnt lgkmcnt(0)"); a("s_barrier")
    for k in range(1, 4):
        a(f"s_add_u32 s15, s3, {k}"); a("s_and_b32 s15, s15, 3"); a("s_lshl_b32 s15, s15, 14"); a("v_add_u32 v14, s15, v13")
        for q in range(4): a(f"ds_read_b128 {vr(64+16*(k-1)+4*q,4)}, v14 offset:{q*1024}")
    for k in range(3):
        a(f"s_waitcnt lgkmcnt({4*(2-k)})")
        for i in range(16): a(f"v_add_f32 v{24+i}, v{24+i}, v{64+16*k+i}")
    for j in range(8): a(f"v_cvt_pk_bf16_f32 v{64+j}, v{24+2*j}, v{24+2*j+1}")
    a("buffer_store_dwordx4 v[64:67], v12, s[64:67], 0 offen")
    a("buffer_store_dwordx4 v[68:71], v12, s[64:67], 0 offen offset:16")
    stamp(a, 4)

def kd(name, vgpr=256, sgpr=102):
    return f"""
.section .rodata,"a"
.p2align 6
.amdhsa_kernel {name}
  .amdhsa_next_free_vgpr {vgpr}
  .amdhsa_next_free_sgpr {sgpr}
  .amdhsa_accum_offset {vgpr}
  .amdhsa_group_segment_fixed_size 0
  .amdhsa_kernarg_size 96
  .amdhsa_user_sgpr_count 2
  .amdhsa_user_sgpr_kernarg_segment_ptr 1
  .amdhsa_system_sgpr_workgroup_id_x 1
.end_amdhsa_kernel
"""
def khead(name):
    return f""".text
.globl {name}
.p2align 8
.type {name},@function
{name}:
"""
HEADER = open(f"cdna_kernels/{NAME}.s.ref").read().split("; Override")[0]
def map_attn_ids(a, idreg):
    a(f"s_and_b32 s4, s{idreg}, 7"); a("s_lshl_b32 s4, s4, 2"); a(f"s_lshr_b32 s5, s{idreg}, 3")
    a("s_and_b32 s6, s5, 3"); a("s_add_u32 s4, s4, s6"); a("s_lshr_b32 s5, s5, 2")
def map_gu_ids(a, idreg):
    a(f"s_and_b32 s6, s{idreg}, 7"); a(f"s_lshr_b32 s7, s{idreg}, 3"); a("s_lshr_b32 s4, s6, 1"); a("s_lshl_b32 s4, s4, 2")
    a("s_and_b32 s8, s7, 3"); a("s_add_u32 s4, s4, s8"); a("s_and_b32 s5, s6, 1"); a("s_mul_i32 s5, s5, 7"); a("s_lshr_b32 s7, s7, 2"); a("s_add_u32 s5, s5, s7")

def build():
    out = HEADER
    out += f"; @launch grid=({ID_END},1,1) block=(256,1,1) lds=81920\n"
    out += '.amdgcn_target "amdgcn-amd-amdhsa--gfx950"\n'
    KN = NAME + "_kernel"
    a = Asm()
    a(f"s_cmp_ge_u32 s2, {ID_END}"); a("s_cbranch_scc1 K_end")
    prologue(a); stamp_init(a)
    if HPROF:
        a("s_memrealtime s[96:97]"); a("s_waitcnt lgkmcnt(0)")
    a(f"s_cmp_ge_u32 s2, {ID_A}"); a("s_cbranch_scc1 K_notkv")
    a(f"s_setprio {PRIO_KV}")
    a("s_and_b32 s4, s2, 7"); a("s_lshl_b32 s4, s4, 2"); a("s_lshr_b32 s5, s2, 3"); a("s_add_u32 s4, s4, s5")
    role_kv(a)
    a("s_lshl_b32 s12, s4, 2"); a(f"s_add_u32 s12, s12, {WS_FKV}")
    signal(a, "s12", 16, 256, have_tag=True)
    stamp(a, 5)
    a("s_setprio 0")
    a("s_lshr_b32 s67, s2, 1")
    Lcs = a.newlabel("CS_loop"); a.label(Lcs)
    a("s_and_b32 s6, s2, 1"); a("s_mul_i32 s6, s6, 14")
    a("s_cmp_ge_u32 s67, 14"); a("s_cselect_b32 s7, 14, 0"); a("s_add_u32 s4, s67, s7"); a("s_add_u32 s4, s4, s6")
    role_colsum(a)
    a("s_add_u32 s67, s67, 16"); a("s_cmp_lt_u32 s67, 28"); a(f"s_cbranch_scc1 {Lcs}")
    stamp(a, 4)
    a("s_branch K_flush")
    a.label("K_notkv")
    a(f"s_cmp_ge_u32 s2, {ID_F}"); a("s_cbranch_scc1 K_fin")
    a(f"s_cmp_ge_u32 s2, {ID_G}"); a("s_cbranch_scc1 K_gu")
    a(f"s_setprio {PRIO_A}")
    a(f"s_sub_u32 s100, s2, {ID_A}")
    map_attn_ids(a, 100)
    if not SKIP_A: role_attn(a)
    a("s_branch K_flush")
    a.label("K_gu")
    a(f"s_setprio {PRIO_G}")
    a(f"s_sub_u32 s9, s2, {ID_G}"); map_gu_ids(a, 9)
    if SKIP_GU:
        srd(a, 52, S_WS, WS_SMALL_END)
        a("s_lshl_b32 s12, s4, 7"); a("s_lshl_b32 s13, s5, 2"); a("s_add_u32 s12, s12, s13"); a(f"s_add_u32 s12, s12, {WS_FH}")
        signal(a, "s12", 1, 0)
    else: role_gu(a)
    a("s_branch K_flush")
    a.label("K_fin")
    a(f"s_setprio {PRIO_F}")
    a(f"s_sub_u32 s9, s2, {ID_F}"); map_attn_ids(a, 9)
    if not SKIP_FIN: role_fin(a)
    a.label("K_flush")
    stamp_flush(a)
    if HPROF:
        L = a.newlabel("HP")
        a("s_cmp_lg_u32 s3, 0"); a(f"s_cbranch_scc1 {L}")
        a("s_and_b32 s76, s2, 3"); a("s_cmp_lg_u32 s76, 0"); a(f"s_cbranch_scc1 {L}")
        a("s_memrealtime s[98:99]"); a("s_waitcnt lgkmcnt(0)")
        a("s_not_b32 s96, s96")
        a("s_mov_b32 s76, 3"); a(f"s_cmp_ge_u32 s2, {ID_A}"); a("s_cselect_b32 s76, 4, s76"); a(f"s_cmp_ge_u32 s2, {ID_G}"); a("s_cselect_b32 s76, 5, s76")
        a(f"s_cmp_ge_u32 s2, {ID_F}"); a("s_cselect_b32 s76, 6, s76"); a("s_lshl_b32 s76, s76, 2")
        a("v_mov_b32 v2, 4"); a("v_mov_b32 v3, s96"); a("v_mov_b32 v4, s76"); a("v_mov_b32 v5, s98")
        set_exec(a, 1)
        a(f"global_atomic_umax v2, v3, s[{S_DBG}:{S_DBG+1}] sc1")
        a(f"global_atomic_umax v4, v5, s[{S_DBG}:{S_DBG+1}] sc1")
        a("s_mov_b64 exec, -1")
        a.label(L)
    a.label("K_end"); a("s_endpgm")
    out += khead(KN) + a.text() + kd(KN)
    return out

if __name__ == "__main__":
    dst = sys.argv[1] if len(sys.argv) > 1 else f"cdna_kernels/{NAME}.s"
    for arg in sys.argv[2:]:
        k, v = arg.split("="); globals()[k] = int(v)
    txt = build()
    open(dst, "w").write(txt)
    print("wrote", dst, len(txt))
```

```python
import sys, math
from asmlib import Asm, vr, sr

NAME = "parallel_sum__grouped_kv_mqa__glu_gated_geglu__prompt"
WS_KF = 0x0; WS_VF = 0x10000; WS_ST = 0x20000; WS_KM = 0x24000; WS_CS = 0x25000
WS_FKV = 0x30000
WS_FCS = 0x31000
WS_FH  = 0x32000
WS_FO  = 0x33000
WS_FST = 0x34000
WS_CSP = 0x40000
WS_SMALL_END = 0x80000
WS_HF = 0x100000; WS_OF = 0x800000
HF_BYTES = 64*112*1024; OF_BYTES = 64*32*1024
WS_PROF = 0xC00000
S_X, S_WQ, S_WK, S_WV, S_WO, S_BX, S_WG, S_WU, S_WD, S_OUT, S_DBG, S_WS = 16,18,20,22,24,26,28,30,32,34,36,38
ONES_BF16 = 0x3F803F80
SC = "sc1"
HPROF = 0; PROF = 0; ATT_ITERS = 16; SKIP_GU = 0; SKIP_FIN = 0; SPIN_MAX = 200000; TOUCH = 1
TOUCH_A = 1; GU_DELAY = 0; SKIP_A = 0; GU_NOBAR = 0; GU_NODMA = 0; GU_NOREAD = 0; PRIO_GE = 3; PRIO_FT = 3; A_DELAY = 0; PRIO_A1 = 1; OUTF = 0; A_EXIT = 0; PRIO_A2 = 0; PRIO_A = 1; PRIO_G = 0; PRIO_F = 0; PRIO_KV = 3
ID_A, ID_G, ID_F, ID_END = 32, 288, 512, 768

OUTFLAGS = ["", "sc1", "sc0 sc1", "nt", "sc0 sc1 nt"]
def prologue(a):
    a("""
    s_load_dwordx16 s[16:31], s[0:1], 0
    s_load_dwordx8 s[32:39], s[0:1], 64
    v_and_b32 v1, 63, v0
    v_lshrrev_b32 v2, 6, v0
    s_nop 0
    v_readfirstlane_b32 s3, v2
    s_waitcnt lgkmcnt(0)
    """)
def srd(a, d, ptr, nbytes, off=0):
    if off:
        a(f"s_add_u32 s{d}, s{ptr}, {off}")
        a(f"s_addc_u32 s{d+1}, s{ptr+1}, 0")
        a(f"s_and_b32 s{d+1}, s{d+1}, 0xffff")
    else:
        a(f"s_mov_b32 s{d}, s{ptr}")
        a(f"s_and_b32 s{d+1}, s{ptr+1}, 0xffff")
    a(f"s_mov_b32 s{d+2}, {nbytes}")
    a(f"s_mov_b32 s{d+3}, 0x00020000")

def stamp(a, idx):
    if not PROF: return
    a("s_memtime s[78:79]"); a("s_waitcnt lgkmcnt(0)"); a(f"s_mov_b32 s{80+idx}, s78")
def stamp_init(a):
    if not PROF: return
    a("s_memrealtime s[78:79]"); a("s_waitcnt lgkmcnt(0)"); a("s_mov_b32 s95, s78")
    for i in range(80, 95): a(f"s_mov_b32 s{i}, 0")
def stamp_flush(a):
    if not PROF: return
    L = a.newlabel("PF")
    a("s_cmp_lg_u32 s3, 0"); a(f"s_cbranch_scc1 {L}")
    a("s_memrealtime s[78:79]"); a("s_waitcnt lgkmcnt(0)"); a("s_mov_b32 s94, s78")
    srd(a, 72, S_WS, 0x100000, WS_PROF)
    a("s_lshl_b32 s76, s2, 6")
    a("v_mov_b32 v250, 0")
    set_exec(a, 1)
    for i in range(16):
        a(f"v_mov_b32 v251, s{80+i}")
        a(f"buffer_store_dword v251, v250, s[72:75], s76 offen offset:{4*i}")
    a("s_mov_b64 exec, -1")
    a.label(L)

def set_exec(a, m):
    if m == (1 << 64) - 1: a("s_mov_b64 exec, -1"); return
    a(f"s_mov_b32 exec_lo, {m & 0xffffffff:#x}"); a(f"s_mov_b32 exec_hi, {m >> 32:#x}")
def interleave(a, mains, fillers, start=0, per=1):
    fi = 0
    for i, m in enumerate(mains):
        a(m)
        if i >= start:
            for _ in range(per):
                if fi < len(fillers):
                    for x in fillers[fi]: a(x)
                    fi += 1
    while fi < len(fillers):
        for x in fillers[fi]: a(x)
        fi += 1
def dpp_wave_max(a, v):
    for mod in ("quad_perm:[1,0,3,2] row_mask:0xf bank_mask:0xf", "quad_perm:[2,3,0,1] row_mask:0xf bank_mask:0xf",
                "row_half_mirror row_mask:0xf bank_mask:0xf", "row_mirror row_mask:0xf bank_mask:0xf",
                "row_bcast:15 row_mask:0xa bank_mask:0xf", "row_bcast:31 row_mask:0xc bank_mask:0xf"):
        a("s_nop 1")
        a(f"v_max_f32_dpp v{v}, v{v}, v{v} {mod}")
def half_sum(a, v, t, op="v_add_f32"):
    a(f"v_mov_b32 v{t}, v{v}"); a("s_nop 1")
    a(f"v_permlane32_swap_b32 v{v}, v{t}"); a("s_nop 1")
    a(f"{op} v{v}, v{v}, v{t}")

def write_tag(a):
    L = a.newlabel("TAGW")
    a("s_or_b32 s76, s2, s3")
    a("s_cmp_lg_u32 s76, 0"); a(f"s_cbranch_scc1 {L}")
    a("s_memrealtime s[76:77]"); a("s_waitcnt lgkmcnt(0)")
    a("s_or_b32 s76, s76, 1")
    a("v_mov_b32 v2, 0"); a("v_mov_b32 v3, s76")
    set_exec(a, 1)
    a(f"global_store_dword v2, v3, s[{S_DBG}:{S_DBG+1}] sc0 sc1")
    a("s_mov_b64 exec, -1")
    a.label(L)
def get_tag(a):
    L = a.newlabel("TAG"); Ld = a.newlabel("TAGD")
    a("v_mov_b32 v2, 0")
    a(f"global_load_dword v3, v2, s[{S_DBG}:{S_DBG+1}]")
    a("s_waitcnt vmcnt(0)")
    a("v_readfirstlane_b32 s74, v3")
    a("s_cmp_lg_u32 s74, 0"); a(f"s_cbranch_scc1 {Ld}")
    a("s_mov_b32 s75, 0")
    a.label(L)
    a("s_sleep 4")
    a(f"global_load_dword v3, v2, s[{S_DBG}:{S_DBG+1}] sc0 sc1")
    a("s_waitcnt vmcnt(0)")
    a("v_readfirstlane_b32 s74, v3")
    a("s_cmp_lg_u32 s74, 0"); a(f"s_cbranch_scc1 {Ld}")
    a("s_add_u32 s75, s75, 1"); a(f"s_cmp_lt_u32 s75, {SPIN_MAX}"); a(f"s_cbranch_scc1 {L}")
    a.label(Ld)
def tag_prefetch(a, vreg):
    a(f"v_mov_b32 v{vreg+1}, 0")
    a(f"global_load_dword v{vreg}, v{vreg+1}, s[{S_DBG}:{S_DBG+1}]")
def tag_finish(a, vreg):
    L = a.newlabel("TAGR"); Ld = a.newlabel("TAGF")
    a(f"v_readfirstlane_b32 s74, v{vreg}")
    a("s_cmp_lg_u32 s74, 0"); a(f"s_cbranch_scc1 {Ld}")
    a("s_mov_b32 s75, 0")
    a.label(L)
    a("s_sleep 4")
    a(f"global_load_dword v{vreg}, v{vreg+1}, s[{S_DBG}:{S_DBG+1}] sc0 sc1")
    a("s_waitcnt vmcnt(0)")
    a(f"v_readfirstlane_b32 s74, v{vreg}")
    a("s_cmp_lg_u32 s74, 0"); a(f"s_cbranch_scc1 {Ld}")
    a("s_add_u32 s75, s75, 1"); a(f"s_cmp_lt_u32 s75, {SPIN_MAX}"); a(f"s_cbranch_scc1 {L}")
    a.label(Ld)
def signal(a, off_sreg, ncopies, stride, have_tag=False):
    a("s_waitcnt vmcnt(0)")
    a("s_barrier")
    L = a.newlabel("SIG")
    a("s_cmp_lg_u32 s3, 0"); a(f"s_cbranch_scc1 {L}")
    if not have_tag: get_tag(a)
    a(f"v_mul_u32_u24 v2, {stride}, v1")
    a("v_mov_b32 v3, s74")
    set_exec(a, (1<<ncopies)-1)
    a(f"buffer_store_dword v3, v2, s[52:55], {off_sreg} offen sc0 sc1")
    a("s_mov_b64 exec, -1")
    a.label(L)
def poll(a, off_sreg, n, sleep=2):
    L = a.newlabel("POLL"); Ld = a.newlabel("POLLD")
    a("v_lshlrev_b32 v2, 2, v1")
    a("s_mov_b32 s75, 0")
    if n < 64: set_exec(a, (1<<n)-1)
    a.label(L)
    a(f"buffer_load_dword v3, v2, s[52:55], {off_sreg} offen sc0 sc1")
    a("s_waitcnt vmcnt(0)")
    a("v_cmp_ne_u32 vcc, s74, v3")
    a(f"s_cbranch_vccz {Ld}")
    a(f"s_sleep {sleep}")
    a("s_add_u32 s75, s75, 1"); a(f"s_cmp_lt_u32 s75, {SPIN_MAX}"); a(f"s_cbranch_scc1 {L}")
    a.label(Ld)
    a("s_mov_b64 exec, -1")
def wg_wait(a, waits, have_tag=False, pre=None):
    L = a.newlabel("WGW")
    a("s_cmp_lg_u32 s3, 0"); a(f"s_cbranch_scc1 {L}")
    if not have_tag: get_tag(a)
    if pre: pre(a)
    for off, n in waits: poll(a, off, n)
    a.label(L)
    a("s_barrier")

def role_kv(a):
    a.c("==== KV role ====")
    stamp(a, 0)
    srd(a, 40, S_X, 2048*1024)
    a("s_mul_i32 s6, s3, 20480")
    a("v_lshrrev_b32 v3, 3, v1"); a("v_lshlrev_b32 v3, 10, v3"); a("v_and_b32 v4, 7, v1"); a("v_lshrrev_b32 v5, 4, v1"); a("v_xor_b32 v6, v4, v5")
    a("v_lshl_add_u32 v8, v6, 4, v3"); a("v_xor_b32 v9, 64, v8")
    a("s_lshl_b32 s8, s4, 16"); a("s_lshl_b32 s9, s3, 8"); a("s_add_u32 s8, s8, s9")
    def xblk(mt, half, ldsoff):
        L = []
        for i in range(4):
            L.append([f"s_add_u32 m0, s6, {ldsoff + i*1024}", f"s_add_u32 s10, s8, {(32*mt + 8*i)*1024 + half*128}",
                      f"buffer_load_dwordx4 v{8+(i&1)}, s[40:43], s10 offen lds"])
        return L
    for g in xblk(0, 0, 8192):
        for x in g: a(x)
    srd(a, 44, S_WK, 16384); srd(a, 48, S_WV, 16384)
    a("v_lshlrev_b32 v3, 4, v1"); a("v_xor_b32 v5, 128, v3"); a("s_lshl_b32 s9, s3, 12")
    for i in range(4):
        a(f"s_add_u32 m0, s6, {i*1024}"); a(f"s_add_u32 s10, s9, {i*1024}")
        a("buffer_load_dwordx4 v3, s[44:47], s10 offen lds")
        a(f"s_add_u32 m0, s6, {4096 + i*1024}"); a("s_nop 0")
        a("buffer_load_dwordx4 v5, s[48:51], s10 offen lds")
    for mt, half, off in ((0, 1, 12288), (1, 0, 16384)):
        for g in xblk(mt, half, off):
            for x in g: a(x)
    a("v_lshlrev_b32 v6, 10, v1"); a(f"s_add_u32 s10, s8, {32*1024 + 128}")
    set_exec(a, 0xffffffff)
    a("buffer_load_dword v200, v6, s[40:43], s10 offen")
    a("s_mov_b64 exec, -1")
    srd(a, 52, S_WS, WS_SMALL_END); srd(a, 60, S_WS, 65536, WS_KF); srd(a, 64, S_WS, 65536, WS_VF)
    write_tag(a)
    a("v_and_b32 v6, 31, v1"); a("v_lshrrev_b32 v7, 5, v1")
    a("v_bfe_u32 v11, v1, 1, 3"); a("v_xor_b32 v11, v11, v7"); a("v_lshlrev_b32 v11, 4, v11"); a("v_lshl_add_u32 v11, v6, 7, v11")
    a("v_add_u32 v12, s6, v11")
    for s_ in range(1, 4): a(f"v_xor_b32 v{12+s_}, {s_<<5}, v12")
    a("v_bfe_u32 v3, v1, 4, 1"); a("v_lshlrev_b32 v10, 12, v3")
    a("v_bfe_u32 v11, v1, 2, 2"); a("v_lshl_add_u32 v11, v7, 3, v11"); a("v_lshl_add_u32 v10, v11, 5, v10")
    a("v_and_b32 v11, 3, v1"); a("v_lshl_add_u32 v10, v11, 3, v10"); a("v_add_u32 v10, s6, v10")
    a("v_lshlrev_b32 v3, 7, v3"); a("v_xor_b32 v11, 128, v3"); a("v_add_u32 v11, v10, v11"); a("v_add_u32 v10, v10, v3")
    TK = [16, 32]; CS = 48; SX = [64, 80]
    for i in range(80): a(f"v_mov_b32 v{16+i}, 0")
    for i in range(4): a(f"v_mov_b32 v{128+i}, {ONES_BF16:#x}")
    for i in range(4): a(f"v_mov_b32 v{132+i}, 0")
    WF = lambda s_: 96 + 4*s_
    XB = lambda k: 144 + 4*k
    XOFF = {(0,0): 8192, (0,1): 12288, (1,0): 16384, (1,1): 8192}
    a("s_waitcnt vmcnt(1)")
    stamp(a, 1)
    tag_prefetch(a, 204)
    for s_ in range(8):
        a(f"ds_read_b64_tr_b16 {vr(WF(s_),2)}, v10 offset:{s_*512}"); a(f"ds_read_b64_tr_b16 {vr(WF(s_)+2,2)}, v11 offset:{s_*512}")
    seq = [(mt, s_) for mt in range(2) for s_ in range(8)]
    def xread(k):
        mt, s_ = seq[k]
        return f"ds_read_b128 {vr(XB(k&3),4)}, v{12+(s_&3)} offset:{XOFF[(mt, s_>>2)]}"
    for k in range(3): a(xread(k))
    for k, (mt, s_) in enumerate(seq):
        if k == 12: a("s_waitcnt vmcnt(0)")
        x = XB(k & 3); w = WF(s_)
        nxt = k + 3
        if nxt < 16:
            if nxt == 12: a("s_waitcnt vmcnt(0)")
            a(xread(nxt))
        a(f"s_waitcnt lgkmcnt({min(3, 15-k)})")
        a(f"v_mfma_f32_32x32x16_bf16 {vr(TK[mt],16)}, {vr(w,4)}, {vr(x,4)}, {vr(TK[mt],16)}")
        L = []
        for r in range(4):
            lo, hi = 136 + 2*(r & 1), 137 + 2*(r & 1)
            L += [f"v_lshlrev_b32 v{lo}, 16, v{x+r}", f"v_and_b32 v{hi}, 0xffff0000, v{x+r}",
                  f"v_fma_f32 v{132+2*mt}, v{lo}, v{lo}, v{132+2*mt}", f"v_fma_f32 v{133+2*mt}, v{hi}, v{hi}, v{133+2*mt}"]
        for i_ in L[:6]: a(i_)
        a(f"v_mfma_f32_32x32x16_bf16 {vr(SX[mt],16)}, v[128:131], {vr(x,4)}, {vr(SX[mt],16)}")
        for i_ in L[6:12]: a(i_)
        if mt == 0:
            a(f"v_mfma_f32_32x32x16_bf16 {vr(CS,16)}, {vr(w,4)}, v[128:131], {vr(CS,16)}")
        for i_ in L[12:]: a(i_)
        if k == 4:
            for g in xblk(1, 1, 8192):
                for x_ in g: a(x_)
    stamp(a, 2)
    a("s_barrier")
    a("v_add_f32 v132, v132, v133"); a("v_add_f32 v134, v134, v135")
    a("v_lshlrev_b32 v3, 4, v1"); a("s_mul_i32 s9, s3, 12288"); a("v_add_u32 v2, s9, v3")
    for mt in range(2):
        for q in range(4): a(f"ds_write_b128 v2, {vr(TK[mt]+4*q,4)} offset:{mt*4096 + q*1024}")
    for q in range(4): a(f"ds_write_b128 v2, {vr(CS+4*q,4)} offset:{8192 + q*1024}")
    a("v_lshlrev_b32 v4, 2, v1"); a("s_lshl_b32 s9, s3, 10"); a("s_add_u32 s9, s9, 49152"); a("v_add_u32 v4, s9, v4")
    a(f"ds_write_b32 v4, v{SX[0]}"); a(f"ds_write_b32 v4, v{SX[1]} offset:256"); a("ds_write_b32 v4, v132 offset:512"); a("ds_write_b32 v4, v134 offset:768")
    tag_finish(a, 204)
    a("s_waitcnt lgkmcnt(0)"); a("s_barrier")
    stamp(a, 6)
    a("v_lshlrev_b32 v3, 4, v1")
    a("s_and_b32 s10, s3, 1"); a("s_lshr_b32 s11, s3, 1")
    a("s_lshl_b32 s9, s10, 12"); a("s_lshl_b32 s12, s11, 11"); a("s_add_u32 s9, s9, s12"); a("v_add_u32 v2, s9, v3")
    a("v_add_u32 v4, s12, v3")
    for w in range(4):
        for q in range(2):
            a(f"ds_read_b128 {vr(16+8*w+4*q,4)}, v2 offset:{w*12288 + q*1024}")
            a(f"ds_read_b128 {vr(48+8*w+4*q,4)}, v4 offset:{w*12288 + 8192 + q*1024}")
    a("v_lshlrev_b32 v5, 2, v6"); a("s_lshl_b32 s9, s10, 8"); a("s_add_u32 s9, s9, 49152"); a("v_add_u32 v5, s9, v5")
    for w in range(4):
        a(f"ds_read_b32 v{80+w}, v5 offset:{w*1024}")
        a(f"ds_read_b32 v{84+2*w}, v5 offset:{w*1024 + 512}"); a(f"ds_read_b32 v{85+2*w}, v5 offset:{w*1024 + 512 + 128}")
    a("s_lshl_b32 s13, s4, 1"); a("s_add_u32 s13, s13, s10")
    a("s_waitcnt lgkmcnt(0)")
    for i in range(8):
        a(f"v_add_f32 v{16+i}, v{16+i}, v{24+i}"); a(f"v_add_f32 v{32+i}, v{32+i}, v{40+i}")
        a(f"v_add_f32 v{48+i}, v{48+i}, v{56+i}"); a(f"v_add_f32 v{64+i}, v{64+i}, v{72+i}")
    a("v_add_f32 v80, v80, v81"); a("v_add_f32 v82, v82, v83"); a("v_add_f32 v84, v84, v85"); a("v_add_f32 v86, v86, v87"); a("v_add_f32 v88, v88, v89"); a("v_add_f32 v90, v90, v91")
    a("v_add_f32 v80, v80, v82"); a("v_add_f32 v84, v84, v86"); a("v_add_f32 v88, v88, v90"); a("v_add_f32 v84, v84, v88")
    a(f"v_mul_f32 v80, {1.0/512.0!r}, v80"); a(f"v_mul_f32 v84, {1.0/512.0!r}, v84")
    a("v_fma_f32 v84, -v80, v80, v84"); a("v_max_f32 v84, 0, v84"); a("v_add_f32 v84, 0x3727c5ac, v84")
    a("v_rsq_f32 v86, v84")
    for i in range(8):
        a(f"v_add_f32 v{16+i}, v{16+i}, v{32+i}"); a(f"v_add_f32 v{48+i}, v{48+i}, v{64+i}")
    a("v_mul_f32 v87, v80, v86"); a("v_sub_f32 v87, 0, v87")
    for i in range(8): a(f"v_mul_f32 v{48+i}, v87, v{48+i}")
    for i in range(8): a(f"v_fma_f32 v{16+i}, v{16+i}, v86, v{48+i}")
    for j in range(4): a(f"v_cvt_pk_bf16_f32 v{64+j}, v{16+2*j}, v{16+2*j+1}")
    LV = a.newlabel("KV_V"); Lend = a.newlabel("KV_e")
    a("s_cmp_eq_u32 s11, 1"); a(f"s_cbranch_scc1 {LV}")
    a("v_and_b32 v2, 0x33, v1"); a("v_bfe_u32 v4, v1, 2, 1"); a("v_lshl_or_b32 v2, v4, 3, v2")
    a("v_bfe_u32 v4, v1, 3, 1"); a("v_lshl_or_b32 v2, v4, 2, v2"); a("v_lshlrev_b32 v2, 4, v2")
    a("s_lshl_b32 s12, s13, 10")
    a(f"buffer_store_dwordx4 v[64:67], v2, s[60:63], s12 offen {SC}")
    a("s_lshl_b32 s12, s13, 7"); a("v_lshl_add_u32 v4, v6, 2, s12")
    set_exec(a, 0xffffffff)
    a(f"s_mov_b32 s14, {WS_ST}"); a(f"buffer_store_dword v86, v4, s[52:55], s14 offen {SC}")
    a(f"s_mov_b32 s14, {WS_ST+8192}"); a(f"buffer_store_dword v87, v4, s[52:55], s14 offen {SC}")
    a("s_mov_b64 exec, -1")
    a("v_mul_f32 v84, v16, v16"); a("v_mul_f32 v85, v17, v17")
    for j in range(2, 8): a(f"v_fmac_f32 v{84+(j&1)}, v{16+j}, v{16+j}")
    a("v_add_f32 v84, v84, v85")
    half_sum(a, 84, 85)
    dpp_wave_max(a, 84)
    a("s_lshl_b32 s12, s13, 2"); a(f"s_add_u32 s14, s12, {WS_KM}"); a("v_mov_b32 v2, 0")
    set_exec(a, 1 << 63)
    a(f"buffer_store_dword v84, v2, s[52:55], s14 offen {SC}")
    a("s_mov_b64 exec, -1")
    a(f"s_branch {Lend}")
    a.label(LV)
    a("s_lshl_b32 s9, s10, 10"); a("s_add_u32 s9, s9, 57344")
    a("v_lshlrev_b32 v2, 1, v6"); a("v_lshl_add_u32 v2, v7, 8, v2"); a("v_add_u32 v2, s9, v2")
    for j in range(4):
        d0 = ((2*j) & 3) + 8*((2*j) >> 2); d1 = ((2*j+1) & 3) + 8*((2*j+1) >> 2)
        a(f"ds_write_b16 v2, v{64+j} offset:{d0*64}"); a(f"ds_write_b16_d16_hi v2, v{64+j} offset:{d1*64}")
    a("v_and_b32 v2, 15, v1"); a("v_lshlrev_b32 v4, 6, v2"); a("v_lshl_add_u32 v4, v7, 3, v4"); a("v_add_u32 v4, s9, v4")
    a("v_lshl_add_u32 v2, v7, 4, v2"); a("v_lshlrev_b32 v2, 4, v2")
    a("s_lshl_b32 s12, s13, 10")
    a("s_waitcnt lgkmcnt(0)")
    for c in range(2):
        a(f"ds_read_b64 {vr(72+4*c,2)}, v4 offset:{32*c}"); a(f"ds_read_b64 {vr(74+4*c,2)}, v4 offset:{32*c+16}")
    a("s_waitcnt lgkmcnt(0)")
    set_exec(a, 0x0000ffff0000ffff)
    a(f"buffer_store_dwordx4 v[72:75], v2, s[64:67], s12 offen {SC}")
    a(f"buffer_store_dwordx4 v[76:79], v2, s[64:67], s12 offen offset:512 {SC}")
    a("s_mov_b64 exec, -1")
    a.label(Lend)
    stamp(a, 3)

def role_colsum(a, have_tag=True):
    a.c("==== colsum part ==== (s4 = block 0..55)")
    a("s_cmp_ge_u32 s4, 28")
    a(f"s_cselect_b32 s44, s{S_WU}, s{S_WG}"); a(f"s_cselect_b32 s45, s{S_WU+1}, s{S_WG+1}")
    a("s_and_b32 s45, s45, 0xffff"); a(f"s_mov_b32 s46, {512*3584}"); a("s_mov_b32 s47, 0x00020000")
    a("s_sub_u32 s5, s4, 28"); a("s_cmp_ge_u32 s4, 28"); a("s_cselect_b32 s5, s5, s4"); a("s_lshl_b32 s5, s5, 7")
    a("v_lshrrev_b32 v3, 3, v1"); a("v_mul_u32_u24 v3, 3584, v3")
    a("v_bfe_u32 v4, v1, 2, 1"); a("v_bfe_u32 v5, v1, 4, 1"); a("v_xor_b32 v4, v4, v5")
    a("v_lshl_add_u32 v3, v4, 6, v3"); a("v_and_b32 v4, 3, v1"); a("v_lshl_add_u32 v3, v4, 4, v3")
    a(f"s_mul_i32 s6, s3, {128*3584}"); a("s_add_u32 s6, s6, s5"); a("s_lshl_b32 s7, s3, 14")
    for k in range(16):
        a(f"s_add_u32 m0, s7, {k*1024}"); a(f"s_add_u32 s8, s6, {k*8*3584}")
        a("buffer_load_dwordx4 v3, s[44:47], s8 offen lds")
    a("v_lshrrev_b32 v7, 5, v1"); a("v_bfe_u32 v10, v1, 2, 2"); a("v_lshl_add_u32 v9, v7, 3, v10"); a("v_lshlrev_b32 v9, 7, v9")
    a("v_lshrrev_b32 v10, 1, v10"); a("v_xor_b32 v10, s3, v10"); a("v_and_b32 v10, 1, v10"); a("v_lshl_add_u32 v9, v10, 6, v9")
    a("v_bfe_u32 v10, v1, 4, 1"); a("v_lshl_add_u32 v9, v10, 5, v9"); a("v_and_b32 v10, 3, v1"); a("v_lshl_add_u32 v9, v10, 3, v9")
    a("s_lshr_b32 s8, s3, 1"); a("s_lshl_b32 s8, s8, 15"); a("v_add_u32 v9, s8, v9")
    for i in range(16): a(f"v_mov_b32 v{16+i}, 0")
    for i in range(4): a(f"v_mov_b32 v{32+i}, {ONES_BF16:#x}")
    a("s_waitcnt vmcnt(0)"); a("s_barrier")
    WF = lambda s: 40 + 4*(s & 3)
    def rd(s):
        a(f"ds_read_b64_tr_b16 {vr(WF(s),2)}, v9 offset:{(16*s)*128}")
        a(f"ds_read_b64_tr_b16 {vr(WF(s)+2,2)}, v9 offset:{(16*s+4)*128}")
    for s in range(3): rd(s)
    for s in range(16):
        if s + 3 < 16: rd(s+3)
        a(f"s_waitcnt lgkmcnt({2*min(3, 15-s)})")
        a(f"v_mfma_f32_32x32x16_bf16 v[16:31], {vr(WF(s),4)}, v[32:35], v[16:31]")
    a("s_barrier")
    a("v_lshlrev_b32 v3, 4, v1"); a("s_and_b32 s8, s3, 1"); a("s_lshl_b32 s8, s8, 12"); a("v_add_u32 v3, s8, v3")
    Lw = a.newlabel("CS_w"); Lsk = a.newlabel("CS_sk")
    a("s_nop 7"); a("s_nop 7")
    a("s_cmp_lt_u32 s3, 2"); a(f"s_cbranch_scc1 {Lw}")
    for q in range(4): a(f"ds_write_b128 v3, {vr(16+4*q,4)} offset:{q*1024}")
    a.label(Lw)
    a("s_waitcnt lgkmcnt(0)"); a("s_barrier")
    a("s_cmp_ge_u32 s3, 2"); a(f"s_cbranch_scc1 {Lsk}")
    for q in range(4): a(f"ds_read_b128 {vr(40+4*q,4)}, v3 offset:{q*1024}")
    a("s_lshl_b32 s12, s4, 8"); a("s_lshl_b32 s13, s3, 7"); a("s_add_u32 s12, s12, s13"); a(f"s_add_u32 s12, s12, {WS_CS}")
    a("v_lshlrev_b32 v3, 4, v7")
    a("s_waitcnt lgkmcnt(0)")
    for i in range(16): a(f"v_add_f32 v{16+i}, v{16+i}, v{40+i}")
    set_exec(a, 0x0000000100000001)
    for g in range(4): a(f"buffer_store_dwordx4 {vr(16+4*g,4)}, v3, s[52:55], s12 offen offset:{32*g} {SC}")
    a("s_mov_b64 exec, -1")
    a.label(Lsk)
    a("s_lshl_b32 s12, s4, 2"); a(f"s_add_u32 s12, s12, {WS_FCS}")
    signal(a, "s12", 8, 256, have_tag=have_tag)

QSCALE = 0.25 * 1.4426950408889634
M_THRESH = 48.0
def role_attn(a):
    a.c("==== ATTN role ====")
    stamp(a, 0)
    L_W = 49152
    if A_EXIT == 2:
        a("s_sleep 127"); a("s_sleep 127"); a("s_sleep 127"); a("s_sleep 127"); a("s_branch K_flush")
    srd(a, 40, S_X, 2048*1024)
    srd(a, 44, S_WQ, 512*1024)
    a("s_and_b32 s6, s3, 1"); a("s_lshr_b32 s7, s3, 1")
    a("v_lshrrev_b32 v3, 3, v1"); a("v_lshlrev_b32 v3, 10, v3")
    a("v_and_b32 v4, 7, v1"); a("v_lshrrev_b32 v5, 4, v1"); a("v_xor_b32 v6, v4, v5")
    a("v_lshl_add_u32 v8, v6, 4, v3"); a("v_xor_b32 v9, 64, v8")
    a("v_bfe_u32 v6, v1, 2, 1"); a("v_and_b32 v7, 1, v5"); a("v_xor_b32 v6, v6, v7")
    a("v_lshl_add_u32 v10, v6, 6, v3"); a("v_and_b32 v6, 3, v1"); a("v_lshl_add_u32 v10, v6, 4, v10")
    a("s_lshl_b32 s8, s4, 6"); a("s_lshl_b32 s9, s3, 4"); a("s_add_u32 s8, s8, s9"); a("s_lshl_b32 s8, s8, 10")
    a("s_lshl_b32 s9, s9, 10"); a("s_lshl_b32 s10, s5, 7"); a("s_add_u32 s9, s9, s10"); a("s_lshl_b32 s10, s3, 11")
    a("s_and_b32 s69, s4, 3"); a("s_lshl_b32 s69, s69, 1")
    a("s_mov_b32 s68, s69")
    if A_DELAY: a(f"s_sleep {A_DELAY}")
    NST = 4
    def dma_groups(st):
        pre = ["s_lshl_b32 s12, s69, 7", "s_add_u32 s12, s12, s8", "s_lshl_b32 s13, s69, 16", "s_add_u32 s13, s13, s9",
               "s_add_u32 s69, s69, 1", "s_and_b32 s69, s69, 7"]
        gs = []
        for i in range(2):
            gs.append([f"s_add_u32 m0, s10, {st*16384 + i*1024}", f"s_add_u32 s11, s12, {i*8*1024}", f"buffer_load_dwordx4 v{8+i}, s[40:43], s11 offen lds"])
        for i in range(2):
            gs.append([f"s_add_u32 m0, s10, {st*16384 + 8192 + i*1024}", f"s_add_u32 s11, s13, {i*8*1024}", "buffer_load_dwordx4 v10, s[44:47], s11 offen lds"])
        gs[0] = pre + gs[0]
        return gs
    for g in dma_groups(0):
        for x in g: a(x)
    Lnt = a.newlabel("A_nt")
    a(f"s_branch {Lnt}")
    srd(a, 48, S_WK, 16384); srd(a, 52, S_WV, 16384)
    a("v_lshlrev_b32 v3, 4, v1"); a("v_xor_b32 v5, 128, v3"); a("s_lshl_b32 s11, s3, 12")
    for i in range(4):
        a(f"s_add_u32 m0, s11, {L_W + i*1024}"); a(f"s_add_u32 s12, s11, {i*1024}")
        a("buffer_load_dwordx4 v3, s[48:51], s12 offen lds")
        a(f"s_add_u32 m0, s11, {L_W + 16384 + i*1024}")
        a("buffer_load_dwordx4 v5, s[52:55], s12 offen lds")
    a.label(Lnt)
    for c in range(1, NST):
        for g in dma_groups(c):
            for x in g: a(x)
    NTA = 0
    if TOUCH_A:
        a("v_lshrrev_b32 v2, 3, v1"); a("v_lshlrev_b32 v2, 10, v2"); a("v_and_b32 v3, 7, v1"); a("v_lshl_add_u32 v2, v3, 7, v2")
        a("s_lshl_b32 s11, s4, 6"); a("s_lshl_b32 s12, s5, 3"); a("s_add_u32 s11, s11, s12"); a("s_lshl_b32 s11, s11, 10")
        a("v_lshlrev_b32 v3, 10, v1")
        a("s_and_b32 s12, s4, 3"); a("s_lshl_b32 s12, s12, 7"); a("s_and_b32 s13, s3, 1"); a("s_lshl_b32 s13, s13, 6"); a("s_add_u32 s12, s12, s13")
        a("s_lshl_b32 s12, s12, 10"); a("s_lshl_b32 s13, s5, 7"); a("s_add_u32 s12, s12, s13")
        Lt1 = a.newlabel("A_t1"); Lt2 = a.newlabel("A_t2")
        a("s_cmp_ge_u32 s3, 2"); a(f"s_cbranch_scc1 {Lt1}")
        a("buffer_load_dword v190, v3, s[44:47], s12 offen")
        a(f"s_branch {Lt2}")
        a.label(Lt1)
        a("buffer_load_dword v190, v2, s[40:43], s11 offen")
        a.label(Lt2)
        NTA = 1
    srd(a, 52, S_WS, WS_SMALL_END)
    srd(a, 56, S_WS, OF_BYTES, WS_OF)
    srd(a, 60, S_WS, 65536, WS_KF)
    srd(a, 64, S_WS, 65536, WS_VF)
    a("v_and_b32 v6, 31, v1"); a("v_lshrrev_b32 v7, 5, v1")
    a("v_bfe_u32 v11, v1, 1, 3"); a("v_xor_b32 v11, v11, v7"); a("v_lshlrev_b32 v11, 4, v11"); a("v_lshl_add_u32 v11, v6, 7, v11")
    a("s_lshl_b32 s11, s7, 12"); a("v_add_u32 v12, s11, v11")
    a("s_lshl_b32 s11, s6, 5"); a("v_xor_b32 v12, s11, v12")
    for v in range(1, 4): a(f"v_xor_b32 v{12+v}, {v<<5}, v12")
    a("v_bfe_u32 v11, v1, 2, 2"); a("v_lshl_add_u32 v2, v7, 3, v11"); a("v_lshlrev_b32 v2, 7, v2")
    a("v_lshrrev_b32 v11, 1, v11"); a("v_xor_b32 v11, s6, v11"); a("v_lshl_add_u32 v2, v11, 6, v2")
    a("v_bfe_u32 v11, v1, 4, 1"); a("v_lshl_add_u32 v2, v11, 5, v2"); a("v_and_b32 v11, 3, v1"); a("v_lshl_add_u32 v2, v11, 3, v2")
    a("s_lshl_b32 s11, s6, 11"); a("v_add_u32 v4, s11, v2"); a("v_subrev_u32 v5, s11, v2")
    a("v_bfe_u32 v3, v1, 4, 1"); a("v_lshlrev_b32 v140, 14, v3")
    a("v_bfe_u32 v11, v1, 2, 2"); a("v_lshl_add_u32 v11, v7, 3, v11"); a("v_lshl_add_u32 v140, v11, 5, v140")
    a("v_and_b32 v11, 3, v1"); a("v_lshl_add_u32 v140, v11, 3, v140")
    a("s_lshl_b32 s11, s6, 9"); a(f"s_add_u32 s11, s11, {L_W}"); a("v_add_u32 v140, s11, v140")
    a("v_lshlrev_b32 v3, 7, v3"); a("v_xor_b32 v11, 128, v3"); a("v_add_u32 v141, v140, v11"); a("v_add_u32 v140, v140, v3")
    a("v_xor_b32 v160, 4096, v14")
    XE = lambda b: 164 + 4*b
    ACC, TK, CSQ = 16, 32, 48
    FR = lambda b, v: 64 + (b*4+v)*8
    KW = lambda b, v2: 144 + (b*2+v2)*4
    for i in range(48): a(f"v_mov_b32 v{16+i}, 0")
    for i in range(4): a(f"v_mov_b32 v{128+i}, {ONES_BF16:#x}")
    for i in range(4): a(f"v_mov_b32 v{132+i}, 0")
    def read_groups(c, kind):
        st = c % NST; b = c & 1
        gs = []
        for v in range(4):
            wb = 4 if v % 2 == 0 else 5
            g = [f"ds_read_b128 {vr(FR(b,v),4)}, v{12+v} offset:{st*16384}",
                 f"ds_read_b64_tr_b16 {vr(FR(b,v)+4,2)}, v{wb} offset:{st*16384 + 8192 + v*2048}",
                 f"ds_read_b64_tr_b16 {vr(FR(b,v)+6,2)}, v{wb} offset:{st*16384 + 8192 + v*2048 + 512}"]
            if kind == "cs" and v == 2:
                g += [f"ds_read_b128 {vr(XE(b),4)}, v160 offset:{st*16384}"]
            if kind != "none" and v % 2 == 0:
                g += [f"ds_read_b64_tr_b16 {vr(KW(b,v//2),2)}, v142 offset:{v*512}",
                      f"ds_read_b64_tr_b16 {vr(KW(b,v//2)+2,2)}, v143 offset:{v*512}"]
            gs.append(g)
        if kind != "none":
            gs[0] = ["s_lshl_b32 s11, s68, 11", "v_add_u32 v142, s11, v140", "v_add_u32 v143, s11, v141",
                     "s_add_u32 s68, s68, 1", "s_and_b32 s68, s68, 7"] + gs[0]
        return gs
    def stats_instrs(x):
        L = []
        for r in range(4):
            lo, hi = 136 + 2*(r & 1), 137 + 2*(r & 1)
            L += [f"v_lshlrev_b32 v{lo}, 16, v{x+r}", f"v_and_b32 v{hi}, 0xffff0000, v{x+r}",
                  f"v_add_f32 v132, v132, v{lo}", f"v_add_f32 v133, v133, v{hi}",
                  f"v_fma_f32 v134, v{lo}, v{lo}, v134", f"v_fma_f32 v135, v{hi}, v{hi}, v135"]
        return L
    Ljoin = a.newlabel("Q_join"); Lk = {k: a.newlabel("Q_" + k) for k in ("none", "main", "cs")}
    for kind in ("none",):
        a.label(Lk[kind])
        extra = 0 if kind == "none" else 8
        a(f"s_waitcnt vmcnt({4*(NST-1)+NTA})"); a("s_barrier")
        stamp(a, 1)
        for g in read_groups(0, kind):
            for x in g: a(x)
        for c in range(8):
            b = c & 1
            fill = [[] for _ in range(4)]
            if c + 1 < 8:
                issued = min(c + NST - 1, 7)
                a(f"s_waitcnt vmcnt({4*(issued-(c+1)) + (NTA if c + 1 < NST else 0)}) lgkmcnt(0)")
                a("s_barrier")
                rg = read_groups(c+1, kind)
                dg = dma_groups(c % NST) if c + NST < 8 else [[], [], [], []]
                fill = [rg[k] + dg[k] for k in range(4)]
            else:
                a("s_waitcnt lgkmcnt(0)")
            for v in range(4):
                x, w = FR(b, v), FR(b, v) + 4
                st_ = []
                if kind == "main" and v == 0: st_ = stats_instrs(x)
                if kind == "cs" and v == 2: st_ = stats_instrs(XE(b))
                a(f"v_mfma_f32_32x32x16_bf16 {vr(ACC,16)}, {vr(w,4)}, {vr(x,4)}, {vr(ACC,16)}")
                for i_ in st_[0:6]: a(i_)
                for i_ in fill[v][:len(fill[v])//2]: a(i_)
                a(f"v_mfma_f32_32x32x16_bf16 {vr(CSQ,16)}, {vr(w,4)}, v[128:131], {vr(CSQ,16)}")
                for i_ in st_[6:12]: a(i_)
                for i_ in fill[v][len(fill[v])//2:]: a(i_)
                if kind != "none" and v % 2 == 0:
                    bop = vr(x,4) if kind == "main" else "v[128:131]"
                    a(f"v_mfma_f32_32x32x16_bf16 {vr(TK,16)}, {vr(KW(b,v//2),4)}, {bop}, {vr(TK,16)}")
                for i_ in st_[12:]: a(i_)
        if kind != "none": a(f"s_branch {Ljoin}")
    a.label(Ljoin)
    stamp(a, 2)
    if A_EXIT == 1: a("s_branch K_flush")
    a(f"s_setprio {PRIO_A1}")
    CONST = 65536
    Lc = a.newlabel("A_c")
    a("s_cmp_lg_u32 s3, 3"); a(f"s_cbranch_scc1 {Lc}")
    a("v_lshrrev_b32 v5, 3, v1"); a("v_lshlrev_b32 v5, 9, v5"); a("v_and_b32 v8, 7, v1"); a("v_lshl_add_u32 v5, v8, 2, v5")
    a(f"v_add_u32 v5, {CONST}, v5")
    a("v_cmp_gt_u32 vcc, 4, v8"); a(f"v_mov_b32 v9, {ONES_BF16:#x}"); a("s_nop 0"); a("v_cndmask_b32 v9, 0, v9, vcc")
    a("ds_write_b32 v5, v9")
    a.label(Lc)
    def pre(a):
        a("s_and_b32 s12, s2, 15"); a("s_lshl_b32 s12, s12, 8"); a(f"s_add_u32 s12, s12, {WS_FKV}")
    a("s_waitcnt lgkmcnt(0)")
    wg_wait(a, [("s12", 32)], pre=pre)
    stamp(a, 6)
    CA, CB, SA, SB, OA, OB = 48, 64, 80, 96, 112, 128
    KF = [32, 36]; VF = [[152, 156], [160, 164]]; IDX = 184
    STG = [192, 224]
    a("v_lshlrev_b32 v3, 4, v1"); a("s_lshl_b32 s12, s3, 10")
    def stage_load(soff_expr, st):
        for q in range(4):
            a(f"s_add_u32 s13, {soff_expr}, {q*4096}")
            a(f"buffer_load_dwordx4 {vr(STG[st]+8*q,4)}, v3, s[60:63], s13 offen {SC}")
            a(f"buffer_load_dwordx4 {vr(STG[st]+8*q+4,4)}, v3, s[64:67], s13 offen {SC}")
    def stage_write(st, slot):
        for q in range(4):
            a(f"ds_write_b128 v8, {vr(STG[st]+8*q,4)} offset:{slot*32768 + q*4096}")
            a(f"ds_write_b128 v8, {vr(STG[st]+8*q+4,4)} offset:{slot*32768 + 16384 + q*4096}")
    QA, QB = 144, 148
    a("s_lshl_b32 s13, s4, 6"); a("s_lshl_b32 s14, s7, 5"); a("s_add_u32 s13, s13, s14")
    a("v_add_u32 v11, s13, v6"); a("v_lshlrev_b32 v11, 2, v11")
    a(f"s_mov_b32 s14, {WS_ST}"); a(f"buffer_load_dword v186, v11, s[52:55], s14 offen {SC}")
    a(f"s_mov_b32 s14, {WS_ST+8192}"); a(f"buffer_load_dword v187, v11, s[52:55], s14 offen {SC}")
    a("v_lshlrev_b32 v11, 2, v1"); a(f"s_mov_b32 s14, {WS_KM}"); a(f"buffer_load_dword v188, v11, s[52:55], s14 offen {SC}")
    stage_load("s12", 0)
    a("s_add_u32 s15, s12, 16384")
    stage_load("s15", 1)
    a(f"v_mov_b32 v{IDX}, 0xdddddddd")
    for i in range(16):
        a(f"v_mov_b32 v{OA+i}, 0"); a(f"v_mov_b32 v{OB+i}, 0"); a(f"v_mov_b32 v{SB+i}, 0")
    for r in range(4): a(f"v_mov_b32 v{VF[1][1]+r}, 0")
    a("v_add_u32 v8, s12, v3")
    a("v_and_b32 v5, 15, v1"); a("v_lshl_add_u32 v5, v7, 4, v5"); a("v_lshlrev_b32 v5, 4, v5"); a("v_add_u32 v5, 16384, v5")
    a("v_and_b32 v11, 27, v6"); a("v_cmp_eq_u32 vcc, 16, v11")
    a(f"v_mov_b32 v9, {CONST+16}"); a(f"v_mov_b32 v10, {CONST}"); a("v_cndmask_b32 v9, v9, v10, vcc")
    a("v_cmp_gt_u32 vcc, 16, v6"); a("s_nop 1")
    a("v_cndmask_b32 v5, v9, v5, vcc")
    a("v_cndmask_b32 v9, 0, 1, vcc")
    a("s_waitcnt vmcnt(16)")
    stamp(a, 7)
    a(f"v_mul_f32 v186, {QSCALE!r}, v186"); a(f"v_mul_f32 v187, {QSCALE!r}, v187")
    dpp_wave_max(a, 188)
    for r in range(16): a(f"v_mul_f32 v{CSQ+r}, v187, v{CSQ+r}")
    for r in range(16): a(f"v_fma_f32 v{ACC+r}, v{ACC+r}, v186, v{CSQ+r}")
    a("v_readlane_b32 s14, v188, 63")
    for hd in range(2):
        for j in range(4): a(f"v_cvt_pk_bf16_f32 v{QA+4*hd+j}, v{ACC+8*hd+2*j}, v{ACC+8*hd+2*j+1}")
    a(f"v_mul_f32 v186, v{ACC}, v{ACC}"); a(f"v_mul_f32 v187, v{ACC+8}, v{ACC+8}")
    for j in range(1, 8):
        a(f"v_fmac_f32 v186, v{ACC+j}, v{ACC+j}"); a(f"v_fmac_f32 v187, v{ACC+8+j}, v{ACC+8+j}")
    half_sum(a, 186, 189); half_sum(a, 187, 190)
    a("v_mul_f32 v186, s14, v186"); a("v_mul_f32 v187, s14, v187")
    a("v_sqrt_f32 v186, v186"); a("v_sqrt_f32 v187, v187"); a("s_nop 0")
    a(f"v_mul_f32 v186, {1.015625!r}, v186"); a(f"v_mul_f32 v187, {1.015625!r}, v187")
    a("v_max_f32 v189, v186, v187")
    a(f"v_cmp_nge_f32 vcc, {M_THRESH!r}, v189")
    Lfast = a.newlabel("A_fast")
    a(f"s_cbranch_vccz {Lfast}")
    a.c("fallback: true row max")
    a("v_mov_b32 v186, 0xff800000"); a("v_mov_b32 v187, 0xff800000"); a("s_mov_b32 s14, 0")
    Lmx = a.newlabel("A_mx"); a.label(Lmx)
    a(f"buffer_load_dwordx4 {vr(KF[0],4)}, v3, s[60:63], s14 offen {SC}")
    a("s_waitcnt vmcnt(0)")
    a(f"v_mfma_f32_32x32x16_bf16 {vr(SA,16)}, {vr(KF[0],4)}, {vr(QA,4)}, 0")
    a(f"v_mfma_f32_32x32x16_bf16 {vr(CB,16)}, {vr(KF[0],4)}, {vr(QB,4)}, 0")
    a("s_nop 15"); a("s_nop 7")
    for i in range(0, 16, 2):
        a(f"v_max3_f32 v186, v{SA+i}, v{SA+i+1}, v186"); a(f"v_max3_f32 v187, v{CB+i}, v{CB+i+1}, v187")
    a("s_add_u32 s14, s14, 1024"); a("s_cmp_lt_u32 s14, 65536"); a(f"s_cbranch_scc1 {Lmx}")
    half_sum(a, 186, 189, "v_max_f32"); half_sum(a, 187, 189, "v_max_f32")
    a.label(Lfast)
    for i in range(16):
        a(f"v_sub_f32 v{CA+i}, 0, v186"); a(f"v_sub_f32 v{CB+i}, 0, v187")
    a("s_waitcnt vmcnt(8)")
    stage_write(0, 0)
    a("s_waitcnt lgkmcnt(0)")
    a("s_barrier")
    a(f"s_setprio {PRIO_A2}")
    NTILE = 4*ATT_ITERS
    def ldsoff(t): return ((t >> 4) & 1)*32768 + (t & 15)*1024
    def lds_reads(t):
        bf = t & 1
        va = 12 + ((t >> 2) & 1)
        a(f"ds_read_b128 {vr(KF[bf],4)}, v3 offset:{ldsoff(t)}")
        a(f"ds_read_b128 {vr(VF[bf][0],4)}, v{va} offset:{(t & 3)*1024}")
        a(f"ds_read_b128 {vr(VF[bf][1],4)}, v{va} offset:{(t & 3)*1024+512}")
    def vaddr(body):
        a(f"s_mov_b32 s71, {ldsoff(4*body)}")
        a(f"v_mad_u32_u24 v{12 + (body & 1)}, v9, s71, v5")
    vaddr(0)
    lds_reads(0)
    a("s_waitcnt lgkmcnt(0)")
    a(f"v_mfma_f32_32x32x16_bf16 {vr(SA,16)}, {vr(KF[0],4)}, {vr(QA,4)}, {vr(CA,16)}")
    vaddr(1)
    a("s_nop 7")
    stamp(a, 3)
    a("s_nop 7")
    for t in range(NTILE):
        bf = t & 1; nb = bf ^ 1
        for i in range(32):
            if i == 1 and t in (12, 16, 32, 28, 44): a("s_barrier")
            if t == 1 and i == 9: a("s_waitcnt vmcnt(0)")
            if t in (1, 2, 3, 4) and i in (10, 16):
                q = t - 1; k = 0 if i == 10 else 1
                a(f"ds_write_b128 v8, {vr(STG[1]+8*q+4*k,4)} offset:{1*32768 + k*16384 + q*4096}")
            if i == 2:
                a(f"v_smfmac_f32_32x32x32_bf16 {vr(OB,16)}, {vr(VF[nb][1],4)}, {vr(SB+8,8)}, v{IDX}")
            if i == 5: lds_reads((t+1) % 64)
            if i == 9 and (t & 3) == 0 and t > 0: vaddr(t//4 + 1)
            if t in (20, 36) and i == 9: a("s_waitcnt vmcnt(0)")
            if t in (20, 21, 22, 23) and i in (10, 16):
                q = t - 20; k = 0 if i == 10 else 1
                a(f"ds_write_b128 v8, {vr(STG[0]+8*q+4*k,4)} offset:{0*32768 + k*16384 + q*4096}")
            if t in (36, 37, 38, 39) and i in (10, 16):
                q = t - 36; k = 0 if i == 10 else 1
                a(f"ds_write_b128 v8, {vr(STG[1]+8*q+4*k,4)} offset:{1*32768 + k*16384 + q*4096}")
            if t in (5, 6, 7, 8) and i in (12, 19):
                q = t - 5; k = 0 if i == 12 else 1
                a(f"s_add_u32 s13, s12, {2*16384 + q*4096}")
                a(f"buffer_load_dwordx4 {vr(STG[0]+8*q+4*k,4)}, v3, s[{60+4*k}:{63+4*k}], s13 offen {SC}")
            if t in (9, 10, 11, 12) and i in (12, 19):
                q = t - 9; k = 0 if i == 12 else 1
                a(f"s_add_u32 s13, s12, {3*16384 + q*4096}")
                a(f"buffer_load_dwordx4 {vr(STG[1]+8*q+4*k,4)}, v3, s[{60+4*k}:{63+4*k}], s13 offen {SC}")
            if i == 7:
                a(f"v_mfma_f32_32x32x16_bf16 {vr(SB,16)}, {vr(KF[bf],4)}, {vr(QB,4)}, {vr(CB,16)}")
            if i == 12:
                a(f"v_smfmac_f32_32x32x32_bf16 {vr(OA,16)}, {vr(VF[bf][0],4)}, {vr(SA,8)}, v{IDX}")
            if i == 18:
                a(f"v_smfmac_f32_32x32x32_bf16 {vr(OA,16)}, {vr(VF[bf][1],4)}, {vr(SA+8,8)}, v{IDX}")
            if i == 22:
                a("s_waitcnt lgkmcnt(0)")
            if i == 23:
                a(f"v_mfma_f32_32x32x16_bf16 {vr(SA,16)}, {vr(KF[nb],4)}, {vr(QA,4)}, {vr(CA,16)}")
            if i == 28:
                a(f"v_smfmac_f32_32x32x32_bf16 {vr(OB,16)}, {vr(VF[bf][0],4)}, {vr(SB,8)}, v{IDX}")
            reg = SA + i if i < 16 else SB + i - 16
            a(f"v_exp_f32 v{reg}, v{reg}")
    a("s_nop 1")
    a(f"v_smfmac_f32_32x32x32_bf16 {vr(OB,16)}, {vr(VF[1][1],4)}, {vr(SB+8,8)}, v{IDX}")
    stamp(a, 4)
    a("s_nop 15"); a("s_nop 7")
    a(f"v_rcp_f32 v186, v{OA+8}"); a(f"v_rcp_f32 v187, v{OB+8}"); a("s_nop 0")
    for j in range(8):
        a(f"v_mul_f32 v{OA+j}, v{OA+j}, v186"); a(f"v_mul_f32 v{OB+j}, v{OB+j}, v187")
    for j in range(4):
        a(f"v_cvt_pk_bf16_f32 v{SA+j}, v{OA+2*j}, v{OA+2*j+1}"); a(f"v_cvt_pk_bf16_f32 v{SA+4+j}, v{OB+2*j}, v{OB+2*j+1}")
    a("s_lshl_b32 s13, s4, 1"); a("s_add_u32 s13, s13, s7"); a("s_lshl_b32 s13, s13, 5")
    a("s_lshl_b32 s14, s5, 2"); a("s_add_u32 s13, s13, s14"); a("s_lshl_b32 s14, s6, 1"); a("s_add_u32 s13, s13, s14"); a("s_lshl_b32 s13, s13, 10")
    a(f"buffer_store_dwordx4 {vr(SA,4)}, v3, s[56:59], s13 offen {SC}")
    a(f"buffer_store_dwordx4 {vr(SA+4,4)}, v3, s[56:59], s13 offen offset:1024 {SC}")
    a("s_lshl_b32 s12, s4, 7"); a("s_lshl_b32 s13, s5, 2"); a("s_add_u32 s12, s12, s13"); a(f"s_add_u32 s12, s12, {WS_FO}")
    signal(a, "s12", 1, 0, have_tag=True)
    stamp(a, 5)

GK1 = -2.0 * 0.7978845608028654 * 1.4426950408889634
GK2 = GK1 * 0.044715
def role_gu(a):
    a.c("==== GU role ====")
    stamp(a, 0)
    srd(a, 40, S_X, 2048*1024); srd(a, 44, S_WG, 512*3584); srd(a, 48, S_WU, 512*3584)
    a("s_and_b32 s6, s3, 1"); a("s_lshr_b32 s7, s3, 1")
    STG = 24576
    a("v_lshrrev_b32 v3, 2, v1"); a("v_lshlrev_b32 v3, 10, v3"); a("v_and_b32 v4, 3, v1"); a("v_lshrrev_b32 v5, 4, v1")
    a("v_xor_b32 v2, v4, v5"); a("v_lshl_add_u32 v8, v2, 4, v3")
    a("v_mul_u32_u24 v9, 3584, v5"); a("v_bfe_u32 v3, v1, 2, 2"); a("v_xor_b32 v3, v3, v5")
    a("v_lshl_add_u32 v9, v3, 6, v9"); a("v_lshl_add_u32 v9, v4, 4, v9")
    a("s_lshl_b32 s8, s4, 7"); a("s_lshl_b32 s9, s3, 5"); a("s_add_u32 s8, s8, s9"); a("s_lshl_b32 s8, s8, 10")
    a(f"s_mul_i32 s9, s3, {8*3584}"); a("s_lshl_b32 s10, s5, 8"); a("s_add_u32 s9, s9, s10"); a("s_lshl_b32 s10, s3, 11")
    a("s_and_b32 s66, s4, 3"); a("s_lshl_b32 s66, s66, 2")
    def dma_groups(st):
        pre = ["s_lshl_b32 s12, s66, 6", "s_add_u32 s12, s12, s8", f"s_mul_i32 s13, s66, {32*3584}", "s_add_u32 s13, s13, s9",
               "s_add_u32 s66, s66, 1", "s_and_b32 s66, s66, 15"]
        gs = []
        for i in range(2):
            gs.append([f"s_add_u32 m0, s10, {st*STG + i*1024}", f"s_add_u32 s14, s12, {i*16*1024}", "buffer_load_dwordx4 v8, s[40:43], s14 offen lds"])
        for g in range(2):
            for i in range(2):
                gs.append([f"s_add_u32 m0, s10, {st*STG + 8192 + g*8192 + i*1024}", f"s_add_u32 s14, s13, {i*4*3584}",
                           f"buffer_load_dwordx4 v9, s[{44+4*g}:{47+4*g}], s14 offen lds"])
        gs[0] = pre + gs[0]
        return gs
    ACC = 128
    for i in range(128): a(f"v_mov_b32 v{ACC+i}, 0")
    if GU_DELAY: a(f"s_sleep {GU_DELAY}")
    for st in range(3):
        for g in dma_groups(st):
            for x in g: a(x)
    NT = 0
    if TOUCH:
        a("v_lshrrev_b32 v2, 1, v1"); a("v_mul_u32_u24 v2, 3584, v2"); a("v_and_b32 v3, 1, v1"); a("v_lshl_add_u32 v2, v3, 7, v2")
        a("s_and_b32 s14, s4, 3"); a("s_lshl_b32 s14, s14, 2"); a("s_add_u32 s14, s14, s3"); a(f"s_mul_i32 s14, s14, {32*3584}")
        a("s_lshl_b32 s15, s5, 8"); a("s_add_u32 s14, s14, s15")
        a("buffer_load_dword v60, v2, s[44:47], s14 offen"); a("buffer_load_dword v61, v2, s[48:51], s14 offen")
        a("v_lshrrev_b32 v2, 3, v1"); a("v_lshlrev_b32 v2, 10, v2"); a("v_and_b32 v3, 7, v1"); a("v_lshl_add_u32 v2, v3, 7, v2")
        a("s_cmp_ge_u32 s5, 7"); a("s_cselect_b32 s14, 7, 0"); a("s_sub_u32 s14, s5, s14")
        a("s_cmp_ge_u32 s3, 2"); a("s_cselect_b32 s14, 7, s14"); a("s_lshl_b32 s14, s14, 4")
        a("s_and_b32 s15, s3, 1"); a("s_lshl_b32 s15, s15, 3"); a("s_add_u32 s14, s14, s15")
        a("s_lshl_b32 s15, s4, 7"); a("s_add_u32 s14, s14, s15"); a("s_lshl_b32 s14, s14, 10")
        a("buffer_load_dword v62, v2, s[40:43], s14 offen")
        NT = 3
    srd(a, 52, S_WS, WS_SMALL_END); srd(a, 56, S_WS, HF_BYTES, WS_HF)
    a("v_and_b32 v6, 31, v1"); a("v_lshrrev_b32 v7, 5, v1")
    a("v_bfe_u32 v10, v1, 2, 2"); a("v_xor_b32 v10, v10, v7"); a("v_lshlrev_b32 v10, 4, v10"); a("v_lshl_add_u32 v10, v6, 6, v10")
    a("s_lshl_b32 s14, s6, 12"); a("v_add_u32 v10, s14, v10"); a("v_xor_b32 v11, 32, v10")
    a("v_bfe_u32 v2, v1, 2, 2"); a("v_lshl_add_u32 v12, v7, 3, v2"); a("v_lshlrev_b32 v12, 8, v12")
    a("s_lshl_b32 s14, s7, 1"); a("v_xor_b32 v2, s14, v2"); a("v_lshl_add_u32 v12, v2, 6, v12")
    a("v_bfe_u32 v2, v1, 4, 1"); a("v_lshl_add_u32 v12, v2, 5, v12"); a("v_and_b32 v2, 3, v1"); a("v_lshl_add_u32 v12, v2, 3, v12")
    a("v_add_u32 v12, 8192, v12"); a("v_xor_b32 v13, 64, v12")
    ACC = 128
    def acc(mt, ft, g): return ACC + ((mt*2+ft)*2+g)*16
    XF = lambda b, mt: 64 + (b*2+mt)*4
    WF = lambda b, ft, g: 80 + ((b*2+ft)*2+g)*4
    CSA = lambda ft: 20 + 16*ft
    for i in range(32): a(f"v_mov_b32 v{20+i}, 0")
    for i in range(4): a(f"v_mov_b32 v{52+i}, {ONES_BF16:#x}")
    for i in range(4): a(f"v_add_u32 v{14+i}, {2*STG}, v{10+i}")
    def read_list(st, sstep, b):
        base = 14 if st == 2 else 10
        so = 0 if st == 2 else st*STG
        L = []
        for mt in range(2): L.append(f"ds_read_b128 {vr(XF(b,mt),4)}, v{base+sstep} offset:{so + mt*2048}")
        for ft in range(2):
            for g in range(2):
                L.append(f"ds_read_b64_tr_b16 {vr(WF(b,ft,g),2)}, v{base+2+ft} offset:{so + g*8192 + (16*sstep)*256}")
                L.append(f"ds_read_b64_tr_b16 {vr(WF(b,ft,g)+2,2)}, v{base+2+ft} offset:{so + g*8192 + (16*sstep+4)*256}")
        return L if not GU_NOREAD else ["s_nop 0"]*10
    def mfma_list(b, cs=None):
        L = [f"v_mfma_f32_32x32x16_bf16 {vr(acc(mt,ft,g),16)}, {vr(WF(b,ft,g),4)}, {vr(XF(b,mt),4)}, {vr(acc(mt,ft,g),16)}"
             for ft in range(2) for g in range(2) for mt in range(2)]
        if cs is not None:
            L += [f"v_mfma_f32_32x32x16_bf16 {vr(CSA(g),16)}, {vr(WF(b,cs,g),4)}, v[52:55], {vr(CSA(g),16)}" for g in range(2)]
        return L
    a(f"s_waitcnt vmcnt({12+NT})"); a("s_barrier")
    stamp(a, 4)
    for x in read_list(0, 0, 0): a(x)
    def emit_chunks(c_lo, c_hi, cs, pend):
        for c in range(c_lo, c_hi):
            st = c % 3
            a("s_waitcnt lgkmcnt(0)")
            rl = read_list(st, 1, 1)
            fill = [rl[2*k:2*k+2] for k in range(5)] + pend
            pend = []
            interleave(a, mfma_list(0, cs), fill)
            if c < 15:
                vm = 6 if c + 2 <= 15 else 0
                if c == 0: vm += NT
                a(f"s_waitcnt vmcnt({vm}) lgkmcnt(0)")
                if not GU_NOBAR: a("s_barrier")
                rl = read_list((c+1) % 3, 0, 0)
                fill = [rl[2*k:2*k+2] for k in range(5)]
                if c + 3 <= 15 and not GU_NODMA:
                    dg = dma_groups(st)
                    fill += dg[:3]; pend = dg[3:]
                interleave(a, mfma_list(1, cs), fill)
            else:
                a("s_waitcnt lgkmcnt(0)")
                interleave(a, mfma_list(1, cs), [])
        return pend
    Lw1 = a.newlabel("GU_wm1"); Lj = a.newlabel("GU_j")
    a("s_cmp_eq_u32 s6, 1"); a(f"s_cbranch_scc1 {Lw1}")
    pend = emit_chunks(0, 4, 0, [])
    a(f"s_branch {Lj}")
    a.label(Lw1)
    pend = emit_chunks(0, 4, 1, [])
    a.label(Lj)
    tag_prefetch(a, 56)
    a("v_lshrrev_b32 v58, 5, v1"); a("v_lshlrev_b32 v58, 4, v58")
    a(f"s_mul_i32 s67, s4, {3584*4}"); a("s_lshl_b32 s68, s5, 9"); a("s_add_u32 s67, s67, s68"); a("s_lshl_b32 s68, s7, 8"); a("s_add_u32 s67, s67, s68")
    a("s_lshl_b32 s68, s6, 7"); a("s_add_u32 s67, s67, s68"); a(f"s_add_u32 s67, s67, {WS_CSP}"); a(f"s_add_u32 s68, s67, {1792*4}")
    set_exec(a, 0x0000000100000001)
    for g in range(2):
        for q in range(4):
            a(f"buffer_store_dwordx4 {vr(CSA(g)+4*q,4)}, v58, s[52:55], s{67+g} offen offset:{32*q} {SC}")
    a("s_mov_b64 exec, -1")
    NCS = 9
    pend = emit_chunks(4, 5, None, pend)
    pend = emit_chunks(5, 7, None, pend)
    Lf = a.newlabel("GU_cf")
    a("s_cmp_lg_u32 s3, 0"); a(f"s_cbranch_scc1 {Lf}")
    tag_finish(a, 56)
    a("s_lshr_b32 s67, s4, 2"); a("s_mul_i32 s67, s67, 14"); a("s_add_u32 s67, s67, s5"); a("s_lshl_b32 s67, s67, 6")
    a("s_and_b32 s68, s4, 3"); a("s_lshl_b32 s68, s68, 2"); a("s_add_u32 s67, s67, s68"); a(f"s_add_u32 s67, s67, {WS_FCS}")
    a("v_mov_b32 v58, 0"); a("v_mov_b32 v59, s74")
    set_exec(a, 1)
    a("buffer_store_dword v59, v58, s[52:55], s67 offen sc0 sc1")
    a("s_mov_b64 exec, -1")
    a.label(Lf)
    pend = emit_chunks(7, 16, None, pend)
    stamp(a, 1)
    a(f"s_setprio {PRIO_GE}")
    def pre(a):
        a("s_lshr_b32 s13, s4, 2"); a("s_mul_i32 s13, s13, 14"); a("s_add_u32 s13, s13, s5"); a("s_lshl_b32 s13, s13, 6"); a(f"s_add_u32 s13, s13, {WS_FCS}")
        a("s_and_b32 s12, s2, 15"); a("s_lshl_b32 s12, s12, 8"); a(f"s_add_u32 s12, s12, {WS_FKV}")
    wg_wait(a, [("s12", 32), ("s13", 4)], have_tag=True, pre=pre)
    a("s_lshl_b32 s8, s4, 7"); a("s_lshl_b32 s9, s6, 6"); a("s_add_u32 s8, s8, s9")
    a("v_add_u32 v2, s8, v6"); a("v_lshlrev_b32 v2, 2, v2")
    a(f"s_mov_b32 s9, {WS_ST}"); a(f"s_mov_b32 s10, {WS_ST+8192}")
    for mt in range(2):
        a(f"buffer_load_dword v{8+mt}, v2, s[52:55], s9 offen offset:{mt*128} {SC}")
        a(f"buffer_load_dword v{10+mt}, v2, s[52:55], s10 offen offset:{mt*128} {SC}")
    a("s_and_b32 s8, s4, 12"); a(f"s_mul_i32 s8, s8, {3584*4}"); a("s_lshl_b32 s9, s5, 9"); a("s_add_u32 s8, s8, s9"); a("s_lshl_b32 s9, s7, 8"); a("s_add_u32 s8, s8, s9")
    a(f"s_add_u32 s8, s8, {WS_CSP}")
    a(f"v_mul_u32_u24 v2, {1792*4}, v7"); a("v_lshl_add_u32 v2, v6, 3, v2")
    for j in range(4):
        a(f"s_add_u32 s9, s8, {j*3584*4}")
        a(f"buffer_load_dwordx2 {vr(16+2*j,2)}, v2, s[52:55], s9 offen {SC}")
    CS = lambda ft, g: 64 + (ft*2+g)*16
    a("s_lshl_b32 s9, s3, 9"); a("v_lshl_add_u32 v3, v1, 3, s9"); a("v_lshl_add_u32 v4, v7, 4, s9")
    a("s_waitcnt vmcnt(0)")
    a("v_add_f32 v16, v16, v18"); a("v_add_f32 v17, v17, v19"); a("v_add_f32 v20, v20, v22"); a("v_add_f32 v21, v21, v23")
    a("v_add_f32 v16, v16, v20"); a("v_add_f32 v17, v17, v21")
    a("ds_write_b64 v3, v[16:17]")
    a("s_waitcnt lgkmcnt(0)")
    for ft in range(2):
        for g in range(2):
            for q in range(4):
                a(f"ds_read_b128 {vr(CS(ft,g)+4*q,4)}, v4 offset:{g*256 + ft*128 + q*32}")
    a("v_lshlrev_b32 v3, 4, v1")
    a("s_lshl_b32 s8, s4, 2"); a("s_lshl_b32 s9, s6, 1"); a("s_add_u32 s8, s8, s9"); a("s_mul_i32 s8, s8, 112")
    a("s_lshl_b32 s9, s5, 3"); a("s_add_u32 s8, s8, s9"); a("s_lshl_b32 s9, s7, 2"); a("s_add_u32 s8, s8, s9"); a("s_lshl_b32 s8, s8, 10")
    a(f"v_mov_b32 v12, {GK1!r}"); a(f"v_mov_b32 v13, {GK2!r}")
    a("s_waitcnt vmcnt(0) lgkmcnt(0)")
    stamp(a, 2)
    T = 16
    for mt in range(2):
        a(f"v_mov_b32 v{40+4*mt}, v{8+mt}"); a(f"v_mov_b32 v{41+4*mt}, v{8+mt}"); a(f"v_mov_b32 v{42+4*mt}, v{10+mt}"); a(f"v_mov_b32 v{43+4*mt}, v{10+mt}")
    a("v_mov_b32 v48, v12"); a("v_mov_b32 v49, v12"); a("v_mov_b32 v50, v13"); a("v_mov_b32 v51, v13"); a("v_mov_b32 v52, 1.0"); a("v_mov_b32 v53, 1.0")
    P2 = lambda r: f"v[{r}:{r+1}]"
    for mt in range(2):
        A2, B2 = P2(40+4*mt), P2(42+4*mt)
        for ft in range(2):
            G, U = acc(mt,ft,0), acc(mt,ft,1)
            R = range(0, 16, 2)
            tt = lambda r: T + r
            t2 = lambda r: 54 + (r // 2 % 4) * 2
            for r in R: a(f"v_pk_mul_f32 {P2(tt(r))}, {B2}, {P2(CS(ft,0)+r)}")
            for r in R: a(f"v_pk_fma_f32 {P2(G+r)}, {P2(G+r)}, {A2}, {P2(tt(r))}")
            for r in R: a(f"v_pk_mul_f32 {P2(tt(r))}, {B2}, {P2(CS(ft,1)+r)}")
            for r in R: a(f"v_pk_fma_f32 {P2(U+r)}, {P2(U+r)}, {A2}, {P2(tt(r))}")
            for r in R: a(f"v_pk_mul_f32 {P2(tt(r))}, {P2(G+r)}, {P2(G+r)}")
            for r in R: a(f"v_pk_fma_f32 {P2(tt(r))}, {P2(tt(r))}, v[50:51], v[48:49]")
            for r in R: a(f"v_pk_mul_f32 {P2(tt(r))}, {P2(tt(r))}, {P2(G+r)}")
            for r in range(16): a(f"v_exp_f32 v{T+r}, v{T+r}")
            for r in R: a(f"v_pk_mul_f32 {P2(U+r)}, {P2(U+r)}, {P2(G+r)}")
            for r in R: a(f"v_pk_add_f32 {P2(tt(r))}, {P2(tt(r))}, v[52:53]")
            for r in range(16): a(f"v_rcp_f32 v{T+r}, v{T+r}")
            a("s_nop 0")
            for r in R: a(f"v_pk_mul_f32 {P2(U+r)}, {P2(U+r)}, {P2(tt(r))}")
            for j in range(8): a(f"v_cvt_pk_bf16_f32 v{G+j}, v{U+2*j}, v{U+2*j+1}")
            a(f"s_add_u32 s9, s8, {(mt*112 + 2*ft)*1024}")
            a(f"buffer_store_dwordx4 {vr(G,4)}, v3, s[56:59], s9 offen {SC}")
            a(f"buffer_store_dwordx4 {vr(G+4,4)}, v3, s[56:59], s9 offen offset:1024 {SC}")
    a("s_lshl_b32 s12, s4, 7"); a("s_lshl_b32 s13, s5, 2"); a("s_add_u32 s12, s12, s13"); a(f"s_add_u32 s12, s12, {WS_FH}")
    signal(a, "s12", 1, 0, have_tag=True)
    stamp(a, 3)

def role_fin(a):
    a.c("==== FIN role ====")
    stamp(a, 0)
    srd(a, 40, S_WD, 1792*1024); srd(a, 44, S_WO, 512*1024); srd(a, 48, S_X, 2048*1024); srd(a, 52, S_WS, WS_SMALL_END)
    srd(a, 56, S_WS, HF_BYTES, WS_HF); srd(a, 60, S_WS, OF_BYTES, WS_OF); srd(a, 64, S_OUT, 2048*1024)
    R = 7
    a("v_lshrrev_b32 v3, 3, v1"); a("v_lshlrev_b32 v3, 10, v3"); a("v_bfe_u32 v4, v1, 2, 1"); a("v_bfe_u32 v5, v1, 4, 1")
    a("v_xor_b32 v4, v4, v5"); a("v_lshl_add_u32 v8, v4, 6, v3"); a("v_and_b32 v4, 3, v1"); a("v_lshl_add_u32 v8, v4, 4, v8")
    a("v_lshlrev_b32 v9, 4, v1"); a("s_lshl_b32 s6, s3, 14")
    a("v_lshrrev_b32 v7, 5, v1"); a("v_and_b32 v6, 31, v1"); a("v_bfe_u32 v2, v1, 2, 2")
    a("v_lshl_add_u32 v10, v7, 2, v2"); a("v_lshlrev_b32 v10, 7, v10"); a("v_lshrrev_b32 v2, 1, v2"); a("v_lshl_add_u32 v10, v2, 6, v10")
    a("v_and_b32 v2, 1, v1"); a("v_lshl_add_u32 v10, v2, 5, v10"); a("v_bfe_u32 v2, v1, 4, 1"); a("v_lshl_add_u32 v10, v2, 4, v10")
    a("v_bfe_u32 v2, v1, 1, 1"); a("v_lshl_add_u32 v10, v2, 3, v10"); a("v_add_u32 v10, s6, v10"); a("v_xor_b32 v11, 64, v10")
    ACC = 192
    acc = lambda mt, nt: ACC + (mt*2+nt)*16
    for i in range(64): a(f"v_mov_b32 v{ACC+i}, 0")
    HB = lambda p, mt: 64 + (p*2+mt)*4
    WF = lambda b, nt: 128 + (b*2+nt)*4
    a("s_and_b32 s7, s3, 1"); a("s_lshr_b32 s8, s3, 1"); a("s_lshl_b32 s9, s4, 6"); a("s_lshl_b32 s10, s7, 5"); a("s_add_u32 s9, s9, s10")
    a("v_add_u32 v12, s9, v6"); a("v_lshlrev_b32 v12, 10, v12"); a("v_lshl_add_u32 v12, v7, 5, v12")
    a("s_lshl_b32 s9, s5, 7"); a("s_lshl_b32 s10, s8, 6"); a("s_add_u32 s9, s9, s10"); a("v_add_u32 v12, s9, v12")
    a("buffer_load_dwordx4 v[16:19], v12, s[48:51], 0 offen")
    a("buffer_load_dwordx4 v[20:23], v12, s[48:51], 0 offen offset:16")
    a("s_and_b32 s70, s4, 3"); a("s_mul_i32 s70, s70, 7"); a("s_mul_i32 s71, s5, 7"); a("s_lshr_b32 s71, s71, 1"); a("s_add_u32 s70, s70, s71")
    a("s_cmp_ge_u32 s70, 28"); a("s_cselect_b32 s71, 28, 0"); a("s_sub_u32 s70, s70, s71")
    a("s_mov_b32 s72, s70")
    a("s_lshl_b32 s11, s4, 1"); a("s_mul_i32 s11, s11, 112"); a("s_mul_i32 s12, s3, 28"); a("s_add_u32 s11, s11, s12"); a("s_lshl_b32 s11, s11, 10")
    a("s_lshl_b32 s12, s12, 14"); a("s_lshl_b32 s13, s5, 7"); a("s_add_u32 s12, s12, s13")
    def adv(reg):
        a(f"s_add_u32 s{reg}, s{reg}, 1"); a(f"s_cmp_eq_u32 s{reg}, 28"); a(f"s_cselect_b32 s{reg}, 0, s{reg}")
    def issue_w(slot):
        a("s_lshl_b32 s15, s70, 14"); a("s_add_u32 s15, s15, s12"); adv(70)
        for q in range(2):
            a(f"s_add_u32 m0, s6, {slot*2048 + q*1024}")
            a(f"s_add_u32 s14, s15, {q*8*1024}")
            a("buffer_load_dwordx4 v8, s[40:43], s14 offen lds")
    def issue_h(slot):
        a("s_lshl_b32 s15, s72, 10"); a("s_add_u32 s15, s15, s11"); adv(72)
        for mt in range(2):
            a(f"s_add_u32 s14, s15, {mt*112*1024}")
            a(f"buffer_load_dwordx4 {vr(HB(slot,mt),4)}, v9, s[56:59], s14 offen {SC}")
    def trreads(slot, b):
        for nt in range(2):
            a(f"ds_read_b64_tr_b16 {vr(WF(b,nt),2)}, v{10+nt} offset:{slot*2048}")
            a(f"ds_read_b64_tr_b16 {vr(WF(b,nt)+2,2)}, v{10+nt} offset:{slot*2048 + 8*128}")
    def mfmas(slot, b):
        for nt in range(2):
            for mt in range(2):
                a(f"v_mfma_f32_32x32x16_bf16 {vr(acc(mt,nt),16)}, {vr(WF(b,nt),4)}, {vr(HB(slot,mt),4)}, {vr(acc(mt,nt),16)}")
    for i in range(6): issue_w(i)
    def pre(a):
        a("s_lshr_b32 s14, s4, 1"); a("s_lshl_b32 s14, s14, 7"); a(f"s_add_u32 s14, s14, {WS_FH}")
    wg_wait(a, [("s14", 14)], pre=pre)
    stamp(a, 1)
    for i in range(6): issue_h(i)
    a("s_waitcnt vmcnt(12)")
    trreads(0, 0); trreads(1, 1)
    def grp_w(slot):
        g0 = ["s_lshl_b32 s15, s70, 14", "s_add_u32 s15, s15, s12", "s_add_u32 s70, s70, 1", "s_cmp_eq_u32 s70, 28", "s_cselect_b32 s70, 0, s70"]
        L = []
        for q in range(2):
            L.append([f"s_add_u32 m0, s6, {slot*2048 + q*1024}", f"s_add_u32 s14, s15, {q*8*1024}", "buffer_load_dwordx4 v8, s[40:43], s14 offen lds"])
        L[0] = g0 + L[0]
        return L
    def grp_h(slot):
        g0 = ["s_lshl_b32 s69, s72, 10", "s_add_u32 s69, s69, s11", "s_add_u32 s72, s72, 1", "s_cmp_eq_u32 s72, 28", "s_cselect_b32 s72, 0, s72"]
        L = []
        for mt in range(2):
            L.append([f"s_add_u32 s14, s69, {mt*112*1024}", f"buffer_load_dwordx4 {vr(HB(slot,mt),4)}, v9, s[56:59], s14 offen {SC}"])
        L[0] = g0 + L[0]
        return L
    N = 28
    for i in range(N):
        slot = i % R; b = i % 3
        last = min(i - 1, N - 7)
        if i <= 5: aH = 2*(5-i) + 4*(last+1)
        else: aH = 4*(last - (i-6))
        need = aH
        j = i + 2
        if j < N and j > 5: need = min(need, 2 + 4*(last - (j-6)))
        a(f"s_waitcnt vmcnt({min(need,63)}) lgkmcnt({4 if i+1 < N else 0})")
        mains = [f"v_mfma_f32_32x32x16_bf16 {vr(acc(mt,nt),16)}, {vr(WF(b,nt),4)}, {vr(HB(slot,mt),4)}, {vr(acc(mt,nt),16)}" for nt in range(2) for mt in range(2)]
        fill = []
        tr = []
        if j < N:
            for nt in range(2):
                tr += [f"ds_read_b64_tr_b16 {vr(WF(j%3,nt),2)}, v{10+nt} offset:{(j%R)*2048}", f"ds_read_b64_tr_b16 {vr(WF(j%3,nt)+2,2)}, v{10+nt} offset:{(j%R)*2048 + 8*128}"]
        if i + 6 < N:
            gw = grp_w((i+6) % R); gh = grp_h((i+6) % R)
            fill = [tr + gw[0], gw[1], gh[0], gh[1]]
        else:
            fill = [tr]
        interleave(a, mains, fill)
    stamp(a, 2)
    a("s_barrier")
    a("v_add_u32 v13, s6, v9")
    a("s_nop 7"); a("s_nop 7")
    Ls = [a.newlabel("F_own") for _ in range(4)]
    for tl in range(4):
        a(f"s_cmp_eq_u32 s3, {tl}"); a(f"s_cbranch_scc1 {Ls[tl]}")
        mt, nt = tl & 1, tl >> 1
        for q in range(4): a(f"ds_write_b128 v13, {vr(acc(mt,nt)+4*q,4)} offset:{tl*4096 + q*1024}")
        a.label(Ls[tl])
    Lm = [a.newlabel("F_mv") for _ in range(4)]; Ldone = a.newlabel("F_mvd")
    for tl in range(4):
        a(f"s_cmp_lg_u32 s3, {tl}"); a(f"s_cbranch_scc1 {Lm[tl]}")
        mt, nt = tl & 1, tl >> 1
        for i in range(16): a(f"v_mov_b32 v{24+i}, v{acc(mt,nt)+i}")
        a(f"s_branch {Ldone}")
        a.label(Lm[tl])
    a.label(Ldone)
    for j in range(8):
        a(f"v_lshlrev_b32 v40, 16, v{16+j}"); a(f"v_and_b32 v41, 0xffff0000, v{16+j}")
        a(f"v_add_f32 v{24+2*j}, v{24+2*j}, v40"); a(f"v_add_f32 v{24+2*j+1}, v{24+2*j+1}, v41")
    a("s_lshl_b32 s14, s3, 12"); a("v_add_u32 v13, s14, v9")
    a("s_waitcnt lgkmcnt(0)"); a("s_barrier")
    for k in range(1, 4):
        a(f"s_add_u32 s15, s3, {k}"); a("s_and_b32 s15, s15, 3"); a("s_lshl_b32 s15, s15, 14"); a("v_add_u32 v14, s15, v13")
        for q in range(4): a(f"ds_read_b128 {vr(64+16*(k-1)+4*q,4)}, v14 offset:{q*1024}")
    for k in range(3):
        a(f"s_waitcnt lgkmcnt({4*(2-k)})")
        for i in range(16): a(f"v_add_f32 v{24+i}, v{24+i}, v{64+16*k+i}")
    a("s_barrier")
    a("s_lshl_b32 s12, s3, 17"); a("s_add_u32 s12, s12, s13")
    for i in range(16):
        a(f"s_add_u32 m0, s6, {i*1024}")
        a(f"s_add_u32 s14, s12, {i*8*1024}")
        a("buffer_load_dwordx4 v8, s[44:47], s14 offen lds")
    a("v_subrev_u32 v14, s6, v10"); a("s_lshr_b32 s14, s3, 1"); a("s_lshl_b32 s14, s14, 15"); a("v_add_u32 v14, s14, v14"); a("v_xor_b32 v15, 64, v14")
    for i in range(32): a(f"v_mov_b32 v{192+i}, 0")
    a("s_waitcnt vmcnt(0)")
    a("s_barrier")
    WO = lambda i, nt: 128 + (i*2+nt)*4 if i < 8 else 224 + ((i-8)*2+nt)*4 % 32
    for i in range(8):
        for nt in range(2):
            a(f"ds_read_b64_tr_b16 {vr(128+(i*2+nt)*4,2)}, v{14+nt} offset:{i*2048}")
            a(f"ds_read_b64_tr_b16 {vr(128+(i*2+nt)*4+2,2)}, v{14+nt} offset:{i*2048 + 8*128}")
        if i % 2 == 1: a("s_waitcnt lgkmcnt(0)")
    def wr(i):
        for nt in range(2):
            r = 224 + ((i & 3)*2 + nt)*4
            a(f"ds_read_b64_tr_b16 {vr(r,2)}, v{14+nt} offset:{i*2048}")
            a(f"ds_read_b64_tr_b16 {vr(r+2,2)}, v{14+nt} offset:{i*2048 + 8*128}")
    for i in range(8, 12): wr(i)
    def pre(a):
        a("s_lshl_b32 s14, s4, 7"); a(f"s_add_u32 s14, s14, {WS_FO}")
    wg_wait(a, [("s14", 8)], have_tag=True, pre=pre)
    a(f"s_setprio {PRIO_FT}")
    stamp(a, 5)
    a("s_lshl_b32 s11, s4, 1"); a("s_and_b32 s14, s3, 1"); a("s_add_u32 s11, s11, s14"); a("s_lshl_b32 s11, s11, 15")
    a("s_lshr_b32 s14, s3, 1"); a("s_lshl_b32 s14, s14, 14"); a("s_add_u32 s11, s11, s14")
    OB_ = lambda i: 64 + 4*i
    for i in range(16):
        if i % 4 == 0: a(f"s_add_u32 s14, s11, {i*1024}")
        a(f"buffer_load_dwordx4 {vr(OB_(i),4)}, v9, s[60:63], s14 offen offset:{(i%4)*1024} {SC}")
    for i in range(16):
        a(f"s_waitcnt vmcnt({15-i}) lgkmcnt(0)" if i in (0, 12) else f"s_waitcnt vmcnt({15-i})")
        for nt in range(2):
            w = 128+(i*2+nt)*4 if i < 8 else 224 + ((i & 3)*2 + nt)*4
            a(f"v_mfma_f32_32x32x16_bf16 {vr(192+16*nt,16)}, {vr(w,4)}, {vr(OB_(i),4)}, {vr(192+16*nt,16)}")
        if 8 <= i < 12: wr(i + 4)
    stamp(a, 3)
    a("s_nop 15")
    a("s_lshl_b32 s14, s3, 12"); a("v_add_u32 v13, s14, v9")
    a("s_barrier")
    Lk1 = a.newlabel("F_k1"); Lk2 = a.newlabel("F_k2")
    a("s_cmp_ge_u32 s3, 2"); a(f"s_cbranch_scc1 {Lk1}")
    for q in range(4): a(f"ds_write_b128 v13, {vr(208+4*q,4)} offset:{q*1024}")
    for i in range(16): a(f"v_add_f32 v{24+i}, v{24+i}, v{192+i}")
    a(f"s_branch {Lk2}")
    a.label(Lk1)
    for q in range(4): a(f"ds_write_b128 v13, {vr(192+4*q,4)} offset:{q*1024}")
    for i in range(16): a(f"v_add_f32 v{24+i}, v{24+i}, v{208+i}")
    a.label(Lk2)
    a("s_xor_b32 s14, s3, 2"); a("s_lshl_b32 s14, s14, 12"); a("v_add_u32 v13, s14, v9")
    a("s_waitcnt lgkmcnt(0)"); a("s_barrier")
    for q in range(4): a(f"ds_read_b128 {vr(64+4*q,4)}, v13 offset:{q*1024}")
    a("s_waitcnt lgkmcnt(0)")
    for i in range(16): a(f"v_add_f32 v{24+i}, v{24+i}, v{64+i}")
    for j in range(8): a(f"v_cvt_pk_bf16_f32 v{64+j}, v{24+2*j}, v{24+2*j+1}")
    a(f"buffer_store_dwordx4 v[64:67], v12, s[64:67], 0 offen {OUTFLAGS[OUTF]}")
    a(f"buffer_store_dwordx4 v[68:71], v12, s[64:67], 0 offen offset:16 {OUTFLAGS[OUTF]}")
    stamp(a, 4)

def kd(name, vgpr=256, sgpr=102):
    return f"""
.section .rodata,"a"
.p2align 6
.amdhsa_kernel {name}
  .amdhsa_next_free_vgpr {vgpr}
  .amdhsa_next_free_sgpr {sgpr}
  .amdhsa_accum_offset {vgpr}
  .amdhsa_group_segment_fixed_size 0
  .amdhsa_kernarg_size 96
  .amdhsa_user_sgpr_count 2
  .amdhsa_user_sgpr_kernarg_segment_ptr 1
  .amdhsa_system_sgpr_workgroup_id_x 1
.end_amdhsa_kernel
"""
def khead(name):
    return f""".text
.globl {name}
.p2align 8
.type {name},@function
{name}:
"""
HEADER = open(f"cdna_kernels/{NAME}.s.ref").read().split("; Override")[0]
def map_attn_ids(a, idreg):
    a(f"s_and_b32 s4, s{idreg}, 7"); a("s_lshl_b32 s4, s4, 2"); a(f"s_lshr_b32 s5, s{idreg}, 3")
    a("s_and_b32 s6, s5, 3"); a("s_add_u32 s4, s4, s6"); a("s_lshr_b32 s5, s5, 2")
def map_gu_ids(a, idreg):
    a(f"s_and_b32 s6, s{idreg}, 7"); a(f"s_lshr_b32 s7, s{idreg}, 3"); a("s_lshr_b32 s4, s6, 1"); a("s_lshl_b32 s4, s4, 2")
    a("s_and_b32 s8, s7, 3"); a("s_add_u32 s4, s4, s8"); a("s_and_b32 s5, s6, 1"); a("s_mul_i32 s5, s5, 7"); a("s_lshr_b32 s7, s7, 2"); a("s_add_u32 s5, s5, s7")

def build():
    out = HEADER
    out += f"; @launch grid=({ID_END},1,1) block=(256,1,1) lds=81920\n"
    out += '.amdgcn_target "amdgcn-amd-amdhsa--gfx950"\n'
    KN = NAME + "_kernel"
    a = Asm()
    a(f"s_cmp_ge_u32 s2, {ID_END}"); a("s_cbranch_scc1 K_end")
    prologue(a); stamp_init(a)
    if HPROF:
        a("s_memrealtime s[96:97]"); a("s_waitcnt lgkmcnt(0)")
    a(f"s_cmp_ge_u32 s2, {ID_A}"); a("s_cbranch_scc1 K_notkv")
    a(f"s_setprio {PRIO_KV}")
    a("s_and_b32 s4, s2, 7"); a("s_lshl_b32 s4, s4, 2"); a("s_lshr_b32 s5, s2, 3"); a("s_add_u32 s4, s4, s5")
    role_kv(a)
    a("s_lshl_b32 s12, s4, 2"); a(f"s_add_u32 s12, s12, {WS_FKV}")
    signal(a, "s12", 16, 256, have_tag=True)
    stamp(a, 5)
    stamp(a, 4)
    a("s_branch K_flush")
    a.label("K_notkv")
    a(f"s_cmp_ge_u32 s2, {ID_F}"); a("s_cbranch_scc1 K_fin")
    a(f"s_cmp_ge_u32 s2, {ID_G}"); a("s_cbranch_scc1 K_gu")
    a(f"s_setprio {PRIO_A}")
    a(f"s_sub_u32 s100, s2, {ID_A}")
    map_attn_ids(a, 100)
    if not SKIP_A: role_attn(a)
    a("s_branch K_flush")
    a.label("K_gu")
    a(f"s_setprio {PRIO_G}")
    a(f"s_sub_u32 s9, s2, {ID_G}"); map_gu_ids(a, 9)
    if SKIP_GU:
        srd(a, 52, S_WS, WS_SMALL_END)
        a("s_lshl_b32 s12, s4, 7"); a("s_lshl_b32 s13, s5, 2"); a("s_add_u32 s12, s12, s13"); a(f"s_add_u32 s12, s12, {WS_FH}")
        signal(a, "s12", 1, 0)
    else: role_gu(a)
    a("s_branch K_flush")
    a.label("K_fin")
    a(f"s_setprio {PRIO_F}")
    a(f"s_sub_u32 s9, s2, {ID_F}"); map_attn_ids(a, 9)
    if not SKIP_FIN: role_fin(a)
    a.label("K_flush")
    stamp_flush(a)
    if HPROF:
        L = a.newlabel("HP")
        a("s_cmp_lg_u32 s3, 0"); a(f"s_cbranch_scc1 {L}")
        a("s_and_b32 s76, s2, 3"); a("s_cmp_lg_u32 s76, 0"); a(f"s_cbranch_scc1 {L}")
        a("s_memrealtime s[98:99]"); a("s_waitcnt lgkmcnt(0)")
        a("s_not_b32 s96, s96")
        a("s_mov_b32 s76, 3"); a(f"s_cmp_ge_u32 s2, {ID_A}"); a("s_cselect_b32 s76, 4, s76"); a(f"s_cmp_ge_u32 s2, {ID_G}"); a("s_cselect_b32 s76, 5, s76")
        a(f"s_cmp_ge_u32 s2, {ID_F}"); a("s_cselect_b32 s76, 6, s76"); a("s_lshl_b32 s76, s76, 2")
        a("v_mov_b32 v2, 4"); a("v_mov_b32 v3, s96"); a("v_mov_b32 v4, s76"); a("v_mov_b32 v5, s98")
        set_exec(a, 1)
        a(f"global_atomic_umax v2, v3, s[{S_DBG}:{S_DBG+1}] sc1")
        a(f"global_atomic_umax v4, v5, s[{S_DBG}:{S_DBG+1}] sc1")
        a("s_mov_b64 exec, -1")
        a.label(L)
    a.label("K_end"); a("s_endpgm")
    out += khead(KN) + a.text() + kd(KN)
    return out

if __name__ == "__main__":
    dst = sys.argv[1] if len(sys.argv) > 1 else f"cdna_kernels/{NAME}.s"
    for arg in sys.argv[2:]:
        k, v = arg.split("="); globals()[k] = int(v)
    txt = build()
    open(dst, "w").write(txt)
    print("wrote", dst, len(txt))
```

```python
import sys, math
from asmlib import Asm, vr, sr

NAME = "parallel_sum__grouped_kv_mqa__glu_gated_geglu__prompt"
WS_KF = 0x0; WS_VF = 0x10000; WS_ST = 0x20000; WS_KM = 0x24000; WS_CS = 0x25000
WS_FKV = 0x30000
WS_FCS = 0x31000
WS_FH  = 0x32000
WS_FO  = 0x33000
WS_FST = 0x34000
WS_CSP = 0x40000
WS_SMALL_END = 0x80000
WS_HF = 0x100000; WS_OF = 0x800000
HF_BYTES = 64*112*1024; OF_BYTES = 64*32*1024
WS_PROF = 0xE00000
S_X, S_WQ, S_WK, S_WV, S_WO, S_BX, S_WG, S_WU, S_WD, S_OUT, S_DBG, S_WS = 16,18,20,22,24,26,28,30,32,34,36,38
ONES_BF16 = 0x3F803F80
SC = "sc1"
HPROF = 0; PROF = 0; ATT_ITERS = 16; SKIP_GU = 0; SKIP_FIN = 0; SPIN_MAX = 200000; TOUCH = 1
TOUCH_A = 1; GU_DELAY = 0; SKIP_A = 0; GU_NOBAR = 0; GU_NODMA = 0; GU_NOREAD = 0; PRIO_GE = 3; PRIO_FT = 3; A_DELAY = 0; PRIO_A1 = 1; OUTF = 0; OWN_STATS = 0; TPROF = 0; A_EXIT = 0; PRIO_A2 = 0; PRIO_A = 1; PRIO_G = 0; PRIO_F = 0; PRIO_KV = 3
ID_A, ID_G, ID_F, ID_END = 32, 288, 512, 768

OUTFLAGS = ["", "sc1", "sc0 sc1", "nt", "sc0 sc1 nt"]
def prologue(a):
    a("""
    s_load_dwordx16 s[16:31], s[0:1], 0
    s_load_dwordx8 s[32:39], s[0:1], 64
    v_and_b32 v1, 63, v0
    v_lshrrev_b32 v2, 6, v0
    s_nop 0
    v_readfirstlane_b32 s3, v2
    s_waitcnt lgkmcnt(0)
    """)
def srd(a, d, ptr, nbytes, off=0):
    if off:
        a(f"s_add_u32 s{d}, s{ptr}, {off}")
        a(f"s_addc_u32 s{d+1}, s{ptr+1}, 0")
        a(f"s_and_b32 s{d+1}, s{d+1}, 0xffff")
    else:
        a(f"s_mov_b32 s{d}, s{ptr}")
        a(f"s_and_b32 s{d+1}, s{ptr+1}, 0xffff")
    a(f"s_mov_b32 s{d+2}, {nbytes}")
    a(f"s_mov_b32 s{d+3}, 0x00020000")

def stamp(a, idx):
    if not PROF: return
    a("s_memtime s[78:79]"); a("s_waitcnt lgkmcnt(0)"); a(f"s_mov_b32 s{80+idx}, s78")
def stamp_init(a):
    if not PROF: return
    a("s_memrealtime s[78:79]"); a("s_waitcnt lgkmcnt(0)"); a("s_mov_b32 s95, s78")
    for i in range(80, 95): a(f"s_mov_b32 s{i}, 0")
def stamp_flush(a):
    if not PROF: return
    L = a.newlabel("PF")
    a("s_cmp_lg_u32 s3, 0"); a(f"s_cbranch_scc1 {L}")
    a("s_memrealtime s[78:79]"); a("s_waitcnt lgkmcnt(0)"); a("s_mov_b32 s94, s78")
    srd(a, 72, S_WS, 0x100000, WS_PROF)
    a("s_lshl_b32 s76, s2, 6")
    a("v_mov_b32 v250, 0")
    set_exec(a, 1)
    for i in range(16):
        a(f"v_mov_b32 v251, s{80+i}")
        a(f"buffer_store_dword v251, v250, s[72:75], s76 offen offset:{4*i}")
    a("s_mov_b64 exec, -1")
    a.label(L)

def set_exec(a, m):
    if m == (1 << 64) - 1: a("s_mov_b64 exec, -1"); return
    a(f"s_mov_b32 exec_lo, {m & 0xffffffff:#x}"); a(f"s_mov_b32 exec_hi, {m >> 32:#x}")
def interleave(a, mains, fillers, start=0, per=1):
    fi = 0
    for i, m in enumerate(mains):
        a(m)
        if i >= start:
            for _ in range(per):
                if fi < len(fillers):
                    for x in fillers[fi]: a(x)
                    fi += 1
    while fi < len(fillers):
        for x in fillers[fi]: a(x)
        fi += 1
def dpp_wave_max(a, v):
    for mod in ("quad_perm:[1,0,3,2] row_mask:0xf bank_mask:0xf", "quad_perm:[2,3,0,1] row_mask:0xf bank_mask:0xf",
                "row_half_mirror row_mask:0xf bank_mask:0xf", "row_mirror row_mask:0xf bank_mask:0xf",
                "row_bcast:15 row_mask:0xa bank_mask:0xf", "row_bcast:31 row_mask:0xc bank_mask:0xf"):
        a("s_nop 1")
        a(f"v_max_f32_dpp v{v}, v{v}, v{v} {mod}")
def half_sum(a, v, t, op="v_add_f32"):
    a(f"v_mov_b32 v{t}, v{v}"); a("s_nop 1")
    a(f"v_permlane32_swap_b32 v{v}, v{t}"); a("s_nop 1")
    a(f"{op} v{v}, v{v}, v{t}")

def write_tag(a):
    L = a.newlabel("TAGW")
    a("s_or_b32 s76, s2, s3")
    a("s_cmp_lg_u32 s76, 0"); a(f"s_cbranch_scc1 {L}")
    a("s_memrealtime s[76:77]"); a("s_waitcnt lgkmcnt(0)")
    a("s_or_b32 s76, s76, 1")
    a("v_mov_b32 v2, 0"); a("v_mov_b32 v3, s76")
    set_exec(a, 1)
    a(f"global_store_dword v2, v3, s[{S_DBG}:{S_DBG+1}] sc0 sc1")
    a("s_mov_b64 exec, -1")
    a.label(L)
def get_tag(a):
    L = a.newlabel("TAG"); Ld = a.newlabel("TAGD")
    a("v_mov_b32 v2, 0")
    a(f"global_load_dword v3, v2, s[{S_DBG}:{S_DBG+1}]")
    a("s_waitcnt vmcnt(0)")
    a("v_readfirstlane_b32 s74, v3")
    a("s_cmp_lg_u32 s74, 0"); a(f"s_cbranch_scc1 {Ld}")
    a("s_mov_b32 s75, 0")
    a.label(L)
    a("s_sleep 4")
    a(f"global_load_dword v3, v2, s[{S_DBG}:{S_DBG+1}] sc0 sc1")
    a("s_waitcnt vmcnt(0)")
    a("v_readfirstlane_b32 s74, v3")
    a("s_cmp_lg_u32 s74, 0"); a(f"s_cbranch_scc1 {Ld}")
    a("s_add_u32 s75, s75, 1"); a(f"s_cmp_lt_u32 s75, {SPIN_MAX}"); a(f"s_cbranch_scc1 {L}")
    a.label(Ld)
def tag_prefetch(a, vreg):
    a(f"v_mov_b32 v{vreg+1}, 0")
    a(f"global_load_dword v{vreg}, v{vreg+1}, s[{S_DBG}:{S_DBG+1}]")
def tag_finish(a, vreg):
    L = a.newlabel("TAGR"); Ld = a.newlabel("TAGF")
    a(f"v_readfirstlane_b32 s74, v{vreg}")
    a("s_cmp_lg_u32 s74, 0"); a(f"s_cbranch_scc1 {Ld}")
    a("s_mov_b32 s75, 0")
    a.label(L)
    a("s_sleep 4")
    a(f"global_load_dword v{vreg}, v{vreg+1}, s[{S_DBG}:{S_DBG+1}] sc0 sc1")
    a("s_waitcnt vmcnt(0)")
    a(f"v_readfirstlane_b32 s74, v{vreg}")
    a("s_cmp_lg_u32 s74, 0"); a(f"s_cbranch_scc1 {Ld}")
    a("s_add_u32 s75, s75, 1"); a(f"s_cmp_lt_u32 s75, {SPIN_MAX}"); a(f"s_cbranch_scc1 {L}")
    a.label(Ld)
def signal(a, off_sreg, ncopies, stride, have_tag=False):
    a("s_waitcnt vmcnt(0)")
    a("s_barrier")
    L = a.newlabel("SIG")
    a("s_cmp_lg_u32 s3, 0"); a(f"s_cbranch_scc1 {L}")
    if not have_tag: get_tag(a)
    a(f"v_mul_u32_u24 v2, {stride}, v1")
    a("v_mov_b32 v3, s74")
    set_exec(a, (1<<ncopies)-1)
    a(f"buffer_store_dword v3, v2, s[52:55], {off_sreg} offen sc0 sc1")
    a("s_mov_b64 exec, -1")
    a.label(L)
def poll(a, off_sreg, n, sleep=2):
    L = a.newlabel("POLL"); Ld = a.newlabel("POLLD")
    a("v_lshlrev_b32 v2, 2, v1")
    a("s_mov_b32 s75, 0")
    if n < 64: set_exec(a, (1<<n)-1)
    a.label(L)
    a(f"buffer_load_dword v3, v2, s[52:55], {off_sreg} offen sc0 sc1")
    a("s_waitcnt vmcnt(0)")
    a("v_cmp_ne_u32 vcc, s74, v3")
    a(f"s_cbranch_vccz {Ld}")
    a(f"s_sleep {sleep}")
    a("s_add_u32 s75, s75, 1"); a(f"s_cmp_lt_u32 s75, {SPIN_MAX}"); a(f"s_cbranch_scc1 {L}")
    a.label(Ld)
    a("s_mov_b64 exec, -1")
def wg_wait(a, waits, have_tag=False, pre=None):
    L = a.newlabel("WGW")
    a("s_cmp_lg_u32 s3, 0"); a(f"s_cbranch_scc1 {L}")
    if not have_tag: get_tag(a)
    if pre: pre(a)
    for off, n in waits: poll(a, off, n)
    a.label(L)
    a("s_barrier")

def role_kv(a):
    a.c("==== KV role ====")
    stamp(a, 0)
    srd(a, 40, S_X, 2048*1024)
    a("s_mul_i32 s6, s3, 20480")
    a("v_lshrrev_b32 v3, 3, v1"); a("v_lshlrev_b32 v3, 10, v3"); a("v_and_b32 v4, 7, v1"); a("v_lshrrev_b32 v5, 4, v1"); a("v_xor_b32 v6, v4, v5")
    a("v_lshl_add_u32 v8, v6, 4, v3"); a("v_xor_b32 v9, 64, v8")
    a("s_lshl_b32 s8, s4, 16"); a("s_lshl_b32 s9, s3, 8"); a("s_add_u32 s8, s8, s9")
    def xblk(mt, half, ldsoff):
        L = []
        for i in range(4):
            L.append([f"s_add_u32 m0, s6, {ldsoff + i*1024}", f"s_add_u32 s10, s8, {(32*mt + 8*i)*1024 + half*128}",
                      f"buffer_load_dwordx4 v{8+(i&1)}, s[40:43], s10 offen lds"])
        return L
    for g in xblk(0, 0, 8192):
        for x in g: a(x)
    srd(a, 44, S_WK, 16384); srd(a, 48, S_WV, 16384)
    a("v_lshlrev_b32 v3, 4, v1"); a("v_xor_b32 v5, 128, v3"); a("s_lshl_b32 s9, s3, 12")
    for i in range(4):
        a(f"s_add_u32 m0, s6, {i*1024}"); a(f"s_add_u32 s10, s9, {i*1024}")
        a("buffer_load_dwordx4 v3, s[44:47], s10 offen lds")
        a(f"s_add_u32 m0, s6, {4096 + i*1024}"); a("s_nop 0")
        a("buffer_load_dwordx4 v5, s[48:51], s10 offen lds")
    for mt, half, off in ((0, 1, 12288), (1, 0, 16384)):
        for g in xblk(mt, half, off):
            for x in g: a(x)
    a("v_lshlrev_b32 v6, 10, v1"); a(f"s_add_u32 s10, s8, {32*1024 + 128}")
    set_exec(a, 0xffffffff)
    a("buffer_load_dword v200, v6, s[40:43], s10 offen")
    a("s_mov_b64 exec, -1")
    srd(a, 52, S_WS, WS_SMALL_END); srd(a, 60, S_WS, 65536, WS_KF); srd(a, 64, S_WS, 65536, WS_VF)
    write_tag(a)
    a("v_and_b32 v6, 31, v1"); a("v_lshrrev_b32 v7, 5, v1")
    a("v_bfe_u32 v11, v1, 1, 3"); a("v_xor_b32 v11, v11, v7"); a("v_lshlrev_b32 v11, 4, v11"); a("v_lshl_add_u32 v11, v6, 7, v11")
    a("v_add_u32 v12, s6, v11")
    for s_ in range(1, 4): a(f"v_xor_b32 v{12+s_}, {s_<<5}, v12")
    a("v_bfe_u32 v3, v1, 4, 1"); a("v_lshlrev_b32 v10, 12, v3")
    a("v_bfe_u32 v11, v1, 2, 2"); a("v_lshl_add_u32 v11, v7, 3, v11"); a("v_lshl_add_u32 v10, v11, 5, v10")
    a("v_and_b32 v11, 3, v1"); a("v_lshl_add_u32 v10, v11, 3, v10"); a("v_add_u32 v10, s6, v10")
    a("v_lshlrev_b32 v3, 7, v3"); a("v_xor_b32 v11, 128, v3"); a("v_add_u32 v11, v10, v11"); a("v_add_u32 v10, v10, v3")
    TK = [16, 32]; CS = 48; SX = [64, 80]
    for i in range(80): a(f"v_mov_b32 v{16+i}, 0")
    for i in range(4): a(f"v_mov_b32 v{128+i}, {ONES_BF16:#x}")
    for i in range(4): a(f"v_mov_b32 v{132+i}, 0")
    WF = lambda s_: 96 + 4*s_
    XB = lambda k: 144 + 4*k
    XOFF = {(0,0): 8192, (0,1): 12288, (1,0): 16384, (1,1): 8192}
    a("s_waitcnt vmcnt(1)")
    stamp(a, 1)
    tag_prefetch(a, 204)
    for s_ in range(8):
        a(f"ds_read_b64_tr_b16 {vr(WF(s_),2)}, v10 offset:{s_*512}"); a(f"ds_read_b64_tr_b16 {vr(WF(s_)+2,2)}, v11 offset:{s_*512}")
    seq = [(mt, s_) for mt in range(2) for s_ in range(8)]
    def xread(k):
        mt, s_ = seq[k]
        return f"ds_read_b128 {vr(XB(k&3),4)}, v{12+(s_&3)} offset:{XOFF[(mt, s_>>2)]}"
    for k in range(3): a(xread(k))
    for k, (mt, s_) in enumerate(seq):
        if k == 12: a("s_waitcnt vmcnt(0)")
        x = XB(k & 3); w = WF(s_)
        nxt = k + 3
        if nxt < 16:
            if nxt == 12: a("s_waitcnt vmcnt(0)")
            a(xread(nxt))
        a(f"s_waitcnt lgkmcnt({min(3, 15-k)})")
        a(f"v_mfma_f32_32x32x16_bf16 {vr(TK[mt],16)}, {vr(w,4)}, {vr(x,4)}, {vr(TK[mt],16)}")
        L = []
        for r in range(4):
            lo, hi = 136 + 2*(r & 1), 137 + 2*(r & 1)
            L += [f"v_lshlrev_b32 v{lo}, 16, v{x+r}", f"v_and_b32 v{hi}, 0xffff0000, v{x+r}",
                  f"v_fma_f32 v{132+2*mt}, v{lo}, v{lo}, v{132+2*mt}", f"v_fma_f32 v{133+2*mt}, v{hi}, v{hi}, v{133+2*mt}"]
        for i_ in L[:6]: a(i_)
        a(f"v_mfma_f32_32x32x16_bf16 {vr(SX[mt],16)}, v[128:131], {vr(x,4)}, {vr(SX[mt],16)}")
        for i_ in L[6:12]: a(i_)
        if mt == 0:
            a(f"v_mfma_f32_32x32x16_bf16 {vr(CS,16)}, {vr(w,4)}, v[128:131], {vr(CS,16)}")
        for i_ in L[12:]: a(i_)
        if k == 4:
            for g in xblk(1, 1, 8192):
                for x_ in g: a(x_)
    stamp(a, 2)
    a("s_barrier")
    a("v_add_f32 v132, v132, v133"); a("v_add_f32 v134, v134, v135")
    a("v_lshlrev_b32 v3, 4, v1"); a("s_mul_i32 s9, s3, 12288"); a("v_add_u32 v2, s9, v3")
    for mt in range(2):
        for q in range(4): a(f"ds_write_b128 v2, {vr(TK[mt]+4*q,4)} offset:{mt*4096 + q*1024}")
    for q in range(4): a(f"ds_write_b128 v2, {vr(CS+4*q,4)} offset:{8192 + q*1024}")
    a("v_lshlrev_b32 v4, 2, v1"); a("s_lshl_b32 s9, s3, 10"); a("s_add_u32 s9, s9, 49152"); a("v_add_u32 v4, s9, v4")
    a(f"ds_write_b32 v4, v{SX[0]}"); a(f"ds_write_b32 v4, v{SX[1]} offset:256"); a("ds_write_b32 v4, v132 offset:512"); a("ds_write_b32 v4, v134 offset:768")
    tag_finish(a, 204)
    a("s_waitcnt lgkmcnt(0)"); a("s_barrier")
    stamp(a, 6)
    a("v_lshlrev_b32 v3, 4, v1")
    a("s_and_b32 s10, s3, 1"); a("s_lshr_b32 s11, s3, 1")
    a("s_lshl_b32 s9, s10, 12"); a("s_lshl_b32 s12, s11, 11"); a("s_add_u32 s9, s9, s12"); a("v_add_u32 v2, s9, v3")
    a("v_add_u32 v4, s12, v3")
    for w in range(4):
        for q in range(2):
            a(f"ds_read_b128 {vr(16+8*w+4*q,4)}, v2 offset:{w*12288 + q*1024}")
            a(f"ds_read_b128 {vr(48+8*w+4*q,4)}, v4 offset:{w*12288 + 8192 + q*1024}")
    a("v_lshlrev_b32 v5, 2, v6"); a("s_lshl_b32 s9, s10, 8"); a("s_add_u32 s9, s9, 49152"); a("v_add_u32 v5, s9, v5")
    for w in range(4):
        a(f"ds_read_b32 v{80+w}, v5 offset:{w*1024}")
        a(f"ds_read_b32 v{84+2*w}, v5 offset:{w*1024 + 512}"); a(f"ds_read_b32 v{85+2*w}, v5 offset:{w*1024 + 512 + 128}")
    a("s_lshl_b32 s13, s4, 1"); a("s_add_u32 s13, s13, s10")
    a("s_waitcnt lgkmcnt(0)")
    for i in range(8):
        a(f"v_add_f32 v{16+i}, v{16+i}, v{24+i}"); a(f"v_add_f32 v{32+i}, v{32+i}, v{40+i}")
        a(f"v_add_f32 v{48+i}, v{48+i}, v{56+i}"); a(f"v_add_f32 v{64+i}, v{64+i}, v{72+i}")
    a("v_add_f32 v80, v80, v81"); a("v_add_f32 v82, v82, v83"); a("v_add_f32 v84, v84, v85"); a("v_add_f32 v86, v86, v87"); a("v_add_f32 v88, v88, v89"); a("v_add_f32 v90, v90, v91")
    a("v_add_f32 v80, v80, v82"); a("v_add_f32 v84, v84, v86"); a("v_add_f32 v88, v88, v90"); a("v_add_f32 v84, v84, v88")
    a(f"v_mul_f32 v80, {1.0/512.0!r}, v80"); a(f"v_mul_f32 v84, {1.0/512.0!r}, v84")
    a("v_fma_f32 v84, -v80, v80, v84"); a("v_max_f32 v84, 0, v84"); a("v_add_f32 v84, 0x3727c5ac, v84")
    a("v_rsq_f32 v86, v84")
    for i in range(8):
        a(f"v_add_f32 v{16+i}, v{16+i}, v{32+i}"); a(f"v_add_f32 v{48+i}, v{48+i}, v{64+i}")
    a("v_mul_f32 v87, v80, v86"); a("v_sub_f32 v87, 0, v87")
    for i in range(8): a(f"v_mul_f32 v{48+i}, v87, v{48+i}")
    for i in range(8): a(f"v_fma_f32 v{16+i}, v{16+i}, v86, v{48+i}")
    for j in range(4): a(f"v_cvt_pk_bf16_f32 v{64+j}, v{16+2*j}, v{16+2*j+1}")
    LV = a.newlabel("KV_V"); Lend = a.newlabel("KV_e")
    a("s_cmp_eq_u32 s11, 1"); a(f"s_cbranch_scc1 {LV}")
    a("v_and_b32 v2, 0x33, v1"); a("v_bfe_u32 v4, v1, 2, 1"); a("v_lshl_or_b32 v2, v4, 3, v2")
    a("v_bfe_u32 v4, v1, 3, 1"); a("v_lshl_or_b32 v2, v4, 2, v2"); a("v_lshlrev_b32 v2, 4, v2")
    a("s_lshl_b32 s12, s13, 10")
    a(f"buffer_store_dwordx4 v[64:67], v2, s[60:63], s12 offen {SC}")
    a("s_lshl_b32 s12, s13, 7"); a("v_lshl_add_u32 v4, v6, 2, s12")
    set_exec(a, 0xffffffff)
    a(f"s_mov_b32 s14, {WS_ST}"); a(f"buffer_store_dword v86, v4, s[52:55], s14 offen {SC}")
    a(f"s_mov_b32 s14, {WS_ST+8192}"); a(f"buffer_store_dword v87, v4, s[52:55], s14 offen {SC}")
    a("s_mov_b64 exec, -1")
    a("v_mul_f32 v84, v16, v16"); a("v_mul_f32 v85, v17, v17")
    for j in range(2, 8): a(f"v_fmac_f32 v{84+(j&1)}, v{16+j}, v{16+j}")
    a("v_add_f32 v84, v84, v85")
    half_sum(a, 84, 85)
    dpp_wave_max(a, 84)
    a("s_lshl_b32 s12, s13, 2"); a(f"s_add_u32 s14, s12, {WS_KM}"); a("v_mov_b32 v2, 0")
    set_exec(a, 1 << 63)
    a(f"buffer_store_dword v84, v2, s[52:55], s14 offen {SC}")
    a("s_mov_b64 exec, -1")
    a(f"s_branch {Lend}")
    a.label(LV)
    a("s_lshl_b32 s9, s10, 10"); a("s_add_u32 s9, s9, 57344")
    a("v_lshlrev_b32 v2, 1, v6"); a("v_lshl_add_u32 v2, v7, 8, v2"); a("v_add_u32 v2, s9, v2")
    for j in range(4):
        d0 = ((2*j) & 3) + 8*((2*j) >> 2); d1 = ((2*j+1) & 3) + 8*((2*j+1) >> 2)
        a(f"ds_write_b16 v2, v{64+j} offset:{d0*64}"); a(f"ds_write_b16_d16_hi v2, v{64+j} offset:{d1*64}")
    a("v_and_b32 v2, 15, v1"); a("v_lshlrev_b32 v4, 6, v2"); a("v_lshl_add_u32 v4, v7, 3, v4"); a("v_add_u32 v4, s9, v4")
    a("v_lshl_add_u32 v2, v7, 4, v2"); a("v_lshlrev_b32 v2, 4, v2")
    a("s_lshl_b32 s12, s13, 10")
    a("s_waitcnt lgkmcnt(0)")
    for c in range(2):
        a(f"ds_read_b64 {vr(72+4*c,2)}, v4 offset:{32*c}"); a(f"ds_read_b64 {vr(74+4*c,2)}, v4 offset:{32*c+16}")
    a("s_waitcnt lgkmcnt(0)")
    set_exec(a, 0x0000ffff0000ffff)
    a(f"buffer_store_dwordx4 v[72:75], v2, s[64:67], s12 offen {SC}")
    a(f"buffer_store_dwordx4 v[76:79], v2, s[64:67], s12 offen offset:512 {SC}")
    a("s_mov_b64 exec, -1")
    a.label(Lend)
    stamp(a, 3)

def role_colsum(a, have_tag=True):
    a.c("==== colsum part ==== (s4 = block 0..55)")
    a("s_cmp_ge_u32 s4, 28")
    a(f"s_cselect_b32 s44, s{S_WU}, s{S_WG}"); a(f"s_cselect_b32 s45, s{S_WU+1}, s{S_WG+1}")
    a("s_and_b32 s45, s45, 0xffff"); a(f"s_mov_b32 s46, {512*3584}"); a("s_mov_b32 s47, 0x00020000")
    a("s_sub_u32 s5, s4, 28"); a("s_cmp_ge_u32 s4, 28"); a("s_cselect_b32 s5, s5, s4"); a("s_lshl_b32 s5, s5, 7")
    a("v_lshrrev_b32 v3, 3, v1"); a("v_mul_u32_u24 v3, 3584, v3")
    a("v_bfe_u32 v4, v1, 2, 1"); a("v_bfe_u32 v5, v1, 4, 1"); a("v_xor_b32 v4, v4, v5")
    a("v_lshl_add_u32 v3, v4, 6, v3"); a("v_and_b32 v4, 3, v1"); a("v_lshl_add_u32 v3, v4, 4, v3")
    a(f"s_mul_i32 s6, s3, {128*3584}"); a("s_add_u32 s6, s6, s5"); a("s_lshl_b32 s7, s3, 14")
    for k in range(16):
        a(f"s_add_u32 m0, s7, {k*1024}"); a(f"s_add_u32 s8, s6, {k*8*3584}")
        a("buffer_load_dwordx4 v3, s[44:47], s8 offen lds")
    a("v_lshrrev_b32 v7, 5, v1"); a("v_bfe_u32 v10, v1, 2, 2"); a("v_lshl_add_u32 v9, v7, 3, v10"); a("v_lshlrev_b32 v9, 7, v9")
    a("v_lshrrev_b32 v10, 1, v10"); a("v_xor_b32 v10, s3, v10"); a("v_and_b32 v10, 1, v10"); a("v_lshl_add_u32 v9, v10, 6, v9")
    a("v_bfe_u32 v10, v1, 4, 1"); a("v_lshl_add_u32 v9, v10, 5, v9"); a("v_and_b32 v10, 3, v1"); a("v_lshl_add_u32 v9, v10, 3, v9")
    a("s_lshr_b32 s8, s3, 1"); a("s_lshl_b32 s8, s8, 15"); a("v_add_u32 v9, s8, v9")
    for i in range(16): a(f"v_mov_b32 v{16+i}, 0")
    for i in range(4): a(f"v_mov_b32 v{32+i}, {ONES_BF16:#x}")
    a("s_waitcnt vmcnt(0)"); a("s_barrier")
    WF = lambda s: 40 + 4*(s & 3)
    def rd(s):
        a(f"ds_read_b64_tr_b16 {vr(WF(s),2)}, v9 offset:{(16*s)*128}")
        a(f"ds_read_b64_tr_b16 {vr(WF(s)+2,2)}, v9 offset:{(16*s+4)*128}")
    for s in range(3): rd(s)
    for s in range(16):
        if s + 3 < 16: rd(s+3)
        a(f"s_waitcnt lgkmcnt({2*min(3, 15-s)})")
        a(f"v_mfma_f32_32x32x16_bf16 v[16:31], {vr(WF(s),4)}, v[32:35], v[16:31]")
    a("s_barrier")
    a("v_lshlrev_b32 v3, 4, v1"); a("s_and_b32 s8, s3, 1"); a("s_lshl_b32 s8, s8, 12"); a("v_add_u32 v3, s8, v3")
    Lw = a.newlabel("CS_w"); Lsk = a.newlabel("CS_sk")
    a("s_nop 7"); a("s_nop 7")
    a("s_cmp_lt_u32 s3, 2"); a(f"s_cbranch_scc1 {Lw}")
    for q in range(4): a(f"ds_write_b128 v3, {vr(16+4*q,4)} offset:{q*1024}")
    a.label(Lw)
    a("s_waitcnt lgkmcnt(0)"); a("s_barrier")
    a("s_cmp_ge_u32 s3, 2"); a(f"s_cbranch_scc1 {Lsk}")
    for q in range(4): a(f"ds_read_b128 {vr(40+4*q,4)}, v3 offset:{q*1024}")
    a("s_lshl_b32 s12, s4, 8"); a("s_lshl_b32 s13, s3, 7"); a("s_add_u32 s12, s12, s13"); a(f"s_add_u32 s12, s12, {WS_CS}")
    a("v_lshlrev_b32 v3, 4, v7")
    a("s_waitcnt lgkmcnt(0)")
    for i in range(16): a(f"v_add_f32 v{16+i}, v{16+i}, v{40+i}")
    set_exec(a, 0x0000000100000001)
    for g in range(4): a(f"buffer_store_dwordx4 {vr(16+4*g,4)}, v3, s[52:55], s12 offen offset:{32*g} {SC}")
    a("s_mov_b64 exec, -1")
    a.label(Lsk)
    a("s_lshl_b32 s12, s4, 2"); a(f"s_add_u32 s12, s12, {WS_FCS}")
    signal(a, "s12", 8, 256, have_tag=have_tag)

QSCALE = 0.25 * 1.4426950408889634
M_THRESH = 48.0
def role_attn(a):
    a.c("==== ATTN role ====")
    stamp(a, 0)
    L_W = 49152
    if A_EXIT == 2:
        a("s_sleep 127"); a("s_sleep 127"); a("s_sleep 127"); a("s_sleep 127"); a("s_branch K_flush")
    srd(a, 40, S_X, 2048*1024)
    srd(a, 44, S_WQ, 512*1024)
    a("s_and_b32 s6, s3, 1"); a("s_lshr_b32 s7, s3, 1")
    a("v_lshrrev_b32 v3, 3, v1"); a("v_lshlrev_b32 v3, 10, v3")
    a("v_and_b32 v4, 7, v1"); a("v_lshrrev_b32 v5, 4, v1"); a("v_xor_b32 v6, v4, v5")
    a("v_lshl_add_u32 v8, v6, 4, v3"); a("v_xor_b32 v9, 64, v8")
    a("v_bfe_u32 v6, v1, 2, 1"); a("v_and_b32 v7, 1, v5"); a("v_xor_b32 v6, v6, v7")
    a("v_lshl_add_u32 v10, v6, 6, v3"); a("v_and_b32 v6, 3, v1"); a("v_lshl_add_u32 v10, v6, 4, v10")
    a("s_lshl_b32 s8, s4, 6"); a("s_lshl_b32 s9, s3, 4"); a("s_add_u32 s8, s8, s9"); a("s_lshl_b32 s8, s8, 10")
    a("s_lshl_b32 s9, s9, 10"); a("s_lshl_b32 s10, s5, 7"); a("s_add_u32 s9, s9, s10"); a("s_lshl_b32 s10, s3, 11")
    a("s_and_b32 s69, s4, 3"); a("s_lshl_b32 s69, s69, 1")
    a("s_mov_b32 s68, s69")
    if A_DELAY: a(f"s_sleep {A_DELAY}")
    NST = 4
    def dma_groups(st):
        pre = ["s_lshl_b32 s12, s69, 7", "s_add_u32 s12, s12, s8", "s_lshl_b32 s13, s69, 16", "s_add_u32 s13, s13, s9",
               "s_add_u32 s69, s69, 1", "s_and_b32 s69, s69, 7"]
        gs = []
        for i in range(2):
            gs.append([f"s_add_u32 m0, s10, {st*16384 + i*1024}", f"s_add_u32 s11, s12, {i*8*1024}", f"buffer_load_dwordx4 v{8+i}, s[40:43], s11 offen lds"])
        for i in range(2):
            gs.append([f"s_add_u32 m0, s10, {st*16384 + 8192 + i*1024}", f"s_add_u32 s11, s13, {i*8*1024}", "buffer_load_dwordx4 v10, s[44:47], s11 offen lds"])
        gs[0] = pre + gs[0]
        return gs
    for g in dma_groups(0):
        for x in g: a(x)
    Lnt = a.newlabel("A_nt")
    a(f"s_branch {Lnt}")
    srd(a, 48, S_WK, 16384); srd(a, 52, S_WV, 16384)
    a("v_lshlrev_b32 v3, 4, v1"); a("v_xor_b32 v5, 128, v3"); a("s_lshl_b32 s11, s3, 12")
    for i in range(4):
        a(f"s_add_u32 m0, s11, {L_W + i*1024}"); a(f"s_add_u32 s12, s11, {i*1024}")
        a("buffer_load_dwordx4 v3, s[48:51], s12 offen lds")
        a(f"s_add_u32 m0, s11, {L_W + 16384 + i*1024}")
        a("buffer_load_dwordx4 v5, s[52:55], s12 offen lds")
    a.label(Lnt)
    for c in range(1, NST):
        for g in dma_groups(c):
            for x in g: a(x)
    NTA = 0
    if TOUCH_A:
        a("v_lshrrev_b32 v2, 3, v1"); a("v_lshlrev_b32 v2, 10, v2"); a("v_and_b32 v3, 7, v1"); a("v_lshl_add_u32 v2, v3, 7, v2")
        a("s_lshl_b32 s11, s4, 6"); a("s_lshl_b32 s12, s5, 3"); a("s_add_u32 s11, s11, s12"); a("s_lshl_b32 s11, s11, 10")
        a("v_lshlrev_b32 v3, 10, v1")
        a("s_and_b32 s12, s4, 3"); a("s_lshl_b32 s12, s12, 7"); a("s_and_b32 s13, s3, 1"); a("s_lshl_b32 s13, s13, 6"); a("s_add_u32 s12, s12, s13")
        a("s_lshl_b32 s12, s12, 10"); a("s_lshl_b32 s13, s5, 7"); a("s_add_u32 s12, s12, s13")
        Lt1 = a.newlabel("A_t1"); Lt2 = a.newlabel("A_t2")
        a("s_cmp_ge_u32 s3, 2"); a(f"s_cbranch_scc1 {Lt1}")
        a("buffer_load_dword v190, v3, s[44:47], s12 offen")
        a(f"s_branch {Lt2}")
        a.label(Lt1)
        a("buffer_load_dword v190, v2, s[40:43], s11 offen")
        a.label(Lt2)
        NTA = 1
    srd(a, 52, S_WS, WS_SMALL_END)
    srd(a, 56, S_WS, OF_BYTES, WS_OF)
    srd(a, 60, S_WS, 65536, WS_KF)
    srd(a, 64, S_WS, 65536, WS_VF)
    a("v_and_b32 v6, 31, v1"); a("v_lshrrev_b32 v7, 5, v1")
    a("v_bfe_u32 v11, v1, 1, 3"); a("v_xor_b32 v11, v11, v7"); a("v_lshlrev_b32 v11, 4, v11"); a("v_lshl_add_u32 v11, v6, 7, v11")
    a("s_lshl_b32 s11, s7, 12"); a("v_add_u32 v12, s11, v11")
    a("s_lshl_b32 s11, s6, 5"); a("v_xor_b32 v12, s11, v12")
    for v in range(1, 4): a(f"v_xor_b32 v{12+v}, {v<<5}, v12")
    a("v_bfe_u32 v11, v1, 2, 2"); a("v_lshl_add_u32 v2, v7, 3, v11"); a("v_lshlrev_b32 v2, 7, v2")
    a("v_lshrrev_b32 v11, 1, v11"); a("v_xor_b32 v11, s6, v11"); a("v_lshl_add_u32 v2, v11, 6, v2")
    a("v_bfe_u32 v11, v1, 4, 1"); a("v_lshl_add_u32 v2, v11, 5, v2"); a("v_and_b32 v11, 3, v1"); a("v_lshl_add_u32 v2, v11, 3, v2")
    a("s_lshl_b32 s11, s6, 11"); a("v_add_u32 v4, s11, v2"); a("v_subrev_u32 v5, s11, v2")
    a("v_bfe_u32 v3, v1, 4, 1"); a("v_lshlrev_b32 v140, 14, v3")
    a("v_bfe_u32 v11, v1, 2, 2"); a("v_lshl_add_u32 v11, v7, 3, v11"); a("v_lshl_add_u32 v140, v11, 5, v140")
    a("v_and_b32 v11, 3, v1"); a("v_lshl_add_u32 v140, v11, 3, v140")
    a("s_lshl_b32 s11, s6, 9"); a(f"s_add_u32 s11, s11, {L_W}"); a("v_add_u32 v140, s11, v140")
    a("v_lshlrev_b32 v3, 7, v3"); a("v_xor_b32 v11, 128, v3"); a("v_add_u32 v141, v140, v11"); a("v_add_u32 v140, v140, v3")
    a("v_xor_b32 v160, 4096, v14")
    XE = lambda b: 164 + 4*b
    ACC, TK, CSQ = 16, 32, 48
    FR = lambda b, v: 64 + (b*4+v)*8
    KW = lambda b, v2: 144 + (b*2+v2)*4
    for i in range(48): a(f"v_mov_b32 v{16+i}, 0")
    for i in range(4): a(f"v_mov_b32 v{128+i}, {ONES_BF16:#x}")
    for i in range(4): a(f"v_mov_b32 v{132+i}, 0")
    def read_groups(c, kind):
        st = c % NST; b = c & 1
        gs = []
        for v in range(4):
            wb = 4 if v % 2 == 0 else 5
            g = [f"ds_read_b128 {vr(FR(b,v),4)}, v{12+v} offset:{st*16384}",
                 f"ds_read_b64_tr_b16 {vr(FR(b,v)+4,2)}, v{wb} offset:{st*16384 + 8192 + v*2048}",
                 f"ds_read_b64_tr_b16 {vr(FR(b,v)+6,2)}, v{wb} offset:{st*16384 + 8192 + v*2048 + 512}"]
            if kind == "cs" and v == 2:
                g += [f"ds_read_b128 {vr(XE(b),4)}, v160 offset:{st*16384}"]
            if kind != "none" and v % 2 == 0:
                g += [f"ds_read_b64_tr_b16 {vr(KW(b,v//2),2)}, v142 offset:{v*512}",
                      f"ds_read_b64_tr_b16 {vr(KW(b,v//2)+2,2)}, v143 offset:{v*512}"]
            gs.append(g)
        if kind != "none":
            gs[0] = ["s_lshl_b32 s11, s68, 11", "v_add_u32 v142, s11, v140", "v_add_u32 v143, s11, v141",
                     "s_add_u32 s68, s68, 1", "s_and_b32 s68, s68, 7"] + gs[0]
        return gs
    def stats_instrs(x):
        L = []
        for r in range(4):
            lo, hi = 136 + 2*(r & 1), 137 + 2*(r & 1)
            L += [f"v_lshlrev_b32 v{lo}, 16, v{x+r}", f"v_and_b32 v{hi}, 0xffff0000, v{x+r}",
                  f"v_add_f32 v132, v132, v{lo}", f"v_add_f32 v133, v133, v{hi}",
                  f"v_fma_f32 v134, v{lo}, v{lo}, v134", f"v_fma_f32 v135, v{hi}, v{hi}, v135"]
        return L
    Ljoin = a.newlabel("Q_join"); Lk = {k: a.newlabel("Q_" + k) for k in ("none", "main", "cs")}
    for kind in ("none",):
        a.label(Lk[kind])
        extra = 0 if kind == "none" else 8
        a(f"s_waitcnt vmcnt({4*(NST-1)+NTA})"); a("s_barrier")
        stamp(a, 1)
        for g in read_groups(0, kind):
            for x in g: a(x)
        for c in range(8):
            b = c & 1
            fill = [[] for _ in range(4)]
            if c + 1 < 8:
                issued = min(c + NST - 1, 7)
                a(f"s_waitcnt vmcnt({4*(issued-(c+1)) + (NTA if c + 1 < NST else 0)}) lgkmcnt(0)")
                a("s_barrier")
                rg = read_groups(c+1, kind)
                dg = dma_groups(c % NST) if c + NST < 8 else [[], [], [], []]
                fill = [rg[k] + dg[k] for k in range(4)]
            else:
                a("s_waitcnt lgkmcnt(0)")
            for v in range(4):
                x, w = FR(b, v), FR(b, v) + 4
                st_ = []
                if kind == "none" and v % 2 == 0 and OWN_STATS: st_ = stats_instrs(x)
                if kind == "main" and v == 0: st_ = stats_instrs(x)
                if kind == "cs" and v == 2: st_ = stats_instrs(XE(b))
                a(f"v_mfma_f32_32x32x16_bf16 {vr(ACC,16)}, {vr(w,4)}, {vr(x,4)}, {vr(ACC,16)}")
                for i_ in st_[0:6]: a(i_)
                for i_ in fill[v][:len(fill[v])//2]: a(i_)
                a(f"v_mfma_f32_32x32x16_bf16 {vr(CSQ,16)}, {vr(w,4)}, v[128:131], {vr(CSQ,16)}")
                for i_ in st_[6:12]: a(i_)
                for i_ in fill[v][len(fill[v])//2:]: a(i_)
                if kind != "none" and v % 2 == 0:
                    bop = vr(x,4) if kind == "main" else "v[128:131]"
                    a(f"v_mfma_f32_32x32x16_bf16 {vr(TK,16)}, {vr(KW(b,v//2),4)}, {bop}, {vr(TK,16)}")
                for i_ in st_[12:]: a(i_)
        if kind != "none": a(f"s_branch {Ljoin}")
    a.label(Ljoin)
    stamp(a, 2)
    if A_EXIT == 1: a("s_branch K_flush")
    a(f"s_setprio {PRIO_A1}")
    CONST = 65536
    a("v_add_f32 v132, v132, v133"); a("v_add_f32 v134, v134, v135")
    a("v_lshlrev_b32 v2, 2, v1"); a("s_lshl_b32 s11, s3, 9"); a("s_add_u32 s11, s11, 73728"); a("v_add_u32 v2, s11, v2")
    a("ds_write_b32 v2, v132"); a("ds_write_b32 v2, v134 offset:256")
    Lc = a.newlabel("A_c")
    a("s_cmp_lg_u32 s3, 3"); a(f"s_cbranch_scc1 {Lc}")
    a("v_lshrrev_b32 v5, 3, v1"); a("v_lshlrev_b32 v5, 9, v5"); a("v_and_b32 v8, 7, v1"); a("v_lshl_add_u32 v5, v8, 2, v5")
    a(f"v_add_u32 v5, {CONST}, v5")
    a("v_cmp_gt_u32 vcc, 4, v8"); a(f"v_mov_b32 v9, {ONES_BF16:#x}"); a("s_nop 0"); a("v_cndmask_b32 v9, 0, v9, vcc")
    a("ds_write_b32 v5, v9")
    a.label(Lc)
    if OWN_STATS:
        a("s_waitcnt lgkmcnt(0)"); a("s_barrier")
        a("v_lshlrev_b32 v2, 2, v6"); a("s_lshl_b32 s11, s7, 10"); a("s_add_u32 s11, s11, 73728"); a("v_add_u32 v2, s11, v2")
        a("ds_read2_b32 v[136:137], v2 offset0:0 offset1:32"); a("ds_read2_b32 v[138:139], v2 offset0:128 offset1:160")
        a("ds_read2_b32 v[140:141], v2 offset0:64 offset1:96"); a("ds_read2_b32 v[142:143], v2 offset0:192 offset1:224")
        a("s_waitcnt lgkmcnt(0)")
        a("v_add_f32 v136, v136, v137"); a("v_add_f32 v138, v138, v139"); a("v_add_f32 v140, v140, v141"); a("v_add_f32 v142, v142, v143")
        a("v_add_f32 v136, v136, v138"); a("v_add_f32 v140, v140, v142")
        a(f"v_mul_f32 v136, {1.0/512.0!r}, v136"); a(f"v_mul_f32 v140, {1.0/512.0!r}, v140")
        a("v_fma_f32 v140, -v136, v136, v140"); a("v_max_f32 v140, 0, v140"); a("v_add_f32 v140, 0x3727c5ac, v140")
        a("v_rsq_f32 v186, v140"); a("s_nop 0")
        a("v_mul_f32 v187, v136, v186"); a("v_sub_f32 v187, 0, v187")
    QA, QB = 144, 148
    CA, CB, SA, SB, OA, OB = 48, 64, 80, 96, 112, 128
    KF = [32, 36]; VF = [[152, 156], [160, 164]]; IDX = 184
    STG = [192, 224]
    def q_finalize():
        a(f"v_mul_f32 v186, {QSCALE!r}, v186"); a(f"v_mul_f32 v187, {QSCALE!r}, v187")
        for r in range(16): a(f"v_mul_f32 v{CSQ+r}, v187, v{CSQ+r}")
        for r in range(16): a(f"v_fma_f32 v{ACC+r}, v{ACC+r}, v186, v{CSQ+r}")
        for hd in range(2):
            for j in range(4): a(f"v_cvt_pk_bf16_f32 v{QA+4*hd+j}, v{ACC+8*hd+2*j}, v{ACC+8*hd+2*j+1}")
        a(f"v_mul_f32 v186, v{ACC}, v{ACC}"); a(f"v_mul_f32 v187, v{ACC+8}, v{ACC+8}")
        for j in range(1, 8):
            a(f"v_fmac_f32 v186, v{ACC+j}, v{ACC+j}"); a(f"v_fmac_f32 v187, v{ACC+8+j}, v{ACC+8+j}")
        half_sum(a, 186, 189); half_sum(a, 187, 190)
        a(f"v_mul_f32 v186, {1.015625**2!r}, v186"); a(f"v_mul_f32 v187, {1.015625**2!r}, v187")
    if OWN_STATS: q_finalize()
    a(f"v_mov_b32 v{IDX}, 0xdddddddd")
    for i in range(16):
        a(f"v_mov_b32 v{OA+i}, 0"); a(f"v_mov_b32 v{OB+i}, 0"); a(f"v_mov_b32 v{SB+i}, 0")
    for r in range(4): a(f"v_mov_b32 v{VF[1][1]+r}, 0")
    a("v_lshlrev_b32 v3, 4, v1"); a("s_lshl_b32 s12, s3, 10")
    a("v_add_u32 v8, s12, v3")
    a("v_and_b32 v5, 15, v1"); a("v_lshl_add_u32 v5, v7, 4, v5"); a("v_lshlrev_b32 v5, 4, v5"); a("v_add_u32 v5, 16384, v5")
    a("v_and_b32 v11, 27, v6"); a("v_cmp_eq_u32 vcc, 16, v11")
    a(f"v_mov_b32 v9, {CONST+16}"); a(f"v_mov_b32 v10, {CONST}"); a("v_cndmask_b32 v9, v9, v10, vcc")
    a("v_cmp_gt_u32 vcc, 16, v6"); a("s_nop 1")
    a("v_cndmask_b32 v5, v9, v5, vcc"); a("v_cndmask_b32 v9, 0, 1, vcc")
    a("v_lshlrev_b32 v11, 2, v1")
    def stage_load(soff_expr, st):
        for q in range(4):
            a(f"s_add_u32 s13, {soff_expr}, {q*4096}")
            a(f"buffer_load_dwordx4 {vr(STG[st]+8*q,4)}, v3, s[60:63], s13 offen {SC}")
            a(f"buffer_load_dwordx4 {vr(STG[st]+8*q+4,4)}, v3, s[64:67], s13 offen {SC}")
    def stage_write(st, slot):
        for q in range(4):
            a(f"ds_write_b128 v8, {vr(STG[st]+8*q,4)} offset:{slot*32768 + q*4096}")
            a(f"ds_write_b128 v8, {vr(STG[st]+8*q+4,4)} offset:{slot*32768 + 16384 + q*4096}")
    Lw = a.newlabel("WGW")
    a("s_cmp_lg_u32 s3, 0"); a(f"s_cbranch_scc1 {Lw}")
    a("v_mov_b32 v190, v3")
    get_tag(a)
    a("s_and_b32 s14, s2, 15"); a("s_lshl_b32 s14, s14, 8"); a(f"s_add_u32 s14, s14, {WS_FKV}")
    poll(a, "s14", 32)
    a("v_mov_b32 v3, v190")
    a.label(Lw)
    a("s_barrier")
    stamp(a, 6)
    a(f"s_mov_b32 s14, {WS_KM}"); a(f"buffer_load_dword v188, v11, s[52:55], s14 offen {SC}")
    if not OWN_STATS:
        a("s_lshl_b32 s13, s4, 6"); a("s_lshl_b32 s14, s7, 5"); a("s_add_u32 s13, s13, s14")
        a("v_add_u32 v2, s13, v6"); a("v_lshlrev_b32 v2, 2, v2")
        a(f"s_mov_b32 s14, {WS_ST}"); a(f"buffer_load_dword v186, v2, s[52:55], s14 offen {SC}")
        a(f"s_mov_b32 s14, {WS_ST+8192}"); a(f"buffer_load_dword v187, v2, s[52:55], s14 offen {SC}")
    stage_load("s12", 0)
    a("s_add_u32 s15, s12, 16384")
    stage_load("s15", 1)
    a("s_waitcnt vmcnt(16)")
    stamp(a, 7)
    dpp_wave_max(a, 188)
    if not OWN_STATS: q_finalize()
    a("s_nop 1")
    a("v_readlane_b32 s14, v188, 63")
    a("s_nop 3")
    a("v_mul_f32 v186, s14, v186"); a("v_mul_f32 v187, s14, v187")
    a("v_sqrt_f32 v186, v186"); a("v_sqrt_f32 v187, v187"); a("s_nop 0")
    a("v_max_f32 v189, v186, v187")
    a(f"v_cmp_nge_f32 vcc, {M_THRESH!r}, v189")
    Lfast = a.newlabel("A_fast")
    a(f"s_cbranch_vccz {Lfast}")
    a.c("fallback: true row max")
    a("v_mov_b32 v186, 0xff800000"); a("v_mov_b32 v187, 0xff800000"); a("s_mov_b32 s14, 0")
    Lmx = a.newlabel("A_mx"); a.label(Lmx)
    a(f"buffer_load_dwordx4 {vr(KF[0],4)}, v3, s[60:63], s14 offen {SC}")
    a("s_waitcnt vmcnt(0)")
    a(f"v_mfma_f32_32x32x16_bf16 {vr(SA,16)}, {vr(KF[0],4)}, {vr(QA,4)}, 0")
    a(f"v_mfma_f32_32x32x16_bf16 {vr(CB,16)}, {vr(KF[0],4)}, {vr(QB,4)}, 0")
    a("s_nop 15"); a("s_nop 7")
    for i in range(0, 16, 2):
        a(f"v_max3_f32 v186, v{SA+i}, v{SA+i+1}, v186"); a(f"v_max3_f32 v187, v{CB+i}, v{CB+i+1}, v187")
    a("s_add_u32 s14, s14, 1024"); a("s_cmp_lt_u32 s14, 65536"); a(f"s_cbranch_scc1 {Lmx}")
    half_sum(a, 186, 189, "v_max_f32"); half_sum(a, 187, 189, "v_max_f32")
    a.label(Lfast)
    for i in range(16):
        a(f"v_sub_f32 v{CA+i}, 0, v186"); a(f"v_sub_f32 v{CB+i}, 0, v187")
    a("s_waitcnt vmcnt(8)")
    stage_write(0, 0)
    a("s_waitcnt lgkmcnt(0)")
    a("s_barrier")
    a(f"s_setprio {PRIO_A2}")
    NTILE = 4*ATT_ITERS
    def ldsoff(t): return ((t >> 4) & 1)*32768 + (t & 15)*1024
    def lds_reads(t):
        bf = t & 1
        va = 12 + ((t >> 2) & 1)
        a(f"ds_read_b128 {vr(KF[bf],4)}, v3 offset:{ldsoff(t)}")
        a(f"ds_read_b128 {vr(VF[bf][0],4)}, v{va} offset:{(t & 3)*1024}")
        a(f"ds_read_b128 {vr(VF[bf][1],4)}, v{va} offset:{(t & 3)*1024+512}")
    def vaddr(body):
        a(f"s_mov_b32 s71, {ldsoff(4*body)}")
        a(f"v_mad_u32_u24 v{12 + (body & 1)}, v9, s71, v5")
    vaddr(0)
    lds_reads(0)
    a("s_waitcnt lgkmcnt(0)")
    a(f"v_mfma_f32_32x32x16_bf16 {vr(SA,16)}, {vr(KF[0],4)}, {vr(QA,4)}, {vr(CA,16)}")
    vaddr(1)
    a("s_nop 7")
    stamp(a, 3)
    a("s_nop 7")
    for t in range(NTILE):
        bf = t & 1; nb = bf ^ 1
        if TPROF and t in (8, 16, 24, 32, 40, 48): stamp(a, 8 + (t // 8) - 1)
        for i in range(32):
            if i == 1 and t in (12, 16, 32, 28, 44): a("s_barrier")
            if t == 1 and i == 9: a("s_waitcnt vmcnt(0)")
            if t in (1, 2, 3, 4) and i in (10, 16):
                q = t - 1; k = 0 if i == 10 else 1
                a(f"ds_write_b128 v8, {vr(STG[1]+8*q+4*k,4)} offset:{1*32768 + k*16384 + q*4096}")
            if i == 2:
                a(f"v_smfmac_f32_32x32x32_bf16 {vr(OB,16)}, {vr(VF[nb][1],4)}, {vr(SB+8,8)}, v{IDX}")
            if i == 5: lds_reads((t+1) % 64)
            if i == 9 and (t & 3) == 0 and t > 0: vaddr(t//4 + 1)
            if t in (20, 36) and i == 9: a("s_waitcnt vmcnt(0)")
            if t in (20, 21, 22, 23) and i in (10, 16):
                q = t - 20; k = 0 if i == 10 else 1
                a(f"ds_write_b128 v8, {vr(STG[0]+8*q+4*k,4)} offset:{0*32768 + k*16384 + q*4096}")
            if t in (36, 37, 38, 39) and i in (10, 16):
                q = t - 36; k = 0 if i == 10 else 1
                a(f"ds_write_b128 v8, {vr(STG[1]+8*q+4*k,4)} offset:{1*32768 + k*16384 + q*4096}")
            if t in (5, 6, 7, 8) and i in (12, 19):
                q = t - 5; k = 0 if i == 12 else 1
                a(f"s_add_u32 s13, s12, {2*16384 + q*4096}")
                a(f"buffer_load_dwordx4 {vr(STG[0]+8*q+4*k,4)}, v3, s[{60+4*k}:{63+4*k}], s13 offen {SC}")
            if t in (9, 10, 11, 12) and i in (12, 19):
                q = t - 9; k = 0 if i == 12 else 1
                a(f"s_add_u32 s13, s12, {3*16384 + q*4096}")
                a(f"buffer_load_dwordx4 {vr(STG[1]+8*q+4*k,4)}, v3, s[{60+4*k}:{63+4*k}], s13 offen {SC}")
            if i == 7:
                a(f"v_mfma_f32_32x32x16_bf16 {vr(SB,16)}, {vr(KF[bf],4)}, {vr(QB,4)}, {vr(CB,16)}")
            if i == 12:
                a(f"v_smfmac_f32_32x32x32_bf16 {vr(OA,16)}, {vr(VF[bf][0],4)}, {vr(SA,8)}, v{IDX}")
            if i == 18:
                a(f"v_smfmac_f32_32x32x32_bf16 {vr(OA,16)}, {vr(VF[bf][1],4)}, {vr(SA+8,8)}, v{IDX}")
            if i == 22:
                a("s_waitcnt lgkmcnt(0)")
            if i == 23:
                a(f"v_mfma_f32_32x32x16_bf16 {vr(SA,16)}, {vr(KF[nb],4)}, {vr(QA,4)}, {vr(CA,16)}")
            if i == 28:
                a(f"v_smfmac_f32_32x32x32_bf16 {vr(OB,16)}, {vr(VF[bf][0],4)}, {vr(SB,8)}, v{IDX}")
            reg = SA + i if i < 16 else SB + i - 16
            a(f"v_exp_f32 v{reg}, v{reg}")
    a("s_nop 1")
    a(f"v_smfmac_f32_32x32x32_bf16 {vr(OB,16)}, {vr(VF[1][1],4)}, {vr(SB+8,8)}, v{IDX}")
    stamp(a, 4)
    a("s_nop 15"); a("s_nop 7")
    a(f"v_rcp_f32 v186, v{OA+8}"); a(f"v_rcp_f32 v187, v{OB+8}"); a("s_nop 0")
    for j in range(8):
        a(f"v_mul_f32 v{OA+j}, v{OA+j}, v186"); a(f"v_mul_f32 v{OB+j}, v{OB+j}, v187")
    for j in range(4):
        a(f"v_cvt_pk_bf16_f32 v{SA+j}, v{OA+2*j}, v{OA+2*j+1}"); a(f"v_cvt_pk_bf16_f32 v{SA+4+j}, v{OB+2*j}, v{OB+2*j+1}")
    a("s_lshl_b32 s13, s4, 1"); a("s_add_u32 s13, s13, s7"); a("s_lshl_b32 s13, s13, 5")
    a("s_lshl_b32 s14, s5, 2"); a("s_add_u32 s13, s13, s14"); a("s_lshl_b32 s14, s6, 1"); a("s_add_u32 s13, s13, s14"); a("s_lshl_b32 s13, s13, 10")
    a(f"buffer_store_dwordx4 {vr(SA,4)}, v3, s[56:59], s13 offen {SC}")
    a(f"buffer_store_dwordx4 {vr(SA+4,4)}, v3, s[56:59], s13 offen offset:1024 {SC}")
    a("s_lshl_b32 s12, s4, 7"); a("s_lshl_b32 s13, s5, 2"); a("s_add_u32 s12, s12, s13"); a(f"s_add_u32 s12, s12, {WS_FO}")
    signal(a, "s12", 1, 0, have_tag=True)
    stamp(a, 5)

GK1 = -2.0 * 0.7978845608028654 * 1.4426950408889634
GK2 = GK1 * 0.044715
def role_gu(a):
    a.c("==== GU role ====")
    stamp(a, 0)
    srd(a, 40, S_X, 2048*1024); srd(a, 44, S_WG, 512*3584); srd(a, 48, S_WU, 512*3584)
    a("s_and_b32 s6, s3, 1"); a("s_lshr_b32 s7, s3, 1")
    STG = 24576
    a("v_lshrrev_b32 v3, 2, v1"); a("v_lshlrev_b32 v3, 10, v3"); a("v_and_b32 v4, 3, v1"); a("v_lshrrev_b32 v5, 4, v1")
    a("v_xor_b32 v2, v4, v5"); a("v_lshl_add_u32 v8, v2, 4, v3")
    a("v_mul_u32_u24 v9, 3584, v5"); a("v_bfe_u32 v3, v1, 2, 2"); a("v_xor_b32 v3, v3, v5")
    a("v_lshl_add_u32 v9, v3, 6, v9"); a("v_lshl_add_u32 v9, v4, 4, v9")
    a("s_lshl_b32 s8, s4, 7"); a("s_lshl_b32 s9, s3, 5"); a("s_add_u32 s8, s8, s9"); a("s_lshl_b32 s8, s8, 10")
    a(f"s_mul_i32 s9, s3, {8*3584}"); a("s_lshl_b32 s10, s5, 8"); a("s_add_u32 s9, s9, s10"); a("s_lshl_b32 s10, s3, 11")
    a("s_and_b32 s66, s4, 3"); a("s_lshl_b32 s66, s66, 2")
    def dma_groups(st):
        pre = ["s_lshl_b32 s12, s66, 6", "s_add_u32 s12, s12, s8", f"s_mul_i32 s13, s66, {32*3584}", "s_add_u32 s13, s13, s9",
               "s_add_u32 s66, s66, 1", "s_and_b32 s66, s66, 15"]
        gs = []
        for i in range(2):
            gs.append([f"s_add_u32 m0, s10, {st*STG + i*1024}", f"s_add_u32 s14, s12, {i*16*1024}", "buffer_load_dwordx4 v8, s[40:43], s14 offen lds"])
        for g in range(2):
            for i in range(2):
                gs.append([f"s_add_u32 m0, s10, {st*STG + 8192 + g*8192 + i*1024}", f"s_add_u32 s14, s13, {i*4*3584}",
                           f"buffer_load_dwordx4 v9, s[{44+4*g}:{47+4*g}], s14 offen lds"])
        gs[0] = pre + gs[0]
        return gs
    ACC = 128
    if GU_DELAY: a(f"s_sleep {GU_DELAY}")
    a("s_setprio 3")
    for st in range(3):
        for g in dma_groups(st):
            for x in g: a(x)
    for i in range(128): a(f"v_mov_b32 v{ACC+i}, 0")
    NT = 0
    if TOUCH:
        a("v_lshrrev_b32 v2, 1, v1"); a("v_mul_u32_u24 v2, 3584, v2"); a("v_and_b32 v3, 1, v1"); a("v_lshl_add_u32 v2, v3, 7, v2")
        a("s_and_b32 s14, s4, 3"); a("s_lshl_b32 s14, s14, 2"); a("s_add_u32 s14, s14, s3"); a(f"s_mul_i32 s14, s14, {32*3584}")
        a("s_lshl_b32 s15, s5, 8"); a("s_add_u32 s14, s14, s15")
        a("buffer_load_dword v60, v2, s[44:47], s14 offen"); a("buffer_load_dword v61, v2, s[48:51], s14 offen")
        a("v_lshrrev_b32 v2, 3, v1"); a("v_lshlrev_b32 v2, 10, v2"); a("v_and_b32 v3, 7, v1"); a("v_lshl_add_u32 v2, v3, 7, v2")
        a("s_cmp_ge_u32 s5, 7"); a("s_cselect_b32 s14, 7, 0"); a("s_sub_u32 s14, s5, s14")
        a("s_cmp_ge_u32 s3, 2"); a("s_cselect_b32 s14, 7, s14"); a("s_lshl_b32 s14, s14, 4")
        a("s_and_b32 s15, s3, 1"); a("s_lshl_b32 s15, s15, 3"); a("s_add_u32 s14, s14, s15")
        a("s_lshl_b32 s15, s4, 7"); a("s_add_u32 s14, s14, s15"); a("s_lshl_b32 s14, s14, 10")
        a("buffer_load_dword v62, v2, s[40:43], s14 offen")
        NT = 3
    srd(a, 52, S_WS, WS_SMALL_END); srd(a, 56, S_WS, HF_BYTES, WS_HF)
    a("v_and_b32 v6, 31, v1"); a("v_lshrrev_b32 v7, 5, v1")
    a("v_bfe_u32 v10, v1, 2, 2"); a("v_xor_b32 v10, v10, v7"); a("v_lshlrev_b32 v10, 4, v10"); a("v_lshl_add_u32 v10, v6, 6, v10")
    a("s_lshl_b32 s14, s6, 12"); a("v_add_u32 v10, s14, v10"); a("v_xor_b32 v11, 32, v10")
    a("v_bfe_u32 v2, v1, 2, 2"); a("v_lshl_add_u32 v12, v7, 3, v2"); a("v_lshlrev_b32 v12, 8, v12")
    a("s_lshl_b32 s14, s7, 1"); a("v_xor_b32 v2, s14, v2"); a("v_lshl_add_u32 v12, v2, 6, v12")
    a("v_bfe_u32 v2, v1, 4, 1"); a("v_lshl_add_u32 v12, v2, 5, v12"); a("v_and_b32 v2, 3, v1"); a("v_lshl_add_u32 v12, v2, 3, v12")
    a("v_add_u32 v12, 8192, v12"); a("v_xor_b32 v13, 64, v12")
    ACC = 128
    def acc(mt, ft, g): return ACC + ((mt*2+ft)*2+g)*16
    XF = lambda b, mt: 64 + (b*2+mt)*4
    WF = lambda b, ft, g: 80 + ((b*2+ft)*2+g)*4
    CSA = lambda ft: 20 + 16*ft
    for i in range(32): a(f"v_mov_b32 v{20+i}, 0")
    for i in range(4): a(f"v_mov_b32 v{52+i}, {ONES_BF16:#x}")
    for i in range(4): a(f"v_add_u32 v{14+i}, {2*STG}, v{10+i}")
    def read_list(st, sstep, b):
        base = 14 if st == 2 else 10
        so = 0 if st == 2 else st*STG
        L = []
        for mt in range(2): L.append(f"ds_read_b128 {vr(XF(b,mt),4)}, v{base+sstep} offset:{so + mt*2048}")
        for ft in range(2):
            for g in range(2):
                L.append(f"ds_read_b64_tr_b16 {vr(WF(b,ft,g),2)}, v{base+2+ft} offset:{so + g*8192 + (16*sstep)*256}")
                L.append(f"ds_read_b64_tr_b16 {vr(WF(b,ft,g)+2,2)}, v{base+2+ft} offset:{so + g*8192 + (16*sstep+4)*256}")
        return L if not GU_NOREAD else ["s_nop 0"]*10
    def mfma_list(b, cs=None):
        L = [f"v_mfma_f32_32x32x16_bf16 {vr(acc(mt,ft,g),16)}, {vr(WF(b,ft,g),4)}, {vr(XF(b,mt),4)}, {vr(acc(mt,ft,g),16)}"
             for ft in range(2) for g in range(2) for mt in range(2)]
        if cs is not None:
            L += [f"v_mfma_f32_32x32x16_bf16 {vr(CSA(g),16)}, {vr(WF(b,cs,g),4)}, v[52:55], {vr(CSA(g),16)}" for g in range(2)]
        return L
    a(f"s_waitcnt vmcnt({12+NT})"); a("s_barrier")
    a(f"s_setprio {PRIO_G}")
    stamp(a, 4)
    for x in read_list(0, 0, 0): a(x)
    def emit_chunks(c_lo, c_hi, cs, pend):
        for c in range(c_lo, c_hi):
            st = c % 3
            a("s_waitcnt lgkmcnt(0)")
            rl = read_list(st, 1, 1)
            fill = [rl[2*k:2*k+2] for k in range(5)] + pend
            pend = []
            interleave(a, mfma_list(0, cs), fill)
            if c < 15:
                vm = 6 if c + 2 <= 15 else 0
                if c == 0: vm += NT
                a(f"s_waitcnt vmcnt({vm}) lgkmcnt(0)")
                if not GU_NOBAR: a("s_barrier")
                rl = read_list((c+1) % 3, 0, 0)
                fill = [rl[2*k:2*k+2] for k in range(5)]
                if c + 3 <= 15 and not GU_NODMA:
                    dg = dma_groups(st)
                    fill += dg[:3]; pend = dg[3:]
                interleave(a, mfma_list(1, cs), fill)
            else:
                a("s_waitcnt lgkmcnt(0)")
                interleave(a, mfma_list(1, cs), [])
        return pend
    Lw1 = a.newlabel("GU_wm1"); Lj = a.newlabel("GU_j")
    a("s_cmp_eq_u32 s6, 1"); a(f"s_cbranch_scc1 {Lw1}")
    pend = emit_chunks(0, 4, 0, [])
    a(f"s_branch {Lj}")
    a.label(Lw1)
    pend = emit_chunks(0, 4, 1, [])
    a.label(Lj)
    tag_prefetch(a, 56)
    a("v_lshrrev_b32 v58, 5, v1"); a("v_lshlrev_b32 v58, 4, v58")
    a(f"s_mul_i32 s67, s4, {3584*4}"); a("s_lshl_b32 s68, s5, 9"); a("s_add_u32 s67, s67, s68"); a("s_lshl_b32 s68, s7, 8"); a("s_add_u32 s67, s67, s68")
    a("s_lshl_b32 s68, s6, 7"); a("s_add_u32 s67, s67, s68"); a(f"s_add_u32 s67, s67, {WS_CSP}"); a(f"s_add_u32 s68, s67, {1792*4}")
    set_exec(a, 0x0000000100000001)
    for g in range(2):
        for q in range(4):
            a(f"buffer_store_dwordx4 {vr(CSA(g)+4*q,4)}, v58, s[52:55], s{67+g} offen offset:{32*q} {SC}")
    a("s_mov_b64 exec, -1")
    NCS = 9
    pend = emit_chunks(4, 5, None, pend)
    pend = emit_chunks(5, 7, None, pend)
    Lf = a.newlabel("GU_cf")
    a("s_cmp_lg_u32 s3, 0"); a(f"s_cbranch_scc1 {Lf}")
    tag_finish(a, 56)
    a("s_lshr_b32 s67, s4, 2"); a("s_mul_i32 s67, s67, 14"); a("s_add_u32 s67, s67, s5"); a("s_lshl_b32 s67, s67, 6")
    a("s_and_b32 s68, s4, 3"); a("s_lshl_b32 s68, s68, 2"); a("s_add_u32 s67, s67, s68"); a(f"s_add_u32 s67, s67, {WS_FCS}")
    a("v_mov_b32 v58, 0"); a("v_mov_b32 v59, s74")
    set_exec(a, 1)
    a("buffer_store_dword v59, v58, s[52:55], s67 offen sc0 sc1")
    a("s_mov_b64 exec, -1")
    a.label(Lf)
    pend = emit_chunks(7, 16, None, pend)
    stamp(a, 1)
    a(f"s_setprio {PRIO_GE}")
    def pre(a):
        a("s_lshr_b32 s13, s4, 2"); a("s_mul_i32 s13, s13, 14"); a("s_add_u32 s13, s13, s5"); a("s_lshl_b32 s13, s13, 6"); a(f"s_add_u32 s13, s13, {WS_FCS}")
        a("s_and_b32 s12, s2, 15"); a("s_lshl_b32 s12, s12, 8"); a(f"s_add_u32 s12, s12, {WS_FKV}")
    wg_wait(a, [("s12", 32), ("s13", 4)], have_tag=True, pre=pre)
    a("s_lshl_b32 s8, s4, 7"); a("s_lshl_b32 s9, s6, 6"); a("s_add_u32 s8, s8, s9")
    a("v_add_u32 v2, s8, v6"); a("v_lshlrev_b32 v2, 2, v2")
    a(f"s_mov_b32 s9, {WS_ST}"); a(f"s_mov_b32 s10, {WS_ST+8192}")
    for mt in range(2):
        a(f"buffer_load_dword v{8+mt}, v2, s[52:55], s9 offen offset:{mt*128} {SC}")
        a(f"buffer_load_dword v{10+mt}, v2, s[52:55], s10 offen offset:{mt*128} {SC}")
    a("s_and_b32 s8, s4, 12"); a(f"s_mul_i32 s8, s8, {3584*4}"); a("s_lshl_b32 s9, s5, 9"); a("s_add_u32 s8, s8, s9"); a("s_lshl_b32 s9, s7, 8"); a("s_add_u32 s8, s8, s9")
    a(f"s_add_u32 s8, s8, {WS_CSP}")
    a(f"v_mul_u32_u24 v2, {1792*4}, v7"); a("v_lshl_add_u32 v2, v6, 3, v2")
    for j in range(4):
        a(f"s_add_u32 s9, s8, {j*3584*4}")
        a(f"buffer_load_dwordx2 {vr(16+2*j,2)}, v2, s[52:55], s9 offen {SC}")
    CS = lambda ft, g: 64 + (ft*2+g)*16
    a("s_lshl_b32 s9, s3, 9"); a("v_lshl_add_u32 v3, v1, 3, s9"); a("v_lshl_add_u32 v4, v7, 4, s9")
    a("s_waitcnt vmcnt(0)")
    a("v_add_f32 v16, v16, v18"); a("v_add_f32 v17, v17, v19"); a("v_add_f32 v20, v20, v22"); a("v_add_f32 v21, v21, v23")
    a("v_add_f32 v16, v16, v20"); a("v_add_f32 v17, v17, v21")
    a("ds_write_b64 v3, v[16:17]")
    a("s_waitcnt lgkmcnt(0)")
    for ft in range(2):
        for g in range(2):
            for q in range(4):
                a(f"ds_read_b128 {vr(CS(ft,g)+4*q,4)}, v4 offset:{g*256 + ft*128 + q*32}")
    a("v_lshlrev_b32 v3, 4, v1")
    a("s_lshl_b32 s8, s4, 2"); a("s_lshl_b32 s9, s6, 1"); a("s_add_u32 s8, s8, s9"); a("s_mul_i32 s8, s8, 112")
    a("s_lshl_b32 s9, s5, 3"); a("s_add_u32 s8, s8, s9"); a("s_lshl_b32 s9, s7, 2"); a("s_add_u32 s8, s8, s9"); a("s_lshl_b32 s8, s8, 10")
    a(f"v_mov_b32 v12, {GK1!r}"); a(f"v_mov_b32 v13, {GK2!r}")
    a("s_waitcnt vmcnt(0) lgkmcnt(0)")
    stamp(a, 2)
    T = 16
    for mt in range(2):
        a(f"v_mov_b32 v{40+4*mt}, v{8+mt}"); a(f"v_mov_b32 v{41+4*mt}, v{8+mt}"); a(f"v_mov_b32 v{42+4*mt}, v{10+mt}"); a(f"v_mov_b32 v{43+4*mt}, v{10+mt}")
    a("v_mov_b32 v48, v12"); a("v_mov_b32 v49, v12"); a("v_mov_b32 v50, v13"); a("v_mov_b32 v51, v13"); a("v_mov_b32 v52, 1.0"); a("v_mov_b32 v53, 1.0")
    P2 = lambda r: f"v[{r}:{r+1}]"
    for mt in range(2):
        A2, B2 = P2(40+4*mt), P2(42+4*mt)
        for ft in range(2):
            G, U = acc(mt,ft,0), acc(mt,ft,1)
            R = range(0, 16, 2)
            tt = lambda r: T + r
            t2 = lambda r: 54 + (r // 2 % 4) * 2
            for r in R: a(f"v_pk_mul_f32 {P2(tt(r))}, {B2}, {P2(CS(ft,0)+r)}")
            for r in R: a(f"v_pk_fma_f32 {P2(G+r)}, {P2(G+r)}, {A2}, {P2(tt(r))}")
            for r in R: a(f"v_pk_mul_f32 {P2(tt(r))}, {B2}, {P2(CS(ft,1)+r)}")
            for r in R: a(f"v_pk_fma_f32 {P2(U+r)}, {P2(U+r)}, {A2}, {P2(tt(r))}")
            for r in R: a(f"v_pk_mul_f32 {P2(tt(r))}, {P2(G+r)}, {P2(G+r)}")
            for r in R: a(f"v_pk_fma_f32 {P2(tt(r))}, {P2(tt(r))}, v[50:51], v[48:49]")
            for r in R: a(f"v_pk_mul_f32 {P2(tt(r))}, {P2(tt(r))}, {P2(G+r)}")
            for r in range(16): a(f"v_exp_f32 v{T+r}, v{T+r}")
            for r in R: a(f"v_pk_mul_f32 {P2(U+r)}, {P2(U+r)}, {P2(G+r)}")
            for r in R: a(f"v_pk_add_f32 {P2(tt(r))}, {P2(tt(r))}, v[52:53]")
            for r in range(16): a(f"v_rcp_f32 v{T+r}, v{T+r}")
            a("s_nop 0")
            for r in R: a(f"v_pk_mul_f32 {P2(U+r)}, {P2(U+r)}, {P2(tt(r))}")
            for j in range(8): a(f"v_cvt_pk_bf16_f32 v{G+j}, v{U+2*j}, v{U+2*j+1}")
            a(f"s_add_u32 s9, s8, {(mt*112 + 2*ft)*1024}")
            a(f"buffer_store_dwordx4 {vr(G,4)}, v3, s[56:59], s9 offen {SC}")
            a(f"buffer_store_dwordx4 {vr(G+4,4)}, v3, s[56:59], s9 offen offset:1024 {SC}")
    a("s_lshl_b32 s12, s4, 7"); a("s_lshl_b32 s13, s5, 2"); a("s_add_u32 s12, s12, s13"); a(f"s_add_u32 s12, s12, {WS_FH}")
    signal(a, "s12", 1, 0, have_tag=True)
    stamp(a, 3)

def role_fin(a):
    a.c("==== FIN role ====")
    stamp(a, 0)
    srd(a, 40, S_WD, 1792*1024); srd(a, 44, S_WO, 512*1024); srd(a, 48, S_X, 2048*1024); srd(a, 52, S_WS, WS_SMALL_END)
    srd(a, 56, S_WS, HF_BYTES, WS_HF); srd(a, 60, S_WS, OF_BYTES, WS_OF); srd(a, 64, S_OUT, 2048*1024)
    R = 7
    a("v_lshrrev_b32 v3, 3, v1"); a("v_lshlrev_b32 v3, 10, v3"); a("v_bfe_u32 v4, v1, 2, 1"); a("v_bfe_u32 v5, v1, 4, 1")
    a("v_xor_b32 v4, v4, v5"); a("v_lshl_add_u32 v8, v4, 6, v3"); a("v_and_b32 v4, 3, v1"); a("v_lshl_add_u32 v8, v4, 4, v8")
    a("v_lshlrev_b32 v9, 4, v1"); a("s_lshl_b32 s6, s3, 14")
    a("v_lshrrev_b32 v7, 5, v1"); a("v_and_b32 v6, 31, v1"); a("v_bfe_u32 v2, v1, 2, 2")
    a("v_lshl_add_u32 v10, v7, 2, v2"); a("v_lshlrev_b32 v10, 7, v10"); a("v_lshrrev_b32 v2, 1, v2"); a("v_lshl_add_u32 v10, v2, 6, v10")
    a("v_and_b32 v2, 1, v1"); a("v_lshl_add_u32 v10, v2, 5, v10"); a("v_bfe_u32 v2, v1, 4, 1"); a("v_lshl_add_u32 v10, v2, 4, v10")
    a("v_bfe_u32 v2, v1, 1, 1"); a("v_lshl_add_u32 v10, v2, 3, v10"); a("v_add_u32 v10, s6, v10"); a("v_xor_b32 v11, 64, v10")
    ACC = 192
    acc = lambda mt, nt: ACC + (mt*2+nt)*16
    for i in range(64): a(f"v_mov_b32 v{ACC+i}, 0")
    HB = lambda p, mt: 64 + (p*2+mt)*4
    WF = lambda b, nt: 128 + (b*2+nt)*4
    a("s_and_b32 s7, s3, 1"); a("s_lshr_b32 s8, s3, 1"); a("s_lshl_b32 s9, s4, 6"); a("s_lshl_b32 s10, s7, 5"); a("s_add_u32 s9, s9, s10")
    a("v_add_u32 v12, s9, v6"); a("v_lshlrev_b32 v12, 10, v12"); a("v_lshl_add_u32 v12, v7, 5, v12")
    a("s_lshl_b32 s9, s5, 7"); a("s_lshl_b32 s10, s8, 6"); a("s_add_u32 s9, s9, s10"); a("v_add_u32 v12, s9, v12")
    a("buffer_load_dwordx4 v[16:19], v12, s[48:51], 0 offen")
    a("buffer_load_dwordx4 v[20:23], v12, s[48:51], 0 offen offset:16")
    a("s_and_b32 s70, s4, 3"); a("s_mul_i32 s70, s70, 7"); a("s_mul_i32 s71, s5, 7"); a("s_lshr_b32 s71, s71, 1"); a("s_add_u32 s70, s70, s71")
    a("s_cmp_ge_u32 s70, 28"); a("s_cselect_b32 s71, 28, 0"); a("s_sub_u32 s70, s70, s71")
    a("s_mov_b32 s72, s70")
    a("s_lshl_b32 s11, s4, 1"); a("s_mul_i32 s11, s11, 112"); a("s_mul_i32 s12, s3, 28"); a("s_add_u32 s11, s11, s12"); a("s_lshl_b32 s11, s11, 10")
    a("s_lshl_b32 s12, s12, 14"); a("s_lshl_b32 s13, s5, 7"); a("s_add_u32 s12, s12, s13")
    def adv(reg):
        a(f"s_add_u32 s{reg}, s{reg}, 1"); a(f"s_cmp_eq_u32 s{reg}, 28"); a(f"s_cselect_b32 s{reg}, 0, s{reg}")
    def issue_w(slot):
        a("s_lshl_b32 s15, s70, 14"); a("s_add_u32 s15, s15, s12"); adv(70)
        for q in range(2):
            a(f"s_add_u32 m0, s6, {slot*2048 + q*1024}")
            a(f"s_add_u32 s14, s15, {q*8*1024}")
            a("buffer_load_dwordx4 v8, s[40:43], s14 offen lds")
    def issue_h(slot):
        a("s_lshl_b32 s15, s72, 10"); a("s_add_u32 s15, s15, s11"); adv(72)
        for mt in range(2):
            a(f"s_add_u32 s14, s15, {mt*112*1024}")
            a(f"buffer_load_dwordx4 {vr(HB(slot,mt),4)}, v9, s[56:59], s14 offen {SC}")
    def trreads(slot, b):
        for nt in range(2):
            a(f"ds_read_b64_tr_b16 {vr(WF(b,nt),2)}, v{10+nt} offset:{slot*2048}")
            a(f"ds_read_b64_tr_b16 {vr(WF(b,nt)+2,2)}, v{10+nt} offset:{slot*2048 + 8*128}")
    def mfmas(slot, b):
        for nt in range(2):
            for mt in range(2):
                a(f"v_mfma_f32_32x32x16_bf16 {vr(acc(mt,nt),16)}, {vr(WF(b,nt),4)}, {vr(HB(slot,mt),4)}, {vr(acc(mt,nt),16)}")
    for i in range(6): issue_w(i)
    def pre(a):
        a("s_lshr_b32 s14, s4, 1"); a("s_lshl_b32 s14, s14, 7"); a(f"s_add_u32 s14, s14, {WS_FH}")
    wg_wait(a, [("s14", 14)], pre=pre)
    stamp(a, 1)
    for i in range(6): issue_h(i)
    a("s_waitcnt vmcnt(12)")
    trreads(0, 0); trreads(1, 1)
    def grp_w(slot):
        g0 = ["s_lshl_b32 s15, s70, 14", "s_add_u32 s15, s15, s12", "s_add_u32 s70, s70, 1", "s_cmp_eq_u32 s70, 28", "s_cselect_b32 s70, 0, s70"]
        L = []
        for q in range(2):
            L.append([f"s_add_u32 m0, s6, {slot*2048 + q*1024}", f"s_add_u32 s14, s15, {q*8*1024}", "buffer_load_dwordx4 v8, s[40:43], s14 offen lds"])
        L[0] = g0 + L[0]
        return L
    def grp_h(slot):
        g0 = ["s_lshl_b32 s69, s72, 10", "s_add_u32 s69, s69, s11", "s_add_u32 s72, s72, 1", "s_cmp_eq_u32 s72, 28", "s_cselect_b32 s72, 0, s72"]
        L = []
        for mt in range(2):
            L.append([f"s_add_u32 s14, s69, {mt*112*1024}", f"buffer_load_dwordx4 {vr(HB(slot,mt),4)}, v9, s[56:59], s14 offen {SC}"])
        L[0] = g0 + L[0]
        return L
    N = 28
    for i in range(N):
        slot = i % R; b = i % 3
        last = min(i - 1, N - 7)
        if i <= 5: aH = 2*(5-i) + 4*(last+1)
        else: aH = 4*(last - (i-6))
        need = aH
        j = i + 2
        if j < N and j > 5: need = min(need, 2 + 4*(last - (j-6)))
        a(f"s_waitcnt vmcnt({min(need,63)}) lgkmcnt({4 if i+1 < N else 0})")
        mains = [f"v_mfma_f32_32x32x16_bf16 {vr(acc(mt,nt),16)}, {vr(WF(b,nt),4)}, {vr(HB(slot,mt),4)}, {vr(acc(mt,nt),16)}" for nt in range(2) for mt in range(2)]
        fill = []
        tr = []
        if j < N:
            for nt in range(2):
                tr += [f"ds_read_b64_tr_b16 {vr(WF(j%3,nt),2)}, v{10+nt} offset:{(j%R)*2048}", f"ds_read_b64_tr_b16 {vr(WF(j%3,nt)+2,2)}, v{10+nt} offset:{(j%R)*2048 + 8*128}"]
        if i + 6 < N:
            gw = grp_w((i+6) % R); gh = grp_h((i+6) % R)
            fill = [tr + gw[0], gw[1], gh[0], gh[1]]
        else:
            fill = [tr]
        interleave(a, mains, fill)
    stamp(a, 2)
    a("s_barrier")
    a("v_add_u32 v13, s6, v9")
    a("s_nop 7"); a("s_nop 7")
    Ls = [a.newlabel("F_own") for _ in range(4)]
    for tl in range(4):
        a(f"s_cmp_eq_u32 s3, {tl}"); a(f"s_cbranch_scc1 {Ls[tl]}")
        mt, nt = tl & 1, tl >> 1
        for q in range(4): a(f"ds_write_b128 v13, {vr(acc(mt,nt)+4*q,4)} offset:{tl*4096 + q*1024}")
        a.label(Ls[tl])
    Lm = [a.newlabel("F_mv") for _ in range(4)]; Ldone = a.newlabel("F_mvd")
    for tl in range(4):
        a(f"s_cmp_lg_u32 s3, {tl}"); a(f"s_cbranch_scc1 {Lm[tl]}")
        mt, nt = tl & 1, tl >> 1
        for i in range(16): a(f"v_mov_b32 v{24+i}, v{acc(mt,nt)+i}")
        a(f"s_branch {Ldone}")
        a.label(Lm[tl])
    a.label(Ldone)
    for j in range(8):
        a(f"v_lshlrev_b32 v40, 16, v{16+j}"); a(f"v_and_b32 v41, 0xffff0000, v{16+j}")
        a(f"v_add_f32 v{24+2*j}, v{24+2*j}, v40"); a(f"v_add_f32 v{24+2*j+1}, v{24+2*j+1}, v41")
    a("s_lshl_b32 s14, s3, 12"); a("v_add_u32 v13, s14, v9")
    a("s_waitcnt lgkmcnt(0)"); a("s_barrier")
    for k in range(1, 4):
        a(f"s_add_u32 s15, s3, {k}"); a("s_and_b32 s15, s15, 3"); a("s_lshl_b32 s15, s15, 14"); a("v_add_u32 v14, s15, v13")
        for q in range(4): a(f"ds_read_b128 {vr(64+16*(k-1)+4*q,4)}, v14 offset:{q*1024}")
    for k in range(3):
        a(f"s_waitcnt lgkmcnt({4*(2-k)})")
        for i in range(16): a(f"v_add_f32 v{24+i}, v{24+i}, v{64+16*k+i}")
    a("s_barrier")
    a("s_lshl_b32 s12, s3, 17"); a("s_add_u32 s12, s12, s13")
    for i in range(16):
        a(f"s_add_u32 m0, s6, {i*1024}")
        a(f"s_add_u32 s14, s12, {i*8*1024}")
        a("buffer_load_dwordx4 v8, s[44:47], s14 offen lds")
    a("v_subrev_u32 v14, s6, v10"); a("s_lshr_b32 s14, s3, 1"); a("s_lshl_b32 s14, s14, 15"); a("v_add_u32 v14, s14, v14"); a("v_xor_b32 v15, 64, v14")
    for i in range(32): a(f"v_mov_b32 v{192+i}, 0")
    a("s_waitcnt vmcnt(0)")
    a("s_barrier")
    WO = lambda i, nt: 128 + (i*2+nt)*4 if i < 8 else 224 + ((i-8)*2+nt)*4 % 32
    for i in range(8):
        for nt in range(2):
            a(f"ds_read_b64_tr_b16 {vr(128+(i*2+nt)*4,2)}, v{14+nt} offset:{i*2048}")
            a(f"ds_read_b64_tr_b16 {vr(128+(i*2+nt)*4+2,2)}, v{14+nt} offset:{i*2048 + 8*128}")
        if i % 2 == 1: a("s_waitcnt lgkmcnt(0)")
    def wr(i):
        for nt in range(2):
            r = 224 + ((i & 3)*2 + nt)*4
            a(f"ds_read_b64_tr_b16 {vr(r,2)}, v{14+nt} offset:{i*2048}")
            a(f"ds_read_b64_tr_b16 {vr(r+2,2)}, v{14+nt} offset:{i*2048 + 8*128}")
    for i in range(8, 12): wr(i)
    def pre(a):
        a("s_lshl_b32 s14, s4, 7"); a(f"s_add_u32 s14, s14, {WS_FO}")
    wg_wait(a, [("s14", 8)], have_tag=True, pre=pre)
    a(f"s_setprio {PRIO_FT}")
    stamp(a, 5)
    a("s_lshl_b32 s11, s4, 1"); a("s_and_b32 s14, s3, 1"); a("s_add_u32 s11, s11, s14"); a("s_lshl_b32 s11, s11, 15")
    a("s_lshr_b32 s14, s3, 1"); a("s_lshl_b32 s14, s14, 14"); a("s_add_u32 s11, s11, s14")
    OB_ = lambda i: 64 + 4*i
    for i in range(16):
        if i % 4 == 0: a(f"s_add_u32 s14, s11, {i*1024}")
        a(f"buffer_load_dwordx4 {vr(OB_(i),4)}, v9, s[60:63], s14 offen offset:{(i%4)*1024} {SC}")
    for i in range(16):
        a(f"s_waitcnt vmcnt({15-i}) lgkmcnt(0)" if i in (0, 12) else f"s_waitcnt vmcnt({15-i})")
        for nt in range(2):
            w = 128+(i*2+nt)*4 if i < 8 else 224 + ((i & 3)*2 + nt)*4
            a(f"v_mfma_f32_32x32x16_bf16 {vr(192+16*nt,16)}, {vr(w,4)}, {vr(OB_(i),4)}, {vr(192+16*nt,16)}")
        if 8 <= i < 12: wr(i + 4)
    stamp(a, 3)
    a("s_nop 15")
    a("s_lshl_b32 s14, s3, 12"); a("v_add_u32 v13, s14, v9")
    a("s_barrier")
    Lk1 = a.newlabel("F_k1"); Lk2 = a.newlabel("F_k2")
    a("s_cmp_ge_u32 s3, 2"); a(f"s_cbranch_scc1 {Lk1}")
    for q in range(4): a(f"ds_write_b128 v13, {vr(208+4*q,4)} offset:{q*1024}")
    for i in range(16): a(f"v_add_f32 v{24+i}, v{24+i}, v{192+i}")
    a(f"s_branch {Lk2}")
    a.label(Lk1)
    for q in range(4): a(f"ds_write_b128 v13, {vr(192+4*q,4)} offset:{q*1024}")
    for i in range(16): a(f"v_add_f32 v{24+i}, v{24+i}, v{208+i}")
    a.label(Lk2)
    a("s_xor_b32 s14, s3, 2"); a("s_lshl_b32 s14, s14, 12"); a("v_add_u32 v13, s14, v9")
    a("s_waitcnt lgkmcnt(0)"); a("s_barrier")
    for q in range(4): a(f"ds_read_b128 {vr(64+4*q,4)}, v13 offset:{q*1024}")
    a("s_waitcnt lgkmcnt(0)")
    for i in range(16): a(f"v_add_f32 v{24+i}, v{24+i}, v{64+i}")
    for j in range(8): a(f"v_cvt_pk_bf16_f32 v{64+j}, v{24+2*j}, v{24+2*j+1}")
    a(f"buffer_store_dwordx4 v[64:67], v12, s[64:67], 0 offen {OUTFLAGS[OUTF]}")
    a(f"buffer_store_dwordx4 v[68:71], v12, s[64:67], 0 offen offset:16 {OUTFLAGS[OUTF]}")
    stamp(a, 4)

def kd(name, vgpr=256, sgpr=102):
    return f"""
.section .rodata,"a"
.p2align 6
.amdhsa_kernel {name}
  .amdhsa_next_free_vgpr {vgpr}
  .amdhsa_next_free_sgpr {sgpr}
  .amdhsa_accum_offset {vgpr}
  .amdhsa_group_segment_fixed_size 0
  .amdhsa_kernarg_size 96
  .amdhsa_user_sgpr_count 2
  .amdhsa_user_sgpr_kernarg_segment_ptr 1
  .amdhsa_system_sgpr_workgroup_id_x 1
.end_amdhsa_kernel
"""
def khead(name):
    return f""".text
.globl {name}
.p2align 8
.type {name},@function
{name}:
"""
HEADER = open(f"cdna_kernels/{NAME}.s.ref").read().split("; Override")[0]
def map_attn_ids(a, idreg):
    a(f"s_and_b32 s4, s{idreg}, 7"); a("s_lshl_b32 s4, s4, 2"); a(f"s_lshr_b32 s5, s{idreg}, 3")
    a("s_and_b32 s6, s5, 3"); a("s_add_u32 s4, s4, s6"); a("s_lshr_b32 s5, s5, 2")
def map_gu_ids(a, idreg):
    a(f"s_and_b32 s6, s{idreg}, 7"); a(f"s_lshr_b32 s7, s{idreg}, 3"); a("s_lshr_b32 s4, s6, 1"); a("s_lshl_b32 s4, s4, 2")
    a("s_and_b32 s8, s7, 3"); a("s_add_u32 s4, s4, s8"); a("s_and_b32 s5, s6, 1"); a("s_mul_i32 s5, s5, 7"); a("s_lshr_b32 s7, s7, 2"); a("s_add_u32 s5, s5, s7")

def build():
    out = HEADER
    out += f"; @launch grid=({ID_END},1,1) block=(256,1,1) lds=81920\n"
    out += '.amdgcn_target "amdgcn-amd-amdhsa--gfx950"\n'
    KN = NAME + "_kernel"
    a = Asm()
    a(f"s_cmp_ge_u32 s2, {ID_END}"); a("s_cbranch_scc1 K_end")
    prologue(a); stamp_init(a)
    if HPROF:
        a("s_memrealtime s[96:97]"); a("s_waitcnt lgkmcnt(0)")
    a(f"s_cmp_ge_u32 s2, {ID_A}"); a("s_cbranch_scc1 K_notkv")
    a(f"s_setprio {PRIO_KV}")
    a("s_and_b32 s4, s2, 7"); a("s_lshl_b32 s4, s4, 2"); a("s_lshr_b32 s5, s2, 3"); a("s_add_u32 s4, s4, s5")
    role_kv(a)
    a("s_lshl_b32 s12, s4, 2"); a(f"s_add_u32 s12, s12, {WS_FKV}")
    signal(a, "s12", 16, 256, have_tag=True)
    stamp(a, 5)
    stamp(a, 4)
    a("s_branch K_flush")
    a.label("K_notkv")
    a(f"s_cmp_ge_u32 s2, {ID_F}"); a("s_cbranch_scc1 K_fin")
    a(f"s_cmp_ge_u32 s2, {ID_G}"); a("s_cbranch_scc1 K_gu")
    a(f"s_setprio {PRIO_A}")
    a(f"s_sub_u32 s100, s2, {ID_A}")
    map_attn_ids(a, 100)
    if not SKIP_A: role_attn(a)
    a("s_branch K_flush")
    a.label("K_gu")
    a(f"s_setprio {PRIO_G}")
    a(f"s_sub_u32 s9, s2, {ID_G}"); map_gu_ids(a, 9)
    if SKIP_GU:
        srd(a, 52, S_WS, WS_SMALL_END)
        a("s_lshl_b32 s12, s4, 7"); a("s_lshl_b32 s13, s5, 2"); a("s_add_u32 s12, s12, s13"); a(f"s_add_u32 s12, s12, {WS_FH}")
        signal(a, "s12", 1, 0)
    else: role_gu(a)
    a("s_branch K_flush")
    a.label("K_fin")
    a(f"s_setprio {PRIO_F}")
    a(f"s_sub_u32 s9, s2, {ID_F}"); map_attn_ids(a, 9)
    if not SKIP_FIN: role_fin(a)
    a.label("K_flush")
    stamp_flush(a)
    if HPROF:
        L = a.newlabel("HP")
        a("s_cmp_lg_u32 s3, 0"); a(f"s_cbranch_scc1 {L}")
        a("s_and_b32 s76, s2, 3"); a("s_cmp_lg_u32 s76, 0"); a(f"s_cbranch_scc1 {L}")
        a("s_memrealtime s[98:99]"); a("s_waitcnt lgkmcnt(0)")
        a("s_not_b32 s96, s96")
        a("s_mov_b32 s76, 3"); a(f"s_cmp_ge_u32 s2, {ID_A}"); a("s_cselect_b32 s76, 4, s76"); a(f"s_cmp_ge_u32 s2, {ID_G}"); a("s_cselect_b32 s76, 5, s76")
        a(f"s_cmp_ge_u32 s2, {ID_F}"); a("s_cselect_b32 s76, 6, s76"); a("s_lshl_b32 s76, s76, 2")
        a("v_mov_b32 v2, 4"); a("v_mov_b32 v3, s96"); a("v_mov_b32 v4, s76"); a("v_mov_b32 v5, s98")
        set_exec(a, 1)
        a(f"global_atomic_umax v2, v3, s[{S_DBG}:{S_DBG+1}] sc1")
        a(f"global_atomic_umax v4, v5, s[{S_DBG}:{S_DBG+1}] sc1")
        a("s_mov_b64 exec, -1")
        a.label(L)
    a.label("K_end"); a("s_endpgm")
    out += khead(KN) + a.text() + kd(KN)
    return out

if __name__ == "__main__":
    dst = sys.argv[1] if len(sys.argv) > 1 else f"cdna_kernels/{NAME}.s"
    for arg in sys.argv[2:]:
        k, v = arg.split("="); globals()[k] = int(v)
    txt = build()
    open(dst, "w").write(txt)
    print("wrote", dst, len(txt))
```

```python
import sys, math
from asmlib import Asm, vr, sr

NAME = "parallel_sum__grouped_kv_mqa__glu_gated_geglu__prompt"
WS_KF = 0x0; WS_VF = 0x10000; WS_ST = 0x20000; WS_KM = 0x24000; WS_CS = 0x25000
WS_FKV = 0x30000
WS_FCS = 0x31000
WS_FH  = 0x32000
WS_FO  = 0x33000
WS_FST = 0x34000
WS_CSP = 0x40000
WS_SMALL_END = 0x80000
WS_HF = 0x100000; WS_OF = 0x800000
HF_BYTES = 64*112*1024; OF_BYTES = 64*32*1024
WS_PROF = 0xE00000
S_X, S_WQ, S_WK, S_WV, S_WO, S_BX, S_WG, S_WU, S_WD, S_OUT, S_DBG, S_WS = 16,18,20,22,24,26,28,30,32,34,36,38
ONES_BF16 = 0x3F803F80
SC = "sc1"
HPROF = 0; PROF = 0; ATT_ITERS = 16; SKIP_GU = 0; SKIP_FIN = 0; SPIN_MAX = 200000; TOUCH = 1
TOUCH_A = 1; GU_DELAY = 0; SKIP_A = 0; GU_NOBAR = 0; GU_NODMA = 0; GU_NOREAD = 0; PRIO_GE = 3; PRIO_FT = 3; A_DELAY = 0; PRIO_A1 = 1; OUTF = 0; OWN_STATS = 0; D_NOBAR = D_NOREAD = D_NOWAIT = 0; PERSIST = 0; TPROF = 0; A_EXIT = 0; PRIO_A2 = 0; PRIO_A = 1; PRIO_G = 0; PRIO_F = 0; PRIO_KV = 3
ID_A, ID_G, ID_F, ID_END = 32, 288, 512, 768

OUTFLAGS = ["", "sc1", "sc0 sc1", "nt", "sc0 sc1 nt"]
def prologue(a):
    a("""
    s_load_dwordx16 s[16:31], s[0:1], 0
    s_load_dwordx8 s[32:39], s[0:1], 64
    v_and_b32 v1, 63, v0
    v_lshrrev_b32 v2, 6, v0
    s_nop 0
    v_readfirstlane_b32 s3, v2
    s_waitcnt lgkmcnt(0)
    """)
def srd(a, d, ptr, nbytes, off=0):
    if off:
        a(f"s_add_u32 s{d}, s{ptr}, {off}")
        a(f"s_addc_u32 s{d+1}, s{ptr+1}, 0")
        a(f"s_and_b32 s{d+1}, s{d+1}, 0xffff")
    else:
        a(f"s_mov_b32 s{d}, s{ptr}")
        a(f"s_and_b32 s{d+1}, s{ptr+1}, 0xffff")
    a(f"s_mov_b32 s{d+2}, {nbytes}")
    a(f"s_mov_b32 s{d+3}, 0x00020000")

def stamp(a, idx):
    if not PROF: return
    a("s_memtime s[78:79]"); a("s_waitcnt lgkmcnt(0)"); a(f"s_mov_b32 s{80+idx}, s78")
def stamp_init(a):
    if not PROF: return
    a("s_memrealtime s[78:79]"); a("s_waitcnt lgkmcnt(0)"); a("s_mov_b32 s95, s78")
    for i in range(80, 95): a(f"s_mov_b32 s{i}, 0")
def stamp_flush(a, dummy=None):
    if not PROF: return
    L = a.newlabel("PF")
    a("s_cmp_lg_u32 s3, 0"); a(f"s_cbranch_scc1 {L}")
    a("s_memrealtime s[78:79]"); a("s_waitcnt lgkmcnt(0)"); a("s_mov_b32 s94, s78")
    srd(a, 72, S_WS, 0x100000, WS_PROF)
    a("s_lshl_b32 s76, s2, 6")
    a("v_mov_b32 v250, 0")
    set_exec(a, 1)
    for i in range(16):
        a(f"v_mov_b32 v251, s{80+i}")
        a(f"buffer_store_dword v251, v250, s[72:75], s76 offen offset:{4*i}")
    a("s_mov_b64 exec, -1")
    a.label(L)

def set_exec(a, m):
    if m == (1 << 64) - 1: a("s_mov_b64 exec, -1"); return
    a(f"s_mov_b32 exec_lo, {m & 0xffffffff:#x}"); a(f"s_mov_b32 exec_hi, {m >> 32:#x}")
def interleave(a, mains, fillers, start=0, per=1):
    fi = 0
    for i, m in enumerate(mains):
        a(m)
        if i >= start:
            for _ in range(per):
                if fi < len(fillers):
                    for x in fillers[fi]: a(x)
                    fi += 1
    while fi < len(fillers):
        for x in fillers[fi]: a(x)
        fi += 1
def dpp_wave_max(a, v):
    for mod in ("quad_perm:[1,0,3,2] row_mask:0xf bank_mask:0xf", "quad_perm:[2,3,0,1] row_mask:0xf bank_mask:0xf",
                "row_half_mirror row_mask:0xf bank_mask:0xf", "row_mirror row_mask:0xf bank_mask:0xf",
                "row_bcast:15 row_mask:0xa bank_mask:0xf", "row_bcast:31 row_mask:0xc bank_mask:0xf"):
        a("s_nop 1")
        a(f"v_max_f32_dpp v{v}, v{v}, v{v} {mod}")
def half_sum(a, v, t, op="v_add_f32"):
    a(f"v_mov_b32 v{t}, v{v}"); a("s_nop 1")
    a(f"v_permlane32_swap_b32 v{v}, v{t}"); a("s_nop 1")
    a(f"{op} v{v}, v{v}, v{t}")

def write_tag(a):
    L = a.newlabel("TAGW")
    a("s_or_b32 s76, s2, s3")
    a("s_cmp_lg_u32 s76, 0"); a(f"s_cbranch_scc1 {L}")
    a("s_memrealtime s[76:77]"); a("s_waitcnt lgkmcnt(0)")
    a("s_or_b32 s76, s76, 1")
    a("v_mov_b32 v2, 0"); a("v_mov_b32 v3, s76")
    set_exec(a, 1)
    a(f"global_store_dword v2, v3, s[{S_DBG}:{S_DBG+1}] sc0 sc1")
    a("s_mov_b64 exec, -1")
    a.label(L)
def get_tag(a):
    L = a.newlabel("TAG"); Ld = a.newlabel("TAGD")
    a("v_mov_b32 v2, 0")
    a(f"global_load_dword v3, v2, s[{S_DBG}:{S_DBG+1}]")
    a("s_waitcnt vmcnt(0)")
    a("v_readfirstlane_b32 s74, v3")
    a("s_cmp_lg_u32 s74, 0"); a(f"s_cbranch_scc1 {Ld}")
    a("s_mov_b32 s75, 0")
    a.label(L)
    a("s_sleep 4")
    a(f"global_load_dword v3, v2, s[{S_DBG}:{S_DBG+1}] sc0 sc1")
    a("s_waitcnt vmcnt(0)")
    a("v_readfirstlane_b32 s74, v3")
    a("s_cmp_lg_u32 s74, 0"); a(f"s_cbranch_scc1 {Ld}")
    a("s_add_u32 s75, s75, 1"); a(f"s_cmp_lt_u32 s75, {SPIN_MAX}"); a(f"s_cbranch_scc1 {L}")
    a.label(Ld)
def tag_prefetch(a, vreg):
    a(f"v_mov_b32 v{vreg+1}, 0")
    a(f"global_load_dword v{vreg}, v{vreg+1}, s[{S_DBG}:{S_DBG+1}]")
def tag_finish(a, vreg):
    L = a.newlabel("TAGR"); Ld = a.newlabel("TAGF")
    a(f"v_readfirstlane_b32 s74, v{vreg}")
    a("s_cmp_lg_u32 s74, 0"); a(f"s_cbranch_scc1 {Ld}")
    a("s_mov_b32 s75, 0")
    a.label(L)
    a("s_sleep 4")
    a(f"global_load_dword v{vreg}, v{vreg+1}, s[{S_DBG}:{S_DBG+1}] sc0 sc1")
    a("s_waitcnt vmcnt(0)")
    a(f"v_readfirstlane_b32 s74, v{vreg}")
    a("s_cmp_lg_u32 s74, 0"); a(f"s_cbranch_scc1 {Ld}")
    a("s_add_u32 s75, s75, 1"); a(f"s_cmp_lt_u32 s75, {SPIN_MAX}"); a(f"s_cbranch_scc1 {L}")
    a.label(Ld)
def signal(a, off_sreg, ncopies, stride, have_tag=False):
    a("s_waitcnt vmcnt(0)")
    a("s_barrier")
    L = a.newlabel("SIG")
    a("s_cmp_lg_u32 s3, 0"); a(f"s_cbranch_scc1 {L}")
    if not have_tag: get_tag(a)
    a(f"v_mul_u32_u24 v2, {stride}, v1")
    a("v_mov_b32 v3, s74")
    set_exec(a, (1<<ncopies)-1)
    a(f"buffer_store_dword v3, v2, s[52:55], {off_sreg} offen sc0 sc1")
    a("s_mov_b64 exec, -1")
    a.label(L)
def poll(a, off_sreg, n, sleep=2):
    L = a.newlabel("POLL"); Ld = a.newlabel("POLLD")
    a("v_lshlrev_b32 v2, 2, v1")
    a("s_mov_b32 s75, 0")
    if n < 64: set_exec(a, (1<<n)-1)
    a.label(L)
    a(f"buffer_load_dword v3, v2, s[52:55], {off_sreg} offen sc0 sc1")
    a("s_waitcnt vmcnt(0)")
    a("v_cmp_ne_u32 vcc, s74, v3")
    a(f"s_cbranch_vccz {Ld}")
    a(f"s_sleep {sleep}")
    a("s_add_u32 s75, s75, 1"); a(f"s_cmp_lt_u32 s75, {SPIN_MAX}"); a(f"s_cbranch_scc1 {L}")
    a.label(Ld)
    a("s_mov_b64 exec, -1")
def wg_wait(a, waits, have_tag=False, pre=None):
    L = a.newlabel("WGW")
    a("s_cmp_lg_u32 s3, 0"); a(f"s_cbranch_scc1 {L}")
    if not have_tag: get_tag(a)
    if pre: pre(a)
    for off, n in waits: poll(a, off, n)
    a.label(L)
    a("s_barrier")

def role_kv(a):
    a.c("==== KV role ====")
    stamp(a, 0)
    srd(a, 40, S_X, 2048*1024)
    a("s_mul_i32 s6, s3, 20480")
    a("v_lshrrev_b32 v3, 3, v1"); a("v_lshlrev_b32 v3, 10, v3"); a("v_and_b32 v4, 7, v1"); a("v_lshrrev_b32 v5, 4, v1"); a("v_xor_b32 v6, v4, v5")
    a("v_lshl_add_u32 v8, v6, 4, v3"); a("v_xor_b32 v9, 64, v8")
    a("s_lshl_b32 s8, s4, 16"); a("s_lshl_b32 s9, s3, 8"); a("s_add_u32 s8, s8, s9")
    def xblk(mt, half, ldsoff):
        L = []
        for i in range(4):
            L.append([f"s_add_u32 m0, s6, {ldsoff + i*1024}", f"s_add_u32 s10, s8, {(32*mt + 8*i)*1024 + half*128}",
                      f"buffer_load_dwordx4 v{8+(i&1)}, s[40:43], s10 offen lds"])
        return L
    for g in xblk(0, 0, 8192):
        for x in g: a(x)
    srd(a, 44, S_WK, 16384); srd(a, 48, S_WV, 16384)
    a("v_lshlrev_b32 v3, 4, v1"); a("v_xor_b32 v5, 128, v3"); a("s_lshl_b32 s9, s3, 12")
    for i in range(4):
        a(f"s_add_u32 m0, s6, {i*1024}"); a(f"s_add_u32 s10, s9, {i*1024}")
        a("buffer_load_dwordx4 v3, s[44:47], s10 offen lds")
        a(f"s_add_u32 m0, s6, {4096 + i*1024}"); a("s_nop 0")
        a("buffer_load_dwordx4 v5, s[48:51], s10 offen lds")
    for mt, half, off in ((0, 1, 12288), (1, 0, 16384)):
        for g in xblk(mt, half, off):
            for x in g: a(x)
    a("v_lshlrev_b32 v6, 10, v1"); a(f"s_add_u32 s10, s8, {32*1024 + 128}")
    set_exec(a, 0xffffffff)
    a("buffer_load_dword v200, v6, s[40:43], s10 offen")
    a("s_mov_b64 exec, -1")
    srd(a, 52, S_WS, WS_SMALL_END); srd(a, 60, S_WS, 65536, WS_KF); srd(a, 64, S_WS, 65536, WS_VF)
    write_tag(a)
    a("v_and_b32 v6, 31, v1"); a("v_lshrrev_b32 v7, 5, v1")
    a("v_bfe_u32 v11, v1, 1, 3"); a("v_xor_b32 v11, v11, v7"); a("v_lshlrev_b32 v11, 4, v11"); a("v_lshl_add_u32 v11, v6, 7, v11")
    a("v_add_u32 v12, s6, v11")
    for s_ in range(1, 4): a(f"v_xor_b32 v{12+s_}, {s_<<5}, v12")
    a("v_bfe_u32 v3, v1, 4, 1"); a("v_lshlrev_b32 v10, 12, v3")
    a("v_bfe_u32 v11, v1, 2, 2"); a("v_lshl_add_u32 v11, v7, 3, v11"); a("v_lshl_add_u32 v10, v11, 5, v10")
    a("v_and_b32 v11, 3, v1"); a("v_lshl_add_u32 v10, v11, 3, v10"); a("v_add_u32 v10, s6, v10")
    a("v_lshlrev_b32 v3, 7, v3"); a("v_xor_b32 v11, 128, v3"); a("v_add_u32 v11, v10, v11"); a("v_add_u32 v10, v10, v3")
    TK = [16, 32]; CS = 48; SX = [64, 80]
    for i in range(80): a(f"v_mov_b32 v{16+i}, 0")
    for i in range(4): a(f"v_mov_b32 v{128+i}, {ONES_BF16:#x}")
    for i in range(4): a(f"v_mov_b32 v{132+i}, 0")
    WF = lambda s_: 96 + 4*s_
    XB = lambda k: 144 + 4*k
    XOFF = {(0,0): 8192, (0,1): 12288, (1,0): 16384, (1,1): 8192}
    a("s_waitcnt vmcnt(1)")
    stamp(a, 1)
    tag_prefetch(a, 204)
    for s_ in range(8):
        a(f"ds_read_b64_tr_b16 {vr(WF(s_),2)}, v10 offset:{s_*512}"); a(f"ds_read_b64_tr_b16 {vr(WF(s_)+2,2)}, v11 offset:{s_*512}")
    seq = [(mt, s_) for mt in range(2) for s_ in range(8)]
    def xread(k):
        mt, s_ = seq[k]
        return f"ds_read_b128 {vr(XB(k&3),4)}, v{12+(s_&3)} offset:{XOFF[(mt, s_>>2)]}"
    for k in range(3): a(xread(k))
    for k, (mt, s_) in enumerate(seq):
        if k == 12: a("s_waitcnt vmcnt(0)")
        x = XB(k & 3); w = WF(s_)
        nxt = k + 3
        if nxt < 16:
            if nxt == 12: a("s_waitcnt vmcnt(0)")
            a(xread(nxt))
        a(f"s_waitcnt lgkmcnt({min(3, 15-k)})")
        a(f"v_mfma_f32_32x32x16_bf16 {vr(TK[mt],16)}, {vr(w,4)}, {vr(x,4)}, {vr(TK[mt],16)}")
        L = []
        for r in range(4):
            lo, hi = 136 + 2*(r & 1), 137 + 2*(r & 1)
            L += [f"v_lshlrev_b32 v{lo}, 16, v{x+r}", f"v_and_b32 v{hi}, 0xffff0000, v{x+r}",
                  f"v_fma_f32 v{132+2*mt}, v{lo}, v{lo}, v{132+2*mt}", f"v_fma_f32 v{133+2*mt}, v{hi}, v{hi}, v{133+2*mt}"]
        for i_ in L[:6]: a(i_)
        a(f"v_mfma_f32_32x32x16_bf16 {vr(SX[mt],16)}, v[128:131], {vr(x,4)}, {vr(SX[mt],16)}")
        for i_ in L[6:12]: a(i_)
        if mt == 0:
            a(f"v_mfma_f32_32x32x16_bf16 {vr(CS,16)}, {vr(w,4)}, v[128:131], {vr(CS,16)}")
        for i_ in L[12:]: a(i_)
        if k == 4:
            for g in xblk(1, 1, 8192):
                for x_ in g: a(x_)
    stamp(a, 2)
    a("s_barrier")
    a("v_add_f32 v132, v132, v133"); a("v_add_f32 v134, v134, v135")
    a("v_lshlrev_b32 v3, 4, v1"); a("s_mul_i32 s9, s3, 12288"); a("v_add_u32 v2, s9, v3")
    for mt in range(2):
        for q in range(4): a(f"ds_write_b128 v2, {vr(TK[mt]+4*q,4)} offset:{mt*4096 + q*1024}")
    for q in range(4): a(f"ds_write_b128 v2, {vr(CS+4*q,4)} offset:{8192 + q*1024}")
    a("v_lshlrev_b32 v4, 2, v1"); a("s_lshl_b32 s9, s3, 10"); a("s_add_u32 s9, s9, 49152"); a("v_add_u32 v4, s9, v4")
    a(f"ds_write_b32 v4, v{SX[0]}"); a(f"ds_write_b32 v4, v{SX[1]} offset:256"); a("ds_write_b32 v4, v132 offset:512"); a("ds_write_b32 v4, v134 offset:768")
    tag_finish(a, 204)
    a("s_waitcnt lgkmcnt(0)"); a("s_barrier")
    stamp(a, 6)
    a("v_lshlrev_b32 v3, 4, v1")
    a("s_and_b32 s10, s3, 1"); a("s_lshr_b32 s11, s3, 1")
    a("s_lshl_b32 s9, s10, 12"); a("s_lshl_b32 s12, s11, 11"); a("s_add_u32 s9, s9, s12"); a("v_add_u32 v2, s9, v3")
    a("v_add_u32 v4, s12, v3")
    for w in range(4):
        for q in range(2):
            a(f"ds_read_b128 {vr(16+8*w+4*q,4)}, v2 offset:{w*12288 + q*1024}")
            a(f"ds_read_b128 {vr(48+8*w+4*q,4)}, v4 offset:{w*12288 + 8192 + q*1024}")
    a("v_lshlrev_b32 v5, 2, v6"); a("s_lshl_b32 s9, s10, 8"); a("s_add_u32 s9, s9, 49152"); a("v_add_u32 v5, s9, v5")
    for w in range(4):
        a(f"ds_read_b32 v{80+w}, v5 offset:{w*1024}")
        a(f"ds_read_b32 v{84+2*w}, v5 offset:{w*1024 + 512}"); a(f"ds_read_b32 v{85+2*w}, v5 offset:{w*1024 + 512 + 128}")
    a("s_lshl_b32 s13, s4, 1"); a("s_add_u32 s13, s13, s10")
    a("s_waitcnt lgkmcnt(0)")
    for i in range(8):
        a(f"v_add_f32 v{16+i}, v{16+i}, v{24+i}"); a(f"v_add_f32 v{32+i}, v{32+i}, v{40+i}")
        a(f"v_add_f32 v{48+i}, v{48+i}, v{56+i}"); a(f"v_add_f32 v{64+i}, v{64+i}, v{72+i}")
    a("v_add_f32 v80, v80, v81"); a("v_add_f32 v82, v82, v83"); a("v_add_f32 v84, v84, v85"); a("v_add_f32 v86, v86, v87"); a("v_add_f32 v88, v88, v89"); a("v_add_f32 v90, v90, v91")
    a("v_add_f32 v80, v80, v82"); a("v_add_f32 v84, v84, v86"); a("v_add_f32 v88, v88, v90"); a("v_add_f32 v84, v84, v88")
    a(f"v_mul_f32 v80, {1.0/512.0!r}, v80"); a(f"v_mul_f32 v84, {1.0/512.0!r}, v84")
    a("v_fma_f32 v84, -v80, v80, v84"); a("v_max_f32 v84, 0, v84"); a("v_add_f32 v84, 0x3727c5ac, v84")
    a("v_rsq_f32 v86, v84")
    for i in range(8):
        a(f"v_add_f32 v{16+i}, v{16+i}, v{32+i}"); a(f"v_add_f32 v{48+i}, v{48+i}, v{64+i}")
    a("v_mul_f32 v87, v80, v86"); a("v_sub_f32 v87, 0, v87")
    for i in range(8): a(f"v_mul_f32 v{48+i}, v87, v{48+i}")
    for i in range(8): a(f"v_fma_f32 v{16+i}, v{16+i}, v86, v{48+i}")
    for j in range(4): a(f"v_cvt_pk_bf16_f32 v{64+j}, v{16+2*j}, v{16+2*j+1}")
    LV = a.newlabel("KV_V"); Lend = a.newlabel("KV_e")
    a("s_cmp_eq_u32 s11, 1"); a(f"s_cbranch_scc1 {LV}")
    a("v_and_b32 v2, 0x33, v1"); a("v_bfe_u32 v4, v1, 2, 1"); a("v_lshl_or_b32 v2, v4, 3, v2")
    a("v_bfe_u32 v4, v1, 3, 1"); a("v_lshl_or_b32 v2, v4, 2, v2"); a("v_lshlrev_b32 v2, 4, v2")
    a("s_lshl_b32 s12, s13, 10")
    a(f"buffer_store_dwordx4 v[64:67], v2, s[60:63], s12 offen {SC}")
    a("s_lshl_b32 s12, s13, 7"); a("v_lshl_add_u32 v4, v6, 2, s12")
    set_exec(a, 0xffffffff)
    a(f"s_mov_b32 s14, {WS_ST}"); a(f"buffer_store_dword v86, v4, s[52:55], s14 offen {SC}")
    a(f"s_mov_b32 s14, {WS_ST+8192}"); a(f"buffer_store_dword v87, v4, s[52:55], s14 offen {SC}")
    a("s_mov_b64 exec, -1")
    a("v_mul_f32 v84, v16, v16"); a("v_mul_f32 v85, v17, v17")
    for j in range(2, 8): a(f"v_fmac_f32 v{84+(j&1)}, v{16+j}, v{16+j}")
    a("v_add_f32 v84, v84, v85")
    half_sum(a, 84, 85)
    dpp_wave_max(a, 84)
    a("s_lshl_b32 s12, s13, 2"); a(f"s_add_u32 s14, s12, {WS_KM}"); a("v_mov_b32 v2, 0")
    set_exec(a, 1 << 63)
    a(f"buffer_store_dword v84, v2, s[52:55], s14 offen {SC}")
    a("s_mov_b64 exec, -1")
    a(f"s_branch {Lend}")
    a.label(LV)
    a("s_lshl_b32 s9, s10, 10"); a("s_add_u32 s9, s9, 57344")
    a("v_lshlrev_b32 v2, 1, v6"); a("v_lshl_add_u32 v2, v7, 8, v2"); a("v_add_u32 v2, s9, v2")
    for j in range(4):
        d0 = ((2*j) & 3) + 8*((2*j) >> 2); d1 = ((2*j+1) & 3) + 8*((2*j+1) >> 2)
        a(f"ds_write_b16 v2, v{64+j} offset:{d0*64}"); a(f"ds_write_b16_d16_hi v2, v{64+j} offset:{d1*64}")
    a("v_and_b32 v2, 15, v1"); a("v_lshlrev_b32 v4, 6, v2"); a("v_lshl_add_u32 v4, v7, 3, v4"); a("v_add_u32 v4, s9, v4")
    a("v_lshl_add_u32 v2, v7, 4, v2"); a("v_lshlrev_b32 v2, 4, v2")
    a("s_lshl_b32 s12, s13, 10")
    a("s_waitcnt lgkmcnt(0)")
    for c in range(2):
        a(f"ds_read_b64 {vr(72+4*c,2)}, v4 offset:{32*c}"); a(f"ds_read_b64 {vr(74+4*c,2)}, v4 offset:{32*c+16}")
    a("s_waitcnt lgkmcnt(0)")
    set_exec(a, 0x0000ffff0000ffff)
    a(f"buffer_store_dwordx4 v[72:75], v2, s[64:67], s12 offen {SC}")
    a(f"buffer_store_dwordx4 v[76:79], v2, s[64:67], s12 offen offset:512 {SC}")
    a("s_mov_b64 exec, -1")
    a.label(Lend)
    stamp(a, 3)

def role_colsum(a, have_tag=True):
    a.c("==== colsum part ==== (s4 = block 0..55)")
    a("s_cmp_ge_u32 s4, 28")
    a(f"s_cselect_b32 s44, s{S_WU}, s{S_WG}"); a(f"s_cselect_b32 s45, s{S_WU+1}, s{S_WG+1}")
    a("s_and_b32 s45, s45, 0xffff"); a(f"s_mov_b32 s46, {512*3584}"); a("s_mov_b32 s47, 0x00020000")
    a("s_sub_u32 s5, s4, 28"); a("s_cmp_ge_u32 s4, 28"); a("s_cselect_b32 s5, s5, s4"); a("s_lshl_b32 s5, s5, 7")
    a("v_lshrrev_b32 v3, 3, v1"); a("v_mul_u32_u24 v3, 3584, v3")
    a("v_bfe_u32 v4, v1, 2, 1"); a("v_bfe_u32 v5, v1, 4, 1"); a("v_xor_b32 v4, v4, v5")
    a("v_lshl_add_u32 v3, v4, 6, v3"); a("v_and_b32 v4, 3, v1"); a("v_lshl_add_u32 v3, v4, 4, v3")
    a(f"s_mul_i32 s6, s3, {128*3584}"); a("s_add_u32 s6, s6, s5"); a("s_lshl_b32 s7, s3, 14")
    for k in range(16):
        a(f"s_add_u32 m0, s7, {k*1024}"); a(f"s_add_u32 s8, s6, {k*8*3584}")
        a("buffer_load_dwordx4 v3, s[44:47], s8 offen lds")
    a("v_lshrrev_b32 v7, 5, v1"); a("v_bfe_u32 v10, v1, 2, 2"); a("v_lshl_add_u32 v9, v7, 3, v10"); a("v_lshlrev_b32 v9, 7, v9")
    a("v_lshrrev_b32 v10, 1, v10"); a("v_xor_b32 v10, s3, v10"); a("v_and_b32 v10, 1, v10"); a("v_lshl_add_u32 v9, v10, 6, v9")
    a("v_bfe_u32 v10, v1, 4, 1"); a("v_lshl_add_u32 v9, v10, 5, v9"); a("v_and_b32 v10, 3, v1"); a("v_lshl_add_u32 v9, v10, 3, v9")
    a("s_lshr_b32 s8, s3, 1"); a("s_lshl_b32 s8, s8, 15"); a("v_add_u32 v9, s8, v9")
    for i in range(16): a(f"v_mov_b32 v{16+i}, 0")
    for i in range(4): a(f"v_mov_b32 v{32+i}, {ONES_BF16:#x}")
    a("s_waitcnt vmcnt(0)"); a("s_barrier")
    WF = lambda s: 40 + 4*(s & 3)
    def rd(s):
        a(f"ds_read_b64_tr_b16 {vr(WF(s),2)}, v9 offset:{(16*s)*128}")
        a(f"ds_read_b64_tr_b16 {vr(WF(s)+2,2)}, v9 offset:{(16*s+4)*128}")
    for s in range(3): rd(s)
    for s in range(16):
        if s + 3 < 16: rd(s+3)
        a(f"s_waitcnt lgkmcnt({2*min(3, 15-s)})")
        a(f"v_mfma_f32_32x32x16_bf16 v[16:31], {vr(WF(s),4)}, v[32:35], v[16:31]")
    a("s_barrier")
    a("v_lshlrev_b32 v3, 4, v1"); a("s_and_b32 s8, s3, 1"); a("s_lshl_b32 s8, s8, 12"); a("v_add_u32 v3, s8, v3")
    Lw = a.newlabel("CS_w"); Lsk = a.newlabel("CS_sk")
    a("s_nop 7"); a("s_nop 7")
    a("s_cmp_lt_u32 s3, 2"); a(f"s_cbranch_scc1 {Lw}")
    for q in range(4): a(f"ds_write_b128 v3, {vr(16+4*q,4)} offset:{q*1024}")
    a.label(Lw)
    a("s_waitcnt lgkmcnt(0)"); a("s_barrier")
    a("s_cmp_ge_u32 s3, 2"); a(f"s_cbranch_scc1 {Lsk}")
    for q in range(4): a(f"ds_read_b128 {vr(40+4*q,4)}, v3 offset:{q*1024}")
    a("s_lshl_b32 s12, s4, 8"); a("s_lshl_b32 s13, s3, 7"); a("s_add_u32 s12, s12, s13"); a(f"s_add_u32 s12, s12, {WS_CS}")
    a("v_lshlrev_b32 v3, 4, v7")
    a("s_waitcnt lgkmcnt(0)")
    for i in range(16): a(f"v_add_f32 v{16+i}, v{16+i}, v{40+i}")
    set_exec(a, 0x0000000100000001)
    for g in range(4): a(f"buffer_store_dwordx4 {vr(16+4*g,4)}, v3, s[52:55], s12 offen offset:{32*g} {SC}")
    a("s_mov_b64 exec, -1")
    a.label(Lsk)
    a("s_lshl_b32 s12, s4, 2"); a(f"s_add_u32 s12, s12, {WS_FCS}")
    signal(a, "s12", 8, 256, have_tag=have_tag)

QSCALE = 0.25 * 1.4426950408889634
M_THRESH = 48.0
def role_attn(a):
    a.c("==== ATTN role ====")
    stamp(a, 0)
    L_W = 49152
    if A_EXIT == 2:
        a("s_sleep 127"); a("s_sleep 127"); a("s_sleep 127"); a("s_sleep 127"); a("s_branch K_flush")
    srd(a, 40, S_X, 2048*1024)
    srd(a, 44, S_WQ, 512*1024)
    a("s_and_b32 s6, s3, 1"); a("s_lshr_b32 s7, s3, 1")
    a("v_lshrrev_b32 v3, 3, v1"); a("v_lshlrev_b32 v3, 10, v3")
    a("v_and_b32 v4, 7, v1"); a("v_lshrrev_b32 v5, 4, v1"); a("v_xor_b32 v6, v4, v5")
    a("v_lshl_add_u32 v8, v6, 4, v3"); a("v_xor_b32 v9, 64, v8")
    a("v_bfe_u32 v6, v1, 2, 1"); a("v_and_b32 v7, 1, v5"); a("v_xor_b32 v6, v6, v7")
    a("v_lshl_add_u32 v10, v6, 6, v3"); a("v_and_b32 v6, 3, v1"); a("v_lshl_add_u32 v10, v6, 4, v10")
    a("s_lshl_b32 s8, s4, 6"); a("s_lshl_b32 s9, s3, 4"); a("s_add_u32 s8, s8, s9"); a("s_lshl_b32 s8, s8, 10")
    a("s_lshl_b32 s9, s9, 10"); a("s_lshl_b32 s10, s5, 7"); a("s_add_u32 s9, s9, s10"); a("s_lshl_b32 s10, s3, 11")
    a("s_and_b32 s69, s4, 3"); a("s_lshl_b32 s69, s69, 1")
    a("s_mov_b32 s68, s69")
    if A_DELAY: a(f"s_sleep {A_DELAY}")
    NST = 4
    def dma_groups(st):
        pre = ["s_lshl_b32 s12, s69, 7", "s_add_u32 s12, s12, s8", "s_lshl_b32 s13, s69, 16", "s_add_u32 s13, s13, s9",
               "s_add_u32 s69, s69, 1", "s_and_b32 s69, s69, 7"]
        gs = []
        for i in range(2):
            gs.append([f"s_add_u32 m0, s10, {st*16384 + i*1024}", f"s_add_u32 s11, s12, {i*8*1024}", f"buffer_load_dwordx4 v{8+i}, s[40:43], s11 offen lds"])
        for i in range(2):
            gs.append([f"s_add_u32 m0, s10, {st*16384 + 8192 + i*1024}", f"s_add_u32 s11, s13, {i*8*1024}", "buffer_load_dwordx4 v10, s[44:47], s11 offen lds"])
        gs[0] = pre + gs[0]
        return gs
    for g in dma_groups(0):
        for x in g: a(x)
    Lnt = a.newlabel("A_nt")
    a(f"s_branch {Lnt}")
    srd(a, 48, S_WK, 16384); srd(a, 52, S_WV, 16384)
    a("v_lshlrev_b32 v3, 4, v1"); a("v_xor_b32 v5, 128, v3"); a("s_lshl_b32 s11, s3, 12")
    for i in range(4):
        a(f"s_add_u32 m0, s11, {L_W + i*1024}"); a(f"s_add_u32 s12, s11, {i*1024}")
        a("buffer_load_dwordx4 v3, s[48:51], s12 offen lds")
        a(f"s_add_u32 m0, s11, {L_W + 16384 + i*1024}")
        a("buffer_load_dwordx4 v5, s[52:55], s12 offen lds")
    a.label(Lnt)
    for c in range(1, NST):
        for g in dma_groups(c):
            for x in g: a(x)
    NTA = 0
    if TOUCH_A:
        a("v_lshrrev_b32 v2, 3, v1"); a("v_lshlrev_b32 v2, 10, v2"); a("v_and_b32 v3, 7, v1"); a("v_lshl_add_u32 v2, v3, 7, v2")
        a("s_lshl_b32 s11, s4, 6"); a("s_lshl_b32 s12, s5, 3"); a("s_add_u32 s11, s11, s12"); a("s_lshl_b32 s11, s11, 10")
        a("v_lshlrev_b32 v3, 10, v1")
        a("s_and_b32 s12, s4, 3"); a("s_lshl_b32 s12, s12, 7"); a("s_and_b32 s13, s3, 1"); a("s_lshl_b32 s13, s13, 6"); a("s_add_u32 s12, s12, s13")
        a("s_lshl_b32 s12, s12, 10"); a("s_lshl_b32 s13, s5, 7"); a("s_add_u32 s12, s12, s13")
        Lt1 = a.newlabel("A_t1"); Lt2 = a.newlabel("A_t2")
        a("s_cmp_ge_u32 s3, 2"); a(f"s_cbranch_scc1 {Lt1}")
        a("buffer_load_dword v190, v3, s[44:47], s12 offen")
        a(f"s_branch {Lt2}")
        a.label(Lt1)
        a("buffer_load_dword v190, v2, s[40:43], s11 offen")
        a.label(Lt2)
        NTA = 1
    srd(a, 52, S_WS, WS_SMALL_END)
    srd(a, 56, S_WS, OF_BYTES, WS_OF)
    srd(a, 60, S_WS, 65536, WS_KF)
    srd(a, 64, S_WS, 65536, WS_VF)
    a("v_and_b32 v6, 31, v1"); a("v_lshrrev_b32 v7, 5, v1")
    a("v_bfe_u32 v11, v1, 1, 3"); a("v_xor_b32 v11, v11, v7"); a("v_lshlrev_b32 v11, 4, v11"); a("v_lshl_add_u32 v11, v6, 7, v11")
    a("s_lshl_b32 s11, s7, 12"); a("v_add_u32 v12, s11, v11")
    a("s_lshl_b32 s11, s6, 5"); a("v_xor_b32 v12, s11, v12")
    for v in range(1, 4): a(f"v_xor_b32 v{12+v}, {v<<5}, v12")
    a("v_bfe_u32 v11, v1, 2, 2"); a("v_lshl_add_u32 v2, v7, 3, v11"); a("v_lshlrev_b32 v2, 7, v2")
    a("v_lshrrev_b32 v11, 1, v11"); a("v_xor_b32 v11, s6, v11"); a("v_lshl_add_u32 v2, v11, 6, v2")
    a("v_bfe_u32 v11, v1, 4, 1"); a("v_lshl_add_u32 v2, v11, 5, v2"); a("v_and_b32 v11, 3, v1"); a("v_lshl_add_u32 v2, v11, 3, v2")
    a("s_lshl_b32 s11, s6, 11"); a("v_add_u32 v4, s11, v2"); a("v_subrev_u32 v5, s11, v2")
    a("v_bfe_u32 v3, v1, 4, 1"); a("v_lshlrev_b32 v140, 14, v3")
    a("v_bfe_u32 v11, v1, 2, 2"); a("v_lshl_add_u32 v11, v7, 3, v11"); a("v_lshl_add_u32 v140, v11, 5, v140")
    a("v_and_b32 v11, 3, v1"); a("v_lshl_add_u32 v140, v11, 3, v140")
    a("s_lshl_b32 s11, s6, 9"); a(f"s_add_u32 s11, s11, {L_W}"); a("v_add_u32 v140, s11, v140")
    a("v_lshlrev_b32 v3, 7, v3"); a("v_xor_b32 v11, 128, v3"); a("v_add_u32 v141, v140, v11"); a("v_add_u32 v140, v140, v3")
    a("v_xor_b32 v160, 4096, v14")
    XE = lambda b: 164 + 4*b
    ACC, TK, CSQ = 16, 32, 48
    FR = lambda b, v: 64 + (b*4+v)*8
    KW = lambda b, v2: 144 + (b*2+v2)*4
    for i in range(48): a(f"v_mov_b32 v{16+i}, 0")
    for i in range(4): a(f"v_mov_b32 v{128+i}, {ONES_BF16:#x}")
    for i in range(4): a(f"v_mov_b32 v{132+i}, 0")
    def read_groups(c, kind):
        st = c % NST; b = c & 1
        gs = []
        for v in range(4):
            wb = 4 if v % 2 == 0 else 5
            g = [f"ds_read_b128 {vr(FR(b,v),4)}, v{12+v} offset:{st*16384}",
                 f"ds_read_b64_tr_b16 {vr(FR(b,v)+4,2)}, v{wb} offset:{st*16384 + 8192 + v*2048}",
                 f"ds_read_b64_tr_b16 {vr(FR(b,v)+6,2)}, v{wb} offset:{st*16384 + 8192 + v*2048 + 512}"]
            if kind == "cs" and v == 2:
                g += [f"ds_read_b128 {vr(XE(b),4)}, v160 offset:{st*16384}"]
            if kind != "none" and v % 2 == 0:
                g += [f"ds_read_b64_tr_b16 {vr(KW(b,v//2),2)}, v142 offset:{v*512}",
                      f"ds_read_b64_tr_b16 {vr(KW(b,v//2)+2,2)}, v143 offset:{v*512}"]
            gs.append(g)
        if kind != "none":
            gs[0] = ["s_lshl_b32 s11, s68, 11", "v_add_u32 v142, s11, v140", "v_add_u32 v143, s11, v141",
                     "s_add_u32 s68, s68, 1", "s_and_b32 s68, s68, 7"] + gs[0]
        return gs
    def stats_instrs(x):
        L = []
        for r in range(4):
            lo, hi = 136 + 2*(r & 1), 137 + 2*(r & 1)
            L += [f"v_lshlrev_b32 v{lo}, 16, v{x+r}", f"v_and_b32 v{hi}, 0xffff0000, v{x+r}",
                  f"v_add_f32 v132, v132, v{lo}", f"v_add_f32 v133, v133, v{hi}",
                  f"v_fma_f32 v134, v{lo}, v{lo}, v134", f"v_fma_f32 v135, v{hi}, v{hi}, v135"]
        return L
    Ljoin = a.newlabel("Q_join"); Lk = {k: a.newlabel("Q_" + k) for k in ("none", "main", "cs")}
    for kind in ("none",):
        a.label(Lk[kind])
        extra = 0 if kind == "none" else 8
        a(f"s_waitcnt vmcnt({4*(NST-1)+NTA})"); a("s_barrier")
        stamp(a, 1)
        for g in read_groups(0, kind):
            for x in g: a(x)
        for c in range(8):
            b = c & 1
            fill = [[] for _ in range(4)]
            if c + 1 < 8:
                issued = min(c + NST - 1, 7)
                a(f"s_waitcnt vmcnt({4*(issued-(c+1)) + (NTA if c + 1 < NST else 0)}) lgkmcnt(0)")
                a("s_barrier")
                rg = read_groups(c+1, kind)
                dg = dma_groups(c % NST) if c + NST < 8 else [[], [], [], []]
                fill = [rg[k] + dg[k] for k in range(4)]
            else:
                a("s_waitcnt lgkmcnt(0)")
            for v in range(4):
                x, w = FR(b, v), FR(b, v) + 4
                st_ = []
                if kind == "none" and v % 2 == 0 and OWN_STATS: st_ = stats_instrs(x)
                if kind == "main" and v == 0: st_ = stats_instrs(x)
                if kind == "cs" and v == 2: st_ = stats_instrs(XE(b))
                a(f"v_mfma_f32_32x32x16_bf16 {vr(ACC,16)}, {vr(w,4)}, {vr(x,4)}, {vr(ACC,16)}")
                for i_ in st_[0:6]: a(i_)
                for i_ in fill[v][:len(fill[v])//2]: a(i_)
                a(f"v_mfma_f32_32x32x16_bf16 {vr(CSQ,16)}, {vr(w,4)}, v[128:131], {vr(CSQ,16)}")
                for i_ in st_[6:12]: a(i_)
                for i_ in fill[v][len(fill[v])//2:]: a(i_)
                if kind != "none" and v % 2 == 0:
                    bop = vr(x,4) if kind == "main" else "v[128:131]"
                    a(f"v_mfma_f32_32x32x16_bf16 {vr(TK,16)}, {vr(KW(b,v//2),4)}, {bop}, {vr(TK,16)}")
                for i_ in st_[12:]: a(i_)
        if kind != "none": a(f"s_branch {Ljoin}")
    a.label(Ljoin)
    stamp(a, 2)
    if A_EXIT == 1: a("s_branch K_flush")
    a(f"s_setprio {PRIO_A1}")
    CONST = 65536
    a("v_add_f32 v132, v132, v133"); a("v_add_f32 v134, v134, v135")
    a("v_lshlrev_b32 v2, 2, v1"); a("s_lshl_b32 s11, s3, 9"); a("s_add_u32 s11, s11, 73728"); a("v_add_u32 v2, s11, v2")
    a("ds_write_b32 v2, v132"); a("ds_write_b32 v2, v134 offset:256")
    Lc = a.newlabel("A_c")
    a("s_cmp_lg_u32 s3, 3"); a(f"s_cbranch_scc1 {Lc}")
    a("v_lshrrev_b32 v5, 3, v1"); a("v_lshlrev_b32 v5, 9, v5"); a("v_and_b32 v8, 7, v1"); a("v_lshl_add_u32 v5, v8, 2, v5")
    a(f"v_add_u32 v5, {CONST}, v5")
    a("v_cmp_gt_u32 vcc, 4, v8"); a(f"v_mov_b32 v9, {ONES_BF16:#x}"); a("s_nop 0"); a("v_cndmask_b32 v9, 0, v9, vcc")
    a("ds_write_b32 v5, v9")
    a.label(Lc)
    if OWN_STATS:
        a("s_waitcnt lgkmcnt(0)"); a("s_barrier")
        a("v_lshlrev_b32 v2, 2, v6"); a("s_lshl_b32 s11, s7, 10"); a("s_add_u32 s11, s11, 73728"); a("v_add_u32 v2, s11, v2")
        a("ds_read2_b32 v[136:137], v2 offset0:0 offset1:32"); a("ds_read2_b32 v[138:139], v2 offset0:128 offset1:160")
        a("ds_read2_b32 v[140:141], v2 offset0:64 offset1:96"); a("ds_read2_b32 v[142:143], v2 offset0:192 offset1:224")
        a("s_waitcnt lgkmcnt(0)")
        a("v_add_f32 v136, v136, v137"); a("v_add_f32 v138, v138, v139"); a("v_add_f32 v140, v140, v141"); a("v_add_f32 v142, v142, v143")
        a("v_add_f32 v136, v136, v138"); a("v_add_f32 v140, v140, v142")
        a(f"v_mul_f32 v136, {1.0/512.0!r}, v136"); a(f"v_mul_f32 v140, {1.0/512.0!r}, v140")
        a("v_fma_f32 v140, -v136, v136, v140"); a("v_max_f32 v140, 0, v140"); a("v_add_f32 v140, 0x3727c5ac, v140")
        a("v_rsq_f32 v186, v140"); a("s_nop 0")
        a("v_mul_f32 v187, v136, v186"); a("v_sub_f32 v187, 0, v187")
    QA, QB = 144, 148
    CA, CB, SA, SB, OA, OB = 48, 64, 80, 96, 112, 128
    KF = [32, 36]; VF = [[152, 156], [160, 164]]; IDX = 184
    STG = [192, 224]
    def q_finalize():
        a(f"v_mul_f32 v186, {QSCALE!r}, v186"); a(f"v_mul_f32 v187, {QSCALE!r}, v187")
        for r in range(16): a(f"v_mul_f32 v{CSQ+r}, v187, v{CSQ+r}")
        for r in range(16): a(f"v_fma_f32 v{ACC+r}, v{ACC+r}, v186, v{CSQ+r}")
        for hd in range(2):
            for j in range(4): a(f"v_cvt_pk_bf16_f32 v{QA+4*hd+j}, v{ACC+8*hd+2*j}, v{ACC+8*hd+2*j+1}")
        a(f"v_mul_f32 v186, v{ACC}, v{ACC}"); a(f"v_mul_f32 v187, v{ACC+8}, v{ACC+8}")
        for j in range(1, 8):
            a(f"v_fmac_f32 v186, v{ACC+j}, v{ACC+j}"); a(f"v_fmac_f32 v187, v{ACC+8+j}, v{ACC+8+j}")
        half_sum(a, 186, 189); half_sum(a, 187, 190)
        a(f"v_mul_f32 v186, {1.015625**2!r}, v186"); a(f"v_mul_f32 v187, {1.015625**2!r}, v187")
    if OWN_STATS: q_finalize()
    a(f"v_mov_b32 v{IDX}, 0xdddddddd")
    for i in range(16):
        a(f"v_mov_b32 v{OA+i}, 0"); a(f"v_mov_b32 v{OB+i}, 0"); a(f"v_mov_b32 v{SB+i}, 0")
    for r in range(4): a(f"v_mov_b32 v{VF[1][1]+r}, 0")
    a("v_lshlrev_b32 v3, 4, v1"); a("s_lshl_b32 s12, s3, 10")
    a("v_add_u32 v8, s12, v3")
    a("v_and_b32 v5, 15, v1"); a("v_lshl_add_u32 v5, v7, 4, v5"); a("v_lshlrev_b32 v5, 4, v5"); a("v_add_u32 v5, 16384, v5")
    a("v_and_b32 v11, 27, v6"); a("v_cmp_eq_u32 vcc, 16, v11")
    a(f"v_mov_b32 v9, {CONST+16}"); a(f"v_mov_b32 v10, {CONST}"); a("v_cndmask_b32 v9, v9, v10, vcc")
    a("v_cmp_gt_u32 vcc, 16, v6"); a("s_nop 1")
    a("v_cndmask_b32 v5, v9, v5, vcc"); a("v_cndmask_b32 v9, 0, 1, vcc")
    a("v_lshlrev_b32 v11, 2, v1")
    def stage_load(soff_expr, st):
        for q in range(4):
            a(f"s_add_u32 s13, {soff_expr}, {q*4096}")
            a(f"buffer_load_dwordx4 {vr(STG[st]+8*q,4)}, v3, s[60:63], s13 offen {SC}")
            a(f"buffer_load_dwordx4 {vr(STG[st]+8*q+4,4)}, v3, s[64:67], s13 offen {SC}")
    def stage_write(st, slot):
        for q in range(4):
            a(f"ds_write_b128 v8, {vr(STG[st]+8*q,4)} offset:{slot*32768 + q*4096}")
            a(f"ds_write_b128 v8, {vr(STG[st]+8*q+4,4)} offset:{slot*32768 + 16384 + q*4096}")
    Lw = a.newlabel("WGW")
    a("s_cmp_lg_u32 s3, 0"); a(f"s_cbranch_scc1 {Lw}")
    a("v_mov_b32 v190, v3")
    get_tag(a)
    a("s_and_b32 s14, s2, 15"); a("s_lshl_b32 s14, s14, 8"); a(f"s_add_u32 s14, s14, {WS_FKV}")
    poll(a, "s14", 32)
    a("v_mov_b32 v3, v190")
    a.label(Lw)
    a("s_barrier")
    stamp(a, 6)
    a(f"s_mov_b32 s14, {WS_KM}"); a(f"buffer_load_dword v188, v11, s[52:55], s14 offen {SC}")
    if not OWN_STATS:
        a("s_lshl_b32 s13, s4, 6"); a("s_lshl_b32 s14, s7, 5"); a("s_add_u32 s13, s13, s14")
        a("v_add_u32 v2, s13, v6"); a("v_lshlrev_b32 v2, 2, v2")
        a(f"s_mov_b32 s14, {WS_ST}"); a(f"buffer_load_dword v186, v2, s[52:55], s14 offen {SC}")
        a(f"s_mov_b32 s14, {WS_ST+8192}"); a(f"buffer_load_dword v187, v2, s[52:55], s14 offen {SC}")
    stage_load("s12", 0)
    a("s_add_u32 s15, s12, 16384")
    stage_load("s15", 1)
    a("s_waitcnt vmcnt(16)")
    stamp(a, 7)
    dpp_wave_max(a, 188)
    if not OWN_STATS: q_finalize()
    a("s_nop 1")
    a("v_readlane_b32 s14, v188, 63")
    a("s_nop 3")
    a("v_mul_f32 v186, s14, v186"); a("v_mul_f32 v187, s14, v187")
    a("v_sqrt_f32 v186, v186"); a("v_sqrt_f32 v187, v187"); a("s_nop 0")
    a("v_max_f32 v189, v186, v187")
    a(f"v_cmp_nge_f32 vcc, {M_THRESH!r}, v189")
    Lfast = a.newlabel("A_fast")
    a(f"s_cbranch_vccz {Lfast}")
    a.c("fallback: true row max")
    a("v_mov_b32 v186, 0xff800000"); a("v_mov_b32 v187, 0xff800000"); a("s_mov_b32 s14, 0")
    Lmx = a.newlabel("A_mx"); a.label(Lmx)
    a(f"buffer_load_dwordx4 {vr(KF[0],4)}, v3, s[60:63], s14 offen {SC}")
    a("s_waitcnt vmcnt(0)")
    a(f"v_mfma_f32_32x32x16_bf16 {vr(SA,16)}, {vr(KF[0],4)}, {vr(QA,4)}, 0")
    a(f"v_mfma_f32_32x32x16_bf16 {vr(CB,16)}, {vr(KF[0],4)}, {vr(QB,4)}, 0")
    a("s_nop 15"); a("s_nop 7")
    for i in range(0, 16, 2):
        a(f"v_max3_f32 v186, v{SA+i}, v{SA+i+1}, v186"); a(f"v_max3_f32 v187, v{CB+i}, v{CB+i+1}, v187")
    a("s_add_u32 s14, s14, 1024"); a("s_cmp_lt_u32 s14, 65536"); a(f"s_cbranch_scc1 {Lmx}")
    half_sum(a, 186, 189, "v_max_f32"); half_sum(a, 187, 189, "v_max_f32")
    a.label(Lfast)
    for i in range(16):
        a(f"v_sub_f32 v{CA+i}, 0, v186"); a(f"v_sub_f32 v{CB+i}, 0, v187")
    a("s_waitcnt vmcnt(8)")
    stage_write(0, 0)
    a("s_waitcnt lgkmcnt(0)")
    a("s_barrier")
    a(f"s_setprio {PRIO_A2}")
    NTILE = 4*ATT_ITERS
    def ldsoff(t): return ((t >> 4) & 1)*32768 + (t & 15)*1024
    def lds_reads(t):
        bf = t & 1
        va = 12 + ((t >> 2) & 1)
        a(f"ds_read_b128 {vr(KF[bf],4)}, v3 offset:{ldsoff(t)}")
        a(f"ds_read_b128 {vr(VF[bf][0],4)}, v{va} offset:{(t & 3)*1024}")
        a(f"ds_read_b128 {vr(VF[bf][1],4)}, v{va} offset:{(t & 3)*1024+512}")
    def vaddr(body):
        a(f"s_mov_b32 s71, {ldsoff(4*body)}")
        a(f"v_mad_u32_u24 v{12 + (body & 1)}, v9, s71, v5")
    vaddr(0)
    lds_reads(0)
    a("s_waitcnt lgkmcnt(0)")
    a(f"v_mfma_f32_32x32x16_bf16 {vr(SA,16)}, {vr(KF[0],4)}, {vr(QA,4)}, {vr(CA,16)}")
    vaddr(1)
    a("s_nop 7")
    stamp(a, 3)
    a("s_nop 7")
    for t in range(NTILE):
        bf = t & 1; nb = bf ^ 1
        if TPROF and t in (8, 16, 24, 32, 40, 48): stamp(a, 8 + (t // 8) - 1)
        for i in range(32):
            if i == 1 and t in (12, 16, 32, 28, 44) and not D_NOBAR: a("s_barrier")
            if t == 1 and i == 9: a("s_waitcnt vmcnt(0)")
            if t in (1, 2, 3, 4) and i in (10, 16):
                q = t - 1; k = 0 if i == 10 else 1
                a(f"ds_write_b128 v8, {vr(STG[1]+8*q+4*k,4)} offset:{1*32768 + k*16384 + q*4096}")
            if i == 2:
                a(f"v_smfmac_f32_32x32x32_bf16 {vr(OB,16)}, {vr(VF[nb][1],4)}, {vr(SB+8,8)}, v{IDX}")
            if i == 5 and not D_NOREAD: lds_reads((t+1) % 64)
            if i == 9 and (t & 3) == 0 and t > 0: vaddr(t//4 + 1)
            if t in (20, 36) and i == 9: a("s_waitcnt vmcnt(0)")
            if t in (20, 21, 22, 23) and i in (10, 16):
                q = t - 20; k = 0 if i == 10 else 1
                a(f"ds_write_b128 v8, {vr(STG[0]+8*q+4*k,4)} offset:{0*32768 + k*16384 + q*4096}")
            if t in (36, 37, 38, 39) and i in (10, 16):
                q = t - 36; k = 0 if i == 10 else 1
                a(f"ds_write_b128 v8, {vr(STG[1]+8*q+4*k,4)} offset:{1*32768 + k*16384 + q*4096}")
            if t in (5, 6, 7, 8) and i in (12, 19):
                q = t - 5; k = 0 if i == 12 else 1
                a(f"s_add_u32 s13, s12, {2*16384 + q*4096}")
                a(f"buffer_load_dwordx4 {vr(STG[0]+8*q+4*k,4)}, v3, s[{60+4*k}:{63+4*k}], s13 offen {SC}")
            if t in (9, 10, 11, 12) and i in (12, 19):
                q = t - 9; k = 0 if i == 12 else 1
                a(f"s_add_u32 s13, s12, {3*16384 + q*4096}")
                a(f"buffer_load_dwordx4 {vr(STG[1]+8*q+4*k,4)}, v3, s[{60+4*k}:{63+4*k}], s13 offen {SC}")
            if i == 7:
                a(f"v_mfma_f32_32x32x16_bf16 {vr(SB,16)}, {vr(KF[bf],4)}, {vr(QB,4)}, {vr(CB,16)}")
            if i == 12:
                a(f"v_smfmac_f32_32x32x32_bf16 {vr(OA,16)}, {vr(VF[bf][0],4)}, {vr(SA,8)}, v{IDX}")
            if i == 18:
                a(f"v_smfmac_f32_32x32x32_bf16 {vr(OA,16)}, {vr(VF[bf][1],4)}, {vr(SA+8,8)}, v{IDX}")
            if i == 22 and not D_NOWAIT:
                a("s_waitcnt lgkmcnt(0)")
            if i == 23:
                a(f"v_mfma_f32_32x32x16_bf16 {vr(SA,16)}, {vr(KF[nb],4)}, {vr(QA,4)}, {vr(CA,16)}")
            if i == 28:
                a(f"v_smfmac_f32_32x32x32_bf16 {vr(OB,16)}, {vr(VF[bf][0],4)}, {vr(SB,8)}, v{IDX}")
            reg = SA + i if i < 16 else SB + i - 16
            a(f"v_exp_f32 v{reg}, v{reg}")
    a("s_nop 1")
    a(f"v_smfmac_f32_32x32x32_bf16 {vr(OB,16)}, {vr(VF[1][1],4)}, {vr(SB+8,8)}, v{IDX}")
    stamp(a, 4)
    a("s_nop 15"); a("s_nop 7")
    a(f"v_rcp_f32 v186, v{OA+8}"); a(f"v_rcp_f32 v187, v{OB+8}"); a("s_nop 0")
    for j in range(8):
        a(f"v_mul_f32 v{OA+j}, v{OA+j}, v186"); a(f"v_mul_f32 v{OB+j}, v{OB+j}, v187")
    for j in range(4):
        a(f"v_cvt_pk_bf16_f32 v{SA+j}, v{OA+2*j}, v{OA+2*j+1}"); a(f"v_cvt_pk_bf16_f32 v{SA+4+j}, v{OB+2*j}, v{OB+2*j+1}")
    a("s_lshl_b32 s13, s4, 1"); a("s_add_u32 s13, s13, s7"); a("s_lshl_b32 s13, s13, 5")
    a("s_lshl_b32 s14, s5, 2"); a("s_add_u32 s13, s13, s14"); a("s_lshl_b32 s14, s6, 1"); a("s_add_u32 s13, s13, s14"); a("s_lshl_b32 s13, s13, 10")
    a(f"buffer_store_dwordx4 {vr(SA,4)}, v3, s[56:59], s13 offen {SC}")
    a(f"buffer_store_dwordx4 {vr(SA+4,4)}, v3, s[56:59], s13 offen offset:1024 {SC}")
    a("s_lshl_b32 s12, s4, 7"); a("s_lshl_b32 s13, s5, 2"); a("s_add_u32 s12, s12, s13"); a(f"s_add_u32 s12, s12, {WS_FO}")
    signal(a, "s12", 1, 0, have_tag=True)
    stamp(a, 5)

GK1 = -2.0 * 0.7978845608028654 * 1.4426950408889634
GK2 = GK1 * 0.044715
def role_gu(a):
    a.c("==== GU role ====")
    stamp(a, 0)
    srd(a, 40, S_X, 2048*1024); srd(a, 44, S_WG, 512*3584); srd(a, 48, S_WU, 512*3584)
    a("s_and_b32 s6, s3, 1"); a("s_lshr_b32 s7, s3, 1")
    STG = 24576
    a("v_lshrrev_b32 v3, 2, v1"); a("v_lshlrev_b32 v3, 10, v3"); a("v_and_b32 v4, 3, v1"); a("v_lshrrev_b32 v5, 4, v1")
    a("v_xor_b32 v2, v4, v5"); a("v_lshl_add_u32 v8, v2, 4, v3")
    a("v_mul_u32_u24 v9, 3584, v5"); a("v_bfe_u32 v3, v1, 2, 2"); a("v_xor_b32 v3, v3, v5")
    a("v_lshl_add_u32 v9, v3, 6, v9"); a("v_lshl_add_u32 v9, v4, 4, v9")
    a("s_lshl_b32 s8, s4, 7"); a("s_lshl_b32 s9, s3, 5"); a("s_add_u32 s8, s8, s9"); a("s_lshl_b32 s8, s8, 10")
    a(f"s_mul_i32 s9, s3, {8*3584}"); a("s_lshl_b32 s10, s5, 8"); a("s_add_u32 s9, s9, s10"); a("s_lshl_b32 s10, s3, 11")
    a("s_and_b32 s66, s4, 3"); a("s_lshl_b32 s66, s66, 2")
    def dma_groups(st):
        pre = ["s_lshl_b32 s12, s66, 6", "s_add_u32 s12, s12, s8", f"s_mul_i32 s13, s66, {32*3584}", "s_add_u32 s13, s13, s9",
               "s_add_u32 s66, s66, 1", "s_and_b32 s66, s66, 15"]
        gs = []
        for i in range(2):
            gs.append([f"s_add_u32 m0, s10, {st*STG + i*1024}", f"s_add_u32 s14, s12, {i*16*1024}", "buffer_load_dwordx4 v8, s[40:43], s14 offen lds"])
        for g in range(2):
            for i in range(2):
                gs.append([f"s_add_u32 m0, s10, {st*STG + 8192 + g*8192 + i*1024}", f"s_add_u32 s14, s13, {i*4*3584}",
                           f"buffer_load_dwordx4 v9, s[{44+4*g}:{47+4*g}], s14 offen lds"])
        gs[0] = pre + gs[0]
        return gs
    ACC = 128
    if GU_DELAY: a(f"s_sleep {GU_DELAY}")
    a("s_setprio 3")
    for st in range(3):
        for g in dma_groups(st):
            for x in g: a(x)
    for i in range(128): a(f"v_mov_b32 v{ACC+i}, 0")
    NT = 0
    if TOUCH:
        a("v_lshrrev_b32 v2, 1, v1"); a("v_mul_u32_u24 v2, 3584, v2"); a("v_and_b32 v3, 1, v1"); a("v_lshl_add_u32 v2, v3, 7, v2")
        a("s_and_b32 s14, s4, 3"); a("s_lshl_b32 s14, s14, 2"); a("s_add_u32 s14, s14, s3"); a(f"s_mul_i32 s14, s14, {32*3584}")
        a("s_lshl_b32 s15, s5, 8"); a("s_add_u32 s14, s14, s15")
        a("buffer_load_dword v60, v2, s[44:47], s14 offen"); a("buffer_load_dword v61, v2, s[48:51], s14 offen")
        a("v_lshrrev_b32 v2, 3, v1"); a("v_lshlrev_b32 v2, 10, v2"); a("v_and_b32 v3, 7, v1"); a("v_lshl_add_u32 v2, v3, 7, v2")
        a("s_cmp_ge_u32 s5, 7"); a("s_cselect_b32 s14, 7, 0"); a("s_sub_u32 s14, s5, s14")
        a("s_cmp_ge_u32 s3, 2"); a("s_cselect_b32 s14, 7, s14"); a("s_lshl_b32 s14, s14, 4")
        a("s_and_b32 s15, s3, 1"); a("s_lshl_b32 s15, s15, 3"); a("s_add_u32 s14, s14, s15")
        a("s_lshl_b32 s15, s4, 7"); a("s_add_u32 s14, s14, s15"); a("s_lshl_b32 s14, s14, 10")
        a("buffer_load_dword v62, v2, s[40:43], s14 offen")
        NT = 3
    srd(a, 52, S_WS, WS_SMALL_END); srd(a, 56, S_WS, HF_BYTES, WS_HF)
    a("v_and_b32 v6, 31, v1"); a("v_lshrrev_b32 v7, 5, v1")
    a("v_bfe_u32 v10, v1, 2, 2"); a("v_xor_b32 v10, v10, v7"); a("v_lshlrev_b32 v10, 4, v10"); a("v_lshl_add_u32 v10, v6, 6, v10")
    a("s_lshl_b32 s14, s6, 12"); a("v_add_u32 v10, s14, v10"); a("v_xor_b32 v11, 32, v10")
    a("v_bfe_u32 v2, v1, 2, 2"); a("v_lshl_add_u32 v12, v7, 3, v2"); a("v_lshlrev_b32 v12, 8, v12")
    a("s_lshl_b32 s14, s7, 1"); a("v_xor_b32 v2, s14, v2"); a("v_lshl_add_u32 v12, v2, 6, v12")
    a("v_bfe_u32 v2, v1, 4, 1"); a("v_lshl_add_u32 v12, v2, 5, v12"); a("v_and_b32 v2, 3, v1"); a("v_lshl_add_u32 v12, v2, 3, v12")
    a("v_add_u32 v12, 8192, v12"); a("v_xor_b32 v13, 64, v12")
    ACC = 128
    def acc(mt, ft, g): return ACC + ((mt*2+ft)*2+g)*16
    XF = lambda b, mt: 64 + (b*2+mt)*4
    WF = lambda b, ft, g: 80 + ((b*2+ft)*2+g)*4
    CSA = lambda ft: 20 + 16*ft
    for i in range(32): a(f"v_mov_b32 v{20+i}, 0")
    for i in range(4): a(f"v_mov_b32 v{52+i}, {ONES_BF16:#x}")
    for i in range(4): a(f"v_add_u32 v{14+i}, {2*STG}, v{10+i}")
    def read_list(st, sstep, b):
        base = 14 if st == 2 else 10
        so = 0 if st == 2 else st*STG
        L = []
        for mt in range(2): L.append(f"ds_read_b128 {vr(XF(b,mt),4)}, v{base+sstep} offset:{so + mt*2048}")
        for ft in range(2):
            for g in range(2):
                L.append(f"ds_read_b64_tr_b16 {vr(WF(b,ft,g),2)}, v{base+2+ft} offset:{so + g*8192 + (16*sstep)*256}")
                L.append(f"ds_read_b64_tr_b16 {vr(WF(b,ft,g)+2,2)}, v{base+2+ft} offset:{so + g*8192 + (16*sstep+4)*256}")
        return L if not GU_NOREAD else ["s_nop 0"]*10
    def mfma_list(b, cs=None):
        L = [f"v_mfma_f32_32x32x16_bf16 {vr(acc(mt,ft,g),16)}, {vr(WF(b,ft,g),4)}, {vr(XF(b,mt),4)}, {vr(acc(mt,ft,g),16)}"
             for ft in range(2) for g in range(2) for mt in range(2)]
        if cs is not None:
            L += [f"v_mfma_f32_32x32x16_bf16 {vr(CSA(g),16)}, {vr(WF(b,cs,g),4)}, v[52:55], {vr(CSA(g),16)}" for g in range(2)]
        return L
    a(f"s_waitcnt vmcnt({12+NT})"); a("s_barrier")
    a(f"s_setprio {PRIO_G}")
    stamp(a, 4)
    for x in read_list(0, 0, 0): a(x)
    def emit_chunks(c_lo, c_hi, cs, pend):
        for c in range(c_lo, c_hi):
            st = c % 3
            a("s_waitcnt lgkmcnt(0)")
            rl = read_list(st, 1, 1)
            fill = [rl[2*k:2*k+2] for k in range(5)] + pend
            pend = []
            interleave(a, mfma_list(0, cs), fill)
            if c < 15:
                vm = 6 if c + 2 <= 15 else 0
                if c == 0: vm += NT
                a(f"s_waitcnt vmcnt({vm}) lgkmcnt(0)")
                if not GU_NOBAR: a("s_barrier")
                rl = read_list((c+1) % 3, 0, 0)
                fill = [rl[2*k:2*k+2] for k in range(5)]
                if c + 3 <= 15 and not GU_NODMA:
                    dg = dma_groups(st)
                    fill += dg[:3]; pend = dg[3:]
                interleave(a, mfma_list(1, cs), fill)
            else:
                a("s_waitcnt lgkmcnt(0)")
                interleave(a, mfma_list(1, cs), [])
        return pend
    Lw1 = a.newlabel("GU_wm1"); Lj = a.newlabel("GU_j")
    a("s_cmp_eq_u32 s6, 1"); a(f"s_cbranch_scc1 {Lw1}")
    pend = emit_chunks(0, 4, 0, [])
    a(f"s_branch {Lj}")
    a.label(Lw1)
    pend = emit_chunks(0, 4, 1, [])
    a.label(Lj)
    tag_prefetch(a, 56)
    a("v_lshrrev_b32 v58, 5, v1"); a("v_lshlrev_b32 v58, 4, v58")
    a(f"s_mul_i32 s67, s4, {3584*4}"); a("s_lshl_b32 s68, s5, 9"); a("s_add_u32 s67, s67, s68"); a("s_lshl_b32 s68, s7, 8"); a("s_add_u32 s67, s67, s68")
    a("s_lshl_b32 s68, s6, 7"); a("s_add_u32 s67, s67, s68"); a(f"s_add_u32 s67, s67, {WS_CSP}"); a(f"s_add_u32 s68, s67, {1792*4}")
    set_exec(a, 0x0000000100000001)
    for g in range(2):
        for q in range(4):
            a(f"buffer_store_dwordx4 {vr(CSA(g)+4*q,4)}, v58, s[52:55], s{67+g} offen offset:{32*q} {SC}")
    a("s_mov_b64 exec, -1")
    NCS = 9
    pend = emit_chunks(4, 5, None, pend)
    pend = emit_chunks(5, 7, None, pend)
    Lf = a.newlabel("GU_cf")
    a("s_cmp_lg_u32 s3, 0"); a(f"s_cbranch_scc1 {Lf}")
    tag_finish(a, 56)
    a("s_lshr_b32 s67, s4, 2"); a("s_mul_i32 s67, s67, 14"); a("s_add_u32 s67, s67, s5"); a("s_lshl_b32 s67, s67, 6")
    a("s_and_b32 s68, s4, 3"); a("s_lshl_b32 s68, s68, 2"); a("s_add_u32 s67, s67, s68"); a(f"s_add_u32 s67, s67, {WS_FCS}")
    a("v_mov_b32 v58, 0"); a("v_mov_b32 v59, s74")
    set_exec(a, 1)
    a("buffer_store_dword v59, v58, s[52:55], s67 offen sc0 sc1")
    a("s_mov_b64 exec, -1")
    a.label(Lf)
    pend = emit_chunks(7, 16, None, pend)
    stamp(a, 1)
    a(f"s_setprio {PRIO_GE}")
    def pre(a):
        a("s_lshr_b32 s13, s4, 2"); a("s_mul_i32 s13, s13, 14"); a("s_add_u32 s13, s13, s5"); a("s_lshl_b32 s13, s13, 6"); a(f"s_add_u32 s13, s13, {WS_FCS}")
        a("s_and_b32 s12, s2, 15"); a("s_lshl_b32 s12, s12, 8"); a(f"s_add_u32 s12, s12, {WS_FKV}")
    wg_wait(a, [("s12", 32), ("s13", 4)], have_tag=True, pre=pre)
    a("s_lshl_b32 s8, s4, 7"); a("s_lshl_b32 s9, s6, 6"); a("s_add_u32 s8, s8, s9")
    a("v_add_u32 v2, s8, v6"); a("v_lshlrev_b32 v2, 2, v2")
    a(f"s_mov_b32 s9, {WS_ST}"); a(f"s_mov_b32 s10, {WS_ST+8192}")
    for mt in range(2):
        a(f"buffer_load_dword v{8+mt}, v2, s[52:55], s9 offen offset:{mt*128} {SC}")
        a(f"buffer_load_dword v{10+mt}, v2, s[52:55], s10 offen offset:{mt*128} {SC}")
    a("s_and_b32 s8, s4, 12"); a(f"s_mul_i32 s8, s8, {3584*4}"); a("s_lshl_b32 s9, s5, 9"); a("s_add_u32 s8, s8, s9"); a("s_lshl_b32 s9, s7, 8"); a("s_add_u32 s8, s8, s9")
    a(f"s_add_u32 s8, s8, {WS_CSP}")
    a(f"v_mul_u32_u24 v2, {1792*4}, v7"); a("v_lshl_add_u32 v2, v6, 3, v2")
    for j in range(4):
        a(f"s_add_u32 s9, s8, {j*3584*4}")
        a(f"buffer_load_dwordx2 {vr(16+2*j,2)}, v2, s[52:55], s9 offen {SC}")
    CS = lambda ft, g: 64 + (ft*2+g)*16
    a("s_lshl_b32 s9, s3, 9"); a("v_lshl_add_u32 v3, v1, 3, s9"); a("v_lshl_add_u32 v4, v7, 4, s9")
    a("s_waitcnt vmcnt(0)")
    a("v_add_f32 v16, v16, v18"); a("v_add_f32 v17, v17, v19"); a("v_add_f32 v20, v20, v22"); a("v_add_f32 v21, v21, v23")
    a("v_add_f32 v16, v16, v20"); a("v_add_f32 v17, v17, v21")
    a("ds_write_b64 v3, v[16:17]")
    a("s_waitcnt lgkmcnt(0)")
    for ft in range(2):
        for g in range(2):
            for q in range(4):
                a(f"ds_read_b128 {vr(CS(ft,g)+4*q,4)}, v4 offset:{g*256 + ft*128 + q*32}")
    a("v_lshlrev_b32 v3, 4, v1")
    a("s_lshl_b32 s8, s4, 2"); a("s_lshl_b32 s9, s6, 1"); a("s_add_u32 s8, s8, s9"); a("s_mul_i32 s8, s8, 112")
    a("s_lshl_b32 s9, s5, 3"); a("s_add_u32 s8, s8, s9"); a("s_lshl_b32 s9, s7, 2"); a("s_add_u32 s8, s8, s9"); a("s_lshl_b32 s8, s8, 10")
    a(f"v_mov_b32 v12, {GK1!r}"); a(f"v_mov_b32 v13, {GK2!r}")
    a("s_waitcnt vmcnt(0) lgkmcnt(0)")
    stamp(a, 2)
    T = 16
    for mt in range(2):
        a(f"v_mov_b32 v{40+4*mt}, v{8+mt}"); a(f"v_mov_b32 v{41+4*mt}, v{8+mt}"); a(f"v_mov_b32 v{42+4*mt}, v{10+mt}"); a(f"v_mov_b32 v{43+4*mt}, v{10+mt}")
    a("v_mov_b32 v48, v12"); a("v_mov_b32 v49, v12"); a("v_mov_b32 v50, v13"); a("v_mov_b32 v51, v13"); a("v_mov_b32 v52, 1.0"); a("v_mov_b32 v53, 1.0")
    P2 = lambda r: f"v[{r}:{r+1}]"
    for mt in range(2):
        A2, B2 = P2(40+4*mt), P2(42+4*mt)
        for ft in range(2):
            G, U = acc(mt,ft,0), acc(mt,ft,1)
            R = range(0, 16, 2)
            tt = lambda r: T + r
            t2 = lambda r: 54 + (r // 2 % 4) * 2
            for r in R: a(f"v_pk_mul_f32 {P2(tt(r))}, {B2}, {P2(CS(ft,0)+r)}")
            for r in R: a(f"v_pk_fma_f32 {P2(G+r)}, {P2(G+r)}, {A2}, {P2(tt(r))}")
            for r in R: a(f"v_pk_mul_f32 {P2(tt(r))}, {B2}, {P2(CS(ft,1)+r)}")
            for r in R: a(f"v_pk_fma_f32 {P2(U+r)}, {P2(U+r)}, {A2}, {P2(tt(r))}")
            for r in R: a(f"v_pk_mul_f32 {P2(tt(r))}, {P2(G+r)}, {P2(G+r)}")
            for r in R: a(f"v_pk_fma_f32 {P2(tt(r))}, {P2(tt(r))}, v[50:51], v[48:49]")
            for r in R: a(f"v_pk_mul_f32 {P2(tt(r))}, {P2(tt(r))}, {P2(G+r)}")
            for r in range(16): a(f"v_exp_f32 v{T+r}, v{T+r}")
            for r in R: a(f"v_pk_mul_f32 {P2(U+r)}, {P2(U+r)}, {P2(G+r)}")
            for r in R: a(f"v_pk_add_f32 {P2(tt(r))}, {P2(tt(r))}, v[52:53]")
            for r in range(16): a(f"v_rcp_f32 v{T+r}, v{T+r}")
            a("s_nop 0")
            for r in R: a(f"v_pk_mul_f32 {P2(U+r)}, {P2(U+r)}, {P2(tt(r))}")
            for j in range(8): a(f"v_cvt_pk_bf16_f32 v{G+j}, v{U+2*j}, v{U+2*j+1}")
            a(f"s_add_u32 s9, s8, {(mt*112 + 2*ft)*1024}")
            a(f"buffer_store_dwordx4 {vr(G,4)}, v3, s[56:59], s9 offen {SC}")
            a(f"buffer_store_dwordx4 {vr(G+4,4)}, v3, s[56:59], s9 offen offset:1024 {SC}")
    a("s_lshl_b32 s12, s4, 7"); a("s_lshl_b32 s13, s5, 2"); a("s_add_u32 s12, s12, s13"); a(f"s_add_u32 s12, s12, {WS_FH}")
    signal(a, "s12", 1, 0, have_tag=True)
    stamp(a, 3)

def role_fin(a):
    a.c("==== FIN role ====")
    stamp(a, 0)
    srd(a, 40, S_WD, 1792*1024); srd(a, 44, S_WO, 512*1024); srd(a, 48, S_X, 2048*1024); srd(a, 52, S_WS, WS_SMALL_END)
    srd(a, 56, S_WS, HF_BYTES, WS_HF); srd(a, 60, S_WS, OF_BYTES, WS_OF); srd(a, 64, S_OUT, 2048*1024)
    R = 7
    a("v_lshrrev_b32 v3, 3, v1"); a("v_lshlrev_b32 v3, 10, v3"); a("v_bfe_u32 v4, v1, 2, 1"); a("v_bfe_u32 v5, v1, 4, 1")
    a("v_xor_b32 v4, v4, v5"); a("v_lshl_add_u32 v8, v4, 6, v3"); a("v_and_b32 v4, 3, v1"); a("v_lshl_add_u32 v8, v4, 4, v8")
    a("v_lshlrev_b32 v9, 4, v1"); a("s_lshl_b32 s6, s3, 14")
    a("v_lshrrev_b32 v7, 5, v1"); a("v_and_b32 v6, 31, v1"); a("v_bfe_u32 v2, v1, 2, 2")
    a("v_lshl_add_u32 v10, v7, 2, v2"); a("v_lshlrev_b32 v10, 7, v10"); a("v_lshrrev_b32 v2, 1, v2"); a("v_lshl_add_u32 v10, v2, 6, v10")
    a("v_and_b32 v2, 1, v1"); a("v_lshl_add_u32 v10, v2, 5, v10"); a("v_bfe_u32 v2, v1, 4, 1"); a("v_lshl_add_u32 v10, v2, 4, v10")
    a("v_bfe_u32 v2, v1, 1, 1"); a("v_lshl_add_u32 v10, v2, 3, v10"); a("v_add_u32 v10, s6, v10"); a("v_xor_b32 v11, 64, v10")
    ACC = 192
    acc = lambda mt, nt: ACC + (mt*2+nt)*16
    for i in range(64): a(f"v_mov_b32 v{ACC+i}, 0")
    HB = lambda p, mt: 64 + (p*2+mt)*4
    WF = lambda b, nt: 128 + (b*2+nt)*4
    a("s_and_b32 s7, s3, 1"); a("s_lshr_b32 s8, s3, 1"); a("s_lshl_b32 s9, s4, 6"); a("s_lshl_b32 s10, s7, 5"); a("s_add_u32 s9, s9, s10")
    a("v_add_u32 v12, s9, v6"); a("v_lshlrev_b32 v12, 10, v12"); a("v_lshl_add_u32 v12, v7, 5, v12")
    a("s_lshl_b32 s9, s5, 7"); a("s_lshl_b32 s10, s8, 6"); a("s_add_u32 s9, s9, s10"); a("v_add_u32 v12, s9, v12")
    a("buffer_load_dwordx4 v[16:19], v12, s[48:51], 0 offen")
    a("buffer_load_dwordx4 v[20:23], v12, s[48:51], 0 offen offset:16")
    a("s_and_b32 s70, s4, 3"); a("s_mul_i32 s70, s70, 7"); a("s_mul_i32 s71, s5, 7"); a("s_lshr_b32 s71, s71, 1"); a("s_add_u32 s70, s70, s71")
    a("s_cmp_ge_u32 s70, 28"); a("s_cselect_b32 s71, 28, 0"); a("s_sub_u32 s70, s70, s71")
    a("s_mov_b32 s72, s70")
    a("s_lshl_b32 s11, s4, 1"); a("s_mul_i32 s11, s11, 112"); a("s_mul_i32 s12, s3, 28"); a("s_add_u32 s11, s11, s12"); a("s_lshl_b32 s11, s11, 10")
    a("s_lshl_b32 s12, s12, 14"); a("s_lshl_b32 s13, s5, 7"); a("s_add_u32 s12, s12, s13")
    def adv(reg):
        a(f"s_add_u32 s{reg}, s{reg}, 1"); a(f"s_cmp_eq_u32 s{reg}, 28"); a(f"s_cselect_b32 s{reg}, 0, s{reg}")
    def issue_w(slot):
        a("s_lshl_b32 s15, s70, 14"); a("s_add_u32 s15, s15, s12"); adv(70)
        for q in range(2):
            a(f"s_add_u32 m0, s6, {slot*2048 + q*1024}")
            a(f"s_add_u32 s14, s15, {q*8*1024}")
            a("buffer_load_dwordx4 v8, s[40:43], s14 offen lds")
    def issue_h(slot):
        a("s_lshl_b32 s15, s72, 10"); a("s_add_u32 s15, s15, s11"); adv(72)
        for mt in range(2):
            a(f"s_add_u32 s14, s15, {mt*112*1024}")
            a(f"buffer_load_dwordx4 {vr(HB(slot,mt),4)}, v9, s[56:59], s14 offen {SC}")
    def trreads(slot, b):
        for nt in range(2):
            a(f"ds_read_b64_tr_b16 {vr(WF(b,nt),2)}, v{10+nt} offset:{slot*2048}")
            a(f"ds_read_b64_tr_b16 {vr(WF(b,nt)+2,2)}, v{10+nt} offset:{slot*2048 + 8*128}")
    def mfmas(slot, b):
        for nt in range(2):
            for mt in range(2):
                a(f"v_mfma_f32_32x32x16_bf16 {vr(acc(mt,nt),16)}, {vr(WF(b,nt),4)}, {vr(HB(slot,mt),4)}, {vr(acc(mt,nt),16)}")
    for i in range(6): issue_w(i)
    def pre(a):
        a("s_lshr_b32 s14, s4, 1"); a("s_lshl_b32 s14, s14, 7"); a(f"s_add_u32 s14, s14, {WS_FH}")
    wg_wait(a, [("s14", 14)], pre=pre)
    stamp(a, 1)
    for i in range(6): issue_h(i)
    a("s_waitcnt vmcnt(12)")
    trreads(0, 0); trreads(1, 1)
    def grp_w(slot):
        g0 = ["s_lshl_b32 s15, s70, 14", "s_add_u32 s15, s15, s12", "s_add_u32 s70, s70, 1", "s_cmp_eq_u32 s70, 28", "s_cselect_b32 s70, 0, s70"]
        L = []
        for q in range(2):
            L.append([f"s_add_u32 m0, s6, {slot*2048 + q*1024}", f"s_add_u32 s14, s15, {q*8*1024}", "buffer_load_dwordx4 v8, s[40:43], s14 offen lds"])
        L[0] = g0 + L[0]
        return L
    def grp_h(slot):
        g0 = ["s_lshl_b32 s69, s72, 10", "s_add_u32 s69, s69, s11", "s_add_u32 s72, s72, 1", "s_cmp_eq_u32 s72, 28", "s_cselect_b32 s72, 0, s72"]
        L = []
        for mt in range(2):
            L.append([f"s_add_u32 s14, s69, {mt*112*1024}", f"buffer_load_dwordx4 {vr(HB(slot,mt),4)}, v9, s[56:59], s14 offen {SC}"])
        L[0] = g0 + L[0]
        return L
    N = 28
    for i in range(N):
        slot = i % R; b = i % 3
        last = min(i - 1, N - 7)
        if i <= 5: aH = 2*(5-i) + 4*(last+1)
        else: aH = 4*(last - (i-6))
        need = aH
        j = i + 2
        if j < N and j > 5: need = min(need, 2 + 4*(last - (j-6)))
        a(f"s_waitcnt vmcnt({min(need,63)}) lgkmcnt({4 if i+1 < N else 0})")
        mains = [f"v_mfma_f32_32x32x16_bf16 {vr(acc(mt,nt),16)}, {vr(WF(b,nt),4)}, {vr(HB(slot,mt),4)}, {vr(acc(mt,nt),16)}" for nt in range(2) for mt in range(2)]
        fill = []
        tr = []
        if j < N:
            for nt in range(2):
                tr += [f"ds_read_b64_tr_b16 {vr(WF(j%3,nt),2)}, v{10+nt} offset:{(j%R)*2048}", f"ds_read_b64_tr_b16 {vr(WF(j%3,nt)+2,2)}, v{10+nt} offset:{(j%R)*2048 + 8*128}"]
        if i + 6 < N:
            gw = grp_w((i+6) % R); gh = grp_h((i+6) % R)
            fill = [tr + gw[0], gw[1], gh[0], gh[1]]
        else:
            fill = [tr]
        interleave(a, mains, fill)
    stamp(a, 2)
    a("s_barrier")
    a("v_add_u32 v13, s6, v9")
    a("s_nop 7"); a("s_nop 7")
    Ls = [a.newlabel("F_own") for _ in range(4)]
    for tl in range(4):
        a(f"s_cmp_eq_u32 s3, {tl}"); a(f"s_cbranch_scc1 {Ls[tl]}")
        mt, nt = tl & 1, tl >> 1
        for q in range(4): a(f"ds_write_b128 v13, {vr(acc(mt,nt)+4*q,4)} offset:{tl*4096 + q*1024}")
        a.label(Ls[tl])
    Lm = [a.newlabel("F_mv") for _ in range(4)]; Ldone = a.newlabel("F_mvd")
    for tl in range(4):
        a(f"s_cmp_lg_u32 s3, {tl}"); a(f"s_cbranch_scc1 {Lm[tl]}")
        mt, nt = tl & 1, tl >> 1
        for i in range(16): a(f"v_mov_b32 v{24+i}, v{acc(mt,nt)+i}")
        a(f"s_branch {Ldone}")
        a.label(Lm[tl])
    a.label(Ldone)
    for j in range(8):
        a(f"v_lshlrev_b32 v40, 16, v{16+j}"); a(f"v_and_b32 v41, 0xffff0000, v{16+j}")
        a(f"v_add_f32 v{24+2*j}, v{24+2*j}, v40"); a(f"v_add_f32 v{24+2*j+1}, v{24+2*j+1}, v41")
    a("s_lshl_b32 s14, s3, 12"); a("v_add_u32 v13, s14, v9")
    a("s_waitcnt lgkmcnt(0)"); a("s_barrier")
    for k in range(1, 4):
        a(f"s_add_u32 s15, s3, {k}"); a("s_and_b32 s15, s15, 3"); a("s_lshl_b32 s15, s15, 14"); a("v_add_u32 v14, s15, v13")
        for q in range(4): a(f"ds_read_b128 {vr(64+16*(k-1)+4*q,4)}, v14 offset:{q*1024}")
    for k in range(3):
        a(f"s_waitcnt lgkmcnt({4*(2-k)})")
        for i in range(16): a(f"v_add_f32 v{24+i}, v{24+i}, v{64+16*k+i}")
    a("s_barrier")
    a("s_lshl_b32 s12, s3, 17"); a("s_add_u32 s12, s12, s13")
    for i in range(16):
        a(f"s_add_u32 m0, s6, {i*1024}")
        a(f"s_add_u32 s14, s12, {i*8*1024}")
        a("buffer_load_dwordx4 v8, s[44:47], s14 offen lds")
    a("v_subrev_u32 v14, s6, v10"); a("s_lshr_b32 s14, s3, 1"); a("s_lshl_b32 s14, s14, 15"); a("v_add_u32 v14, s14, v14"); a("v_xor_b32 v15, 64, v14")
    for i in range(32): a(f"v_mov_b32 v{192+i}, 0")
    a("s_waitcnt vmcnt(0)")
    a("s_barrier")
    WO = lambda i, nt: 128 + (i*2+nt)*4 if i < 8 else 224 + ((i-8)*2+nt)*4 % 32
    for i in range(8):
        for nt in range(2):
            a(f"ds_read_b64_tr_b16 {vr(128+(i*2+nt)*4,2)}, v{14+nt} offset:{i*2048}")
            a(f"ds_read_b64_tr_b16 {vr(128+(i*2+nt)*4+2,2)}, v{14+nt} offset:{i*2048 + 8*128}")
        if i % 2 == 1: a("s_waitcnt lgkmcnt(0)")
    def wr(i):
        for nt in range(2):
            r = 224 + ((i & 3)*2 + nt)*4
            a(f"ds_read_b64_tr_b16 {vr(r,2)}, v{14+nt} offset:{i*2048}")
            a(f"ds_read_b64_tr_b16 {vr(r+2,2)}, v{14+nt} offset:{i*2048 + 8*128}")
    for i in range(8, 12): wr(i)
    def pre(a):
        a("s_lshl_b32 s14, s4, 7"); a(f"s_add_u32 s14, s14, {WS_FO}")
    wg_wait(a, [("s14", 8)], have_tag=True, pre=pre)
    a(f"s_setprio {PRIO_FT}")
    stamp(a, 5)
    a("s_lshl_b32 s11, s4, 1"); a("s_and_b32 s14, s3, 1"); a("s_add_u32 s11, s11, s14"); a("s_lshl_b32 s11, s11, 15")
    a("s_lshr_b32 s14, s3, 1"); a("s_lshl_b32 s14, s14, 14"); a("s_add_u32 s11, s11, s14")
    OB_ = lambda i: 64 + 4*i
    for i in range(16):
        if i % 4 == 0: a(f"s_add_u32 s14, s11, {i*1024}")
        a(f"buffer_load_dwordx4 {vr(OB_(i),4)}, v9, s[60:63], s14 offen offset:{(i%4)*1024} {SC}")
    for i in range(16):
        a(f"s_waitcnt vmcnt({15-i}) lgkmcnt(0)" if i in (0, 12) else f"s_waitcnt vmcnt({15-i})")
        for nt in range(2):
            w = 128+(i*2+nt)*4 if i < 8 else 224 + ((i & 3)*2 + nt)*4
            a(f"v_mfma_f32_32x32x16_bf16 {vr(192+16*nt,16)}, {vr(w,4)}, {vr(OB_(i),4)}, {vr(192+16*nt,16)}")
        if 8 <= i < 12: wr(i + 4)
    stamp(a, 3)
    a("s_nop 15")
    a("s_lshl_b32 s14, s3, 12"); a("v_add_u32 v13, s14, v9")
    a("s_barrier")
    Lk1 = a.newlabel("F_k1"); Lk2 = a.newlabel("F_k2")
    a("s_cmp_ge_u32 s3, 2"); a(f"s_cbranch_scc1 {Lk1}")
    for q in range(4): a(f"ds_write_b128 v13, {vr(208+4*q,4)} offset:{q*1024}")
    for i in range(16): a(f"v_add_f32 v{24+i}, v{24+i}, v{192+i}")
    a(f"s_branch {Lk2}")
    a.label(Lk1)
    for q in range(4): a(f"ds_write_b128 v13, {vr(192+4*q,4)} offset:{q*1024}")
    for i in range(16): a(f"v_add_f32 v{24+i}, v{24+i}, v{208+i}")
    a.label(Lk2)
    a("s_xor_b32 s14, s3, 2"); a("s_lshl_b32 s14, s14, 12"); a("v_add_u32 v13, s14, v9")
    a("s_waitcnt lgkmcnt(0)"); a("s_barrier")
    for q in range(4): a(f"ds_read_b128 {vr(64+4*q,4)}, v13 offset:{q*1024}")
    a("s_waitcnt lgkmcnt(0)")
    for i in range(16): a(f"v_add_f32 v{24+i}, v{24+i}, v{64+i}")
    for j in range(8): a(f"v_cvt_pk_bf16_f32 v{64+j}, v{24+2*j}, v{24+2*j+1}")
    a(f"buffer_store_dwordx4 v[64:67], v12, s[64:67], 0 offen {OUTFLAGS[OUTF]}")
    a(f"buffer_store_dwordx4 v[68:71], v12, s[64:67], 0 offen offset:16 {OUTFLAGS[OUTF]}")
    stamp(a, 4)

def kd(name, vgpr=256, sgpr=102):
    return f"""
.section .rodata,"a"
.p2align 6
.amdhsa_kernel {name}
  .amdhsa_next_free_vgpr {vgpr}
  .amdhsa_next_free_sgpr {sgpr}
  .amdhsa_accum_offset {vgpr}
  .amdhsa_group_segment_fixed_size 0
  .amdhsa_kernarg_size 96
  .amdhsa_user_sgpr_count 2
  .amdhsa_user_sgpr_kernarg_segment_ptr 1
  .amdhsa_system_sgpr_workgroup_id_x 1
.end_amdhsa_kernel
"""
def khead(name):
    return f""".text
.globl {name}
.p2align 8
.type {name},@function
{name}:
"""
HEADER = open(f"cdna_kernels/{NAME}.s.ref").read().split("; Override")[0]
def map_attn_ids(a, idreg):
    a(f"s_and_b32 s4, s{idreg}, 7"); a("s_lshl_b32 s4, s4, 2"); a(f"s_lshr_b32 s5, s{idreg}, 3")
    a("s_and_b32 s6, s5, 3"); a("s_add_u32 s4, s4, s6"); a("s_lshr_b32 s5, s5, 2")
def map_gu_ids(a, idreg):
    a(f"s_and_b32 s6, s{idreg}, 7"); a(f"s_lshr_b32 s7, s{idreg}, 3"); a("s_lshr_b32 s4, s6, 1"); a("s_lshl_b32 s4, s4, 2")
    a("s_and_b32 s8, s7, 3"); a("s_add_u32 s4, s4, s8"); a("s_and_b32 s5, s6, 1"); a("s_mul_i32 s5, s5, 7"); a("s_lshr_b32 s7, s7, 2"); a("s_add_u32 s5, s5, s7")

def build():
    out = HEADER
    global ID_END
    if PERSIST: ID_END = 512
    out += f"; @launch grid=({ID_END},1,1) block=(256,1,1) lds=81920\n"
    out += '.amdgcn_target "amdgcn-amd-amdhsa--gfx950"\n'
    KN = NAME + "_kernel"
    a = Asm()
    a(f"s_cmp_ge_u32 s2, {ID_END}"); a("s_cbranch_scc1 K_end")
    prologue(a); stamp_init(a)
    if HPROF:
        a("s_memrealtime s[96:97]"); a("s_waitcnt lgkmcnt(0)")
    a(f"s_cmp_ge_u32 s2, {ID_A}"); a("s_cbranch_scc1 K_notkv")
    a(f"s_setprio {PRIO_KV}")
    a("s_and_b32 s4, s2, 7"); a("s_lshl_b32 s4, s4, 2"); a("s_lshr_b32 s5, s2, 3"); a("s_add_u32 s4, s4, s5")
    role_kv(a)
    a("s_lshl_b32 s12, s4, 2"); a(f"s_add_u32 s12, s12, {WS_FKV}")
    signal(a, "s12", 16, 256, have_tag=True)
    stamp(a, 5)
    if PERSIST:
        stamp_flush(a, 0)
        a("s_add_u32 s9, s2, 224"); a("s_branch K_fin2")
    stamp(a, 4)
    a("s_branch K_flush")
    a.label("K_notkv")
    a(f"s_cmp_ge_u32 s2, {ID_F}"); a("s_cbranch_scc1 K_fin")
    a(f"s_cmp_ge_u32 s2, {ID_G}"); a("s_cbranch_scc1 K_gu")
    a(f"s_setprio {PRIO_A}")
    a(f"s_sub_u32 s100, s2, {ID_A}")
    map_attn_ids(a, 100)
    if not SKIP_A: role_attn(a)
    a("s_branch K_flush")
    a.label("K_gu")
    a(f"s_setprio {PRIO_G}")
    a(f"s_sub_u32 s9, s2, {ID_G}"); map_gu_ids(a, 9)
    if SKIP_GU:
        srd(a, 52, S_WS, WS_SMALL_END)
        a("s_lshl_b32 s12, s4, 7"); a("s_lshl_b32 s13, s5, 2"); a("s_add_u32 s12, s12, s13"); a(f"s_add_u32 s12, s12, {WS_FH}")
        signal(a, "s12", 1, 0)
    else: role_gu(a)
    if PERSIST:
        stamp_flush(a, 0)
        a(f"s_sub_u32 s9, s2, {ID_G}"); a("s_branch K_fin2")
    a("s_branch K_flush")
    a.label("K_fin")
    a(f"s_sub_u32 s9, s2, {ID_F}")
    a.label("K_fin2")
    a(f"s_setprio {PRIO_F}")
    if PERSIST:
        a("s_add_u32 s2, s9, 512")
        stamp_init(a)
    map_attn_ids(a, 9)
    if not SKIP_FIN: role_fin(a)
    a.label("K_flush")
    stamp_flush(a)
    if HPROF:
        L = a.newlabel("HP")
        a("s_cmp_lg_u32 s3, 0"); a(f"s_cbranch_scc1 {L}")
        a("s_and_b32 s76, s2, 3"); a("s_cmp_lg_u32 s76, 0"); a(f"s_cbranch_scc1 {L}")
        a("s_memrealtime s[98:99]"); a("s_waitcnt lgkmcnt(0)")
        a("s_not_b32 s96, s96")
        a("s_mov_b32 s76, 3"); a(f"s_cmp_ge_u32 s2, {ID_A}"); a("s_cselect_b32 s76, 4, s76"); a(f"s_cmp_ge_u32 s2, {ID_G}"); a("s_cselect_b32 s76, 5, s76")
        a(f"s_cmp_ge_u32 s2, {ID_F}"); a("s_cselect_b32 s76, 6, s76"); a("s_lshl_b32 s76, s76, 2")
        a("v_mov_b32 v2, 4"); a("v_mov_b32 v3, s96"); a("v_mov_b32 v4, s76"); a("v_mov_b32 v5, s98")
        set_exec(a, 1)
        a(f"global_atomic_umax v2, v3, s[{S_DBG}:{S_DBG+1}] sc1")
        a(f"global_atomic_umax v4, v5, s[{S_DBG}:{S_DBG+1}] sc1")
        a("s_mov_b64 exec, -1")
        a.label(L)
    a.label("K_end"); a("s_endpgm")
    out += khead(KN) + a.text() + kd(KN)
    return out

if __name__ == "__main__":
    dst = sys.argv[1] if len(sys.argv) > 1 else f"cdna_kernels/{NAME}.s"
    for arg in sys.argv[2:]:
        k, v = arg.split("="); globals()[k] = int(v)
    txt = build()
    open(dst, "w").write(txt)
    print("wrote", dst, len(txt))
```
